```python
import torch

def _softmax(x, axis=-1):
    return torch.softmax(x, dim=axis)
def _gelu(x):
    return torch.nn.functional.gelu(x, approximate="tanh")
def _silu(x):
    return torch.nn.functional.silu(x)
def _sigmoid(x):
    return torch.sigmoid(x)
def _layernorm(x, axis=-1, eps=1e-5):
    m = x.mean(dim=axis, keepdim=True)
    v = x.var(dim=axis, keepdim=True, unbiased=False)
    return (x - m) / torch.sqrt(v + eps)
def _scatter_add(tgt, idx, src, axis=0):
    return tgt.clone().index_add_(axis, idx, src)
def _segment_sum(src, seg, n):
    out = torch.zeros((n,) + src.shape[1:], dtype=src.dtype)
    return out.index_add_(0, seg, src)
def _pad(x, pw):
    flat = tuple(v for pair in reversed(pw) for v in pair)
    return torch.nn.functional.pad(x, flat)

kernel_name = 'standalone__ragged_sequences_packed_sequences__ragged'

def setup_inputs():

    _w = (lambda a: (lambda t: t.to(torch.bfloat16) if t.is_floating_point() else t)(torch.as_tensor(a)))
    cu = torch.tensor([0, 370, 478, 621, 984, 1149, 1581, 1681, 2146], dtype=torch.int64)
    T = int(cu[-1])
    H, D = 16, 128
    lens = torch.diff(cu)
    seg_ids = torch.repeat_interleave(torch.arange(len(lens), dtype=torch.int64), lens)
    return {
        "q": _w((lambda *s: torch.randn(*s, dtype=torch.bfloat16) * 0.8)(T, H, D)),
        "k": _w((lambda *s: torch.randn(*s, dtype=torch.bfloat16) * 0.8)(T, H, D)),
        "v": _w((lambda *s: torch.randn(*s, dtype=torch.bfloat16) * 0.05)(T, H, D)),
        "seg_ids": _w(seg_ids),
    }

def reference(q, k, v, seg_ids):
    T, H, D = q.shape
    scale = D ** -0.5
    same_seq = seg_ids[:, None] == seg_ids[None, :]
    logits = torch.einsum("qhd,khd->hqk", q, k) * scale
    bias = (1.0 - (lambda x, dt: x.to(dt))(same_seq, q.dtype)) * (-1e9)
    p = _softmax(logits + bias[None, :, :], axis=-1)
    return torch.einsum("hqk,khd->qhd", p, v)
```

```python
import sys, json

KN = "standalone__ragged_sequences_packed_sequences__ragged_kernel"
PIECE, BLK, PAIR, GRP = 1056, 8448, 16896, 33792
RING = 8 * PAIR

SEGS = [(0, 370), (370, 108), (478, 143), (621, 363), (984, 165), (1149, 432), (1581, 100), (1681, 465)]
def pk(seg, c):
    k0, L = SEGS[seg]
    return k0 | (L << 12) | (c << 21)

DEF = dict(qscale=1, ts=0, prio=1, mapmode=0, name="k")

class G:
    def __init__(s, **o):
        s.o = dict(DEF); s.o.update(o); s.L = []; s.nts = 0
    def e(s, x): s.L.append("    " + x)
    def lab(s, x): s.L.append(x + ":")
    def c(s, x): s.L.append("    ; " + x)
    def stamp(s, force=False):
        if s.o["ts"]:
            r = 44 + 2 * 0
            s.e("s_memrealtime s[%d:%d]" % (s.tsreg, s.tsreg + 1)); s.tsreg += 2

O = 192; S = [160, 176]; NEGM = 144; Q = 112; KF = 80; VF = 48; P = 40
vKA0, vKA1, vVA = 1, 2, 3
vKB0, vVB = 4, 5
vKB1 = 6
vL, vT, vNINF, vROW, vHF, vOOF, vTMP, vTMP2, vRI = 7, 8, 9, 10, 11, 12, 13, 14, 16
sQ, sK, sV, sO = 20, 24, 28, 32
sW, sH = 18, 19
sR0, sR1, sR2 = 36, 37, 38
sK0, sL, sQ0, sN, sEND = 39, 40, 41, 42, 43
sG, sGOFF, sCNT, sSTG, sT0, sT1, sC = 44, 45, 46, 47, 48, 49, 50
sLDS, sLEAD, sSA, sSB, sI = 44, 45, 46, 47, 51
sMASK = 64

def vr(b, n=1): return "v%d" % b if n == 1 else "v[%d:%d]" % (b, b + n - 1)
def sr(b, n=1): return "s%d" % b if n == 1 else "s[%d:%d]" % (b, b + n - 1)

def gen(**opts):
    g = G(**opts); o = g.o; e = g.e
    ts = o["ts"]
    hdr = """; ragged (block-diagonal) attention, T=2146 H=16 D=128 bf16 -- generated by my gen.py
; kernarg: q,k,v,seg_ids,out,debug,ws
; @launch grid=(256,1,1) block=(512,1,1) lds=%d
.amdgcn_target "amdgcn-amd-amdhsa--gfx950"
.text
.globl %s
.p2align 8
.type %s,@function
%s:""" % (RING, KN, KN, KN)
    g.L.append(hdr)
    if ts: e("s_memrealtime s[96:97]")
    e("s_cmp_ge_u32 s2, 256")
    e("s_cbranch_scc1 L_end")
    e("s_load_dwordx8 s[4:11], s[0:1], 0")
    e("s_load_dwordx4 s[12:15], s[0:1], 32")
    if ts: e("s_load_dwordx2 s[16:17], s[0:1], 48")
    e("v_lshrrev_b32 v1, 6, v0")
    e("v_and_b32 v0, 63, v0")
    e("v_readfirstlane_b32 s%d, v1" % sW)
    if o["mapmode"] == 0:
        e("s_and_b32 s%d, s2, 7" % sH)
        e("s_lshr_b32 s3, s2, 3")
        e("s_and_b32 s%d, s3, 1" % sT0)
        e("s_lshl_b32 s%d, s%d, 1" % (sH, sH))
        e("s_add_u32 s%d, s%d, s%d" % (sH, sH, sT0))
        e("s_lshr_b32 s3, s3, 1")
    else:
        e("s_and_b32 s%d, s2, 15" % sH)
        e("s_lshr_b32 s3, s2, 4")
    e("s_lshl_b32 s%d, s%d, 8" % (sH, sH))
    e("s_mov_b32 s%d, 0x%x" % (sR0, pk(3, 0) - (13 << 21) & 0xffffffff))
    e("s_cmp_lt_u32 s3, 13")
    e("s_cselect_b32 s%d, 0x%x, s%d" % (sR0, pk(0, 0) - (10 << 21) & 0xffffffff, sR0))
    e("s_cmp_lt_u32 s3, 10")
    e("s_cselect_b32 s%d, 0x%x, s%d" % (sR0, pk(5, 0) - (6 << 21) & 0xffffffff, sR0))
    e("s_cmp_lt_u32 s3, 6")
    e("s_cselect_b32 s%d, 0x%x, s%d" % (sR0, pk(7, 0) - (2 << 21) & 0xffffffff, sR0))
    e("s_cmp_lt_u32 s3, 2")
    e("s_cselect_b32 s%d, 0x%x, s%d" % (sR0, pk(4, 0), sR0))
    e("s_cselect_b32 s%d, 0x%x, 0" % (sR1, pk(2, 1)))
    e("s_cselect_b32 s%d, 0x%x, 0" % (sR2, pk(1, 0)))
    e("s_lshl_b32 s%d, s3, 21" % sT0)
    e("s_add_u32 s%d, s%d, s%d" % (sR0, sR0, sT0))
    e("s_cmp_eq_u32 s3, 1")
    e("s_cselect_b32 s%d, 0x%x, s%d" % (sR1, pk(2, 0), sR1))
    e("s_cselect_b32 s%d, 0x%x, s%d" % (sR2, pk(6, 0), sR2))

    def decode_round():
        e("s_and_b32 s%d, s%d, 0xfff" % (sK0, sR0))
        e("s_bfe_u32 s%d, s%d, 0x9000c" % (sL, sR0))
        e("s_lshr_b32 s%d, s%d, 21" % (sQ0, sR0))
        e("s_lshl_b32 s%d, s%d, 7" % (sQ0, sQ0))
        e("s_add_u32 s%d, s%d, s%d" % (sQ0, sQ0, sK0))
        e("s_add_u32 s%d, s%d, 31" % (sN, sL))
        e("s_lshr_b32 s%d, s%d, 5" % (sN, sN))
        e("s_add_u32 s%d, s%d, s%d" % (sEND, sK0, sL))
        e("s_lshl_b32 s%d, s%d, 12" % (sEND, sEND))
        e("s_sub_u32 s%d, s%d, 3840" % (sEND, sEND))
    def shift_round():
        e("s_mov_b32 s%d, s%d" % (sR0, sR1))
        e("s_mov_b32 s%d, s%d" % (sR1, sR2))
        e("s_mov_b32 s%d, 0" % sR2)
    def srd(d, p):
        e("s_add_u32 s%d, s%d, s%d" % (d, p, sH))
        e("s_addc_u32 s%d, s%d, 0" % (d + 1, p + 1))
        e("s_mov_b32 s%d, 0x20000" % (d + 3))

    decode_round()
    e("s_cmp_lt_u32 s%d, 4" % sW)
    e("s_cbranch_scc1 L_cons")
    g.tsreg = 52
    if o["prio"]: e("s_setprio 3")
    e("v_lshrrev_b32 v2, 4, v0")
    e("v_and_b32 v3, 1, v2")
    e("v_and_b32 v4, 15, v0")
    e("v_xor_b32 v4, v4, v3")
    e("v_lshlrev_b32 v4, 4, v4")
    e("v_lshl_add_u32 v1, v2, 12, v4")
    e("s_sub_u32 s%d, s%d, 4" % (sT0, sW))
    e("s_lshl_b32 s%d, s%d, 15" % (sT1, sT0))
    e("v_add_u32 v1, s%d, v1" % sT1)
    e("v_add_u32 v2, %d, v1" % (16384 - PIECE))
    e("s_mul_i32 s%d, s%d, %d" % (sC, sT0, 2 * PIECE))
    e("s_add_u32 s%d, s%d, %d" % (sLDS, sC, PAIR))
    e("s_add_u32 s%d, s%d, %d" % (sI, sC, RING))
    e("s_mov_b32 s%d, 0" % sLEAD)
    e("s_waitcnt lgkmcnt(0)")
    g.stamp()
    srd(sQ, 4); srd(sK, 6); srd(sV, 8)
    cnt = [0]
    def pre():
        cnt[0] += 1
        e("s_add_u32 s%d, s%d, 1" % (sLEAD, sLEAD))
        e("s_cmp_le_u32 s%d, 7" % sLEAD)
        e("s_cbranch_scc1 L_pre%d" % cnt[0])
        e("s_waitcnt vmcnt(24)")
        e("s_barrier")
        g.lab("L_pre%d" % cnt[0])
    def issue(a, b):
        e("s_mov_b32 m0, s%d" % sLDS)
        e("s_add_u32 s%d, s%d, %d" % (sT0, sLDS, BLK))
        e("buffer_load_dwordx4 v1, %s, s%d offen lds" % (sr(a, 4), sSA))
        e("buffer_load_dwordx4 v2, %s, s%d offen offset:%d lds" % (sr(a, 4), sSA, PIECE))
        e("s_mov_b32 m0, s%d" % sT0)
        e("s_add_u32 s%d, s%d, %d" % (sLDS, sLDS, PAIR))
        e("buffer_load_dwordx4 v1, %s, s%d offen lds" % (sr(b, 4), sSB))
        e("buffer_load_dwordx4 v2, %s, s%d offen offset:%d lds" % (sr(b, 4), sSB, PIECE))
        e("s_cmp_eq_u32 s%d, s%d" % (sLDS, sI))
        e("s_cselect_b32 s%d, s%d, s%d" % (sLDS, sC, sLDS))
    g.lab("L_pround")
    for x in (sQ, sK, sV): e("s_mov_b32 s%d, s%d" % (x + 2, sEND))
    e("s_lshl_b32 s%d, s%d, 12" % (sSA, sQ0))
    e("s_add_u32 s%d, s%d, %d" % (sSB, sSA, 32 * 4096))
    pre(); issue(sQ, sQ)
    e("s_add_u32 s%d, s%d, %d" % (sSA, sSA, 64 * 4096))
    e("s_add_u32 s%d, s%d, %d" % (sSB, sSB, 64 * 4096))
    pre(); issue(sQ, sQ)
    e("s_lshl_b32 s%d, s%d, 12" % (sSA, sK0))
    e("s_add_u32 s%d, s%d, %d" % (sSB, sSA, 32 * 4096))
    pre(); issue(sK, sK)
    e("s_add_u32 s%d, s%d, %d" % (sSB, sSA, 64 * 4096))
    e("s_mov_b32 s%d, s%d" % (sT1, sN))
    g.lab("L_ptile")
    pre(); issue(sV, sK)
    e("s_add_u32 s%d, s%d, %d" % (sSA, sSA, 32 * 4096))
    e("s_add_u32 s%d, s%d, %d" % (sSB, sSB, 32 * 4096))
    e("s_sub_u32 s%d, s%d, 1" % (sT1, sT1))
    e("s_cmp_lg_u32 s%d, 0" % sT1)
    e("s_cbranch_scc1 L_ptile")
    e("s_cmp_eq_u32 s%d, 0" % sR1)
    e("s_cbranch_scc1 L_pdrain")
    e("s_bitcmp1_b32 s%d, 0" % sN)
    e("s_cbranch_scc1 L_pnodummy")
    pre(); issue(sV, sK)
    g.lab("L_pnodummy")
    shift_round(); decode_round()
    e("s_branch L_pround")
    g.lab("L_pdrain")
    if o["prio"]: e("s_setprio 0")
    for n in range(24, -1, -4):
        e("s_waitcnt vmcnt(%d)" % n)
        e("s_barrier")
    g.stamp()
    if ts:
        e("s_branch L_tsout")
    else:
        e("s_endpgm")

    g.lab("L_cons")
    g.tsreg = 52
    if o["prio"]: e("s_setprio 1")
    e("v_lshrrev_b32 v%d, 5, v0" % vHF)
    e("v_and_b32 v20, 3, v0")
    e("v_bfe_u32 v21, v0, 4, 1")
    e("v_lshl_add_u32 v21, v20, 1, v21")
    e("v_bfe_u32 v22, v0, 2, 1")
    e("v_bfe_u32 v23, v0, 3, 1")
    e("v_lshl_add_u32 v23, v23, 1, v22")
    e("v_lshl_add_u32 v%d, v21, 2, v23" % vROW)
    e("v_mul_u32_u24 v24, %d, v21" % PIECE)
    e("v_lshl_add_u32 v24, v23, 8, v24")
    e("v_lshl_add_u32 v24, v%d, 7, v24" % vHF)
    e("v_lshl_add_u32 v%d, v22, 4, v24" % vKB0)
    e("v_xor_b32 v%d, 16, v%d" % (vKB1, vKB0))
    e("v_bfe_u32 v24, v0, 2, 2")
    e("v_mul_u32_u24 v24, %d, v24" % (2 * PIECE))
    e("v_lshl_add_u32 v24, v%d, 8, v24" % vHF)
    e("v_bfe_u32 v25, v0, 4, 1")
    e("v_lshlrev_b32 v25, 5, v25")
    e("v_lshl_add_u32 v25, v20, 3, v25")
    e("v_lshlrev_b32 v26, 4, v%d" % vHF)
    e("v_xor_b32 v25, v25, v26")
    e("v_add_u32 v%d, v24, v25" % vVB)
    e("v_mov_b32 v%d, 0xff800000" % vNINF)
    e("s_mov_b32 s%d, 0" % sG)
    e("s_mov_b32 s%d, 0x%08x" % (sC, 0x3e02950d))
    g.L[-1] = "    s_mov_b32 s%d, 0x%08x" % (sC, f2u((128 ** -0.5) * 1.4426950408889634))
    e("s_waitcnt lgkmcnt(0)")
    srd(sO, 12)
    g.lab("L_cround")
    e("s_mov_b32 s%d, s%d" % (sO + 2, sEND))
    e("s_lshl_b32 s%d, s%d, 5" % (sT0, sW))
    e("s_add_u32 s%d, s%d, s%d" % (sT0, sT0, sQ0))
    e("v_add_u32 v%d, s%d, v%d" % (vOOF, sT0, vROW))
    e("v_lshlrev_b32 v%d, 12, v%d" % (vOOF, vOOF))
    e("v_lshl_add_u32 v%d, v%d, 4, v%d" % (vOOF, vHF, vOOF))
    e("s_sub_u32 s%d, s%d, 1" % (sT0, sN))
    e("s_lshl_b32 s%d, s%d, 5" % (sT0, sT0))
    e("s_sub_u32 s%d, s%d, s%d" % (sT0, sL, sT0))
    e("v_sub_u32 v%d, s%d, v%d" % (vTMP, sT0, vHF))
    for rr in range(16):
        kc = 8 * (rr % 4) + 4 * (rr // 8) + 2 * ((rr // 4) % 2)
        e("v_cmp_lt_i32 %s, %d, v%d" % (sr(sMASK + 2 * rr, 2), kc, vTMP))
    for i in range(64): e("v_mov_b32 v%d, 0" % (O + i))
    for i in range(16): e("v_mov_b32 v%d, 0" % (NEGM + i))
    e("v_mov_b32 v%d, 0" % vL)
    e("s_mul_i32 s%d, s%d, %d" % (sGOFF, sG, GRP))
    e("s_add_u32 s%d, s%d, %d" % (sT0, sGOFF, PAIR))
    e("s_add_u32 s%d, s%d, 1" % (sG, sG))
    e("s_and_b32 s%d, s%d, 3" % (sG, sG))
    e("s_mul_i32 s%d, s%d, %d" % (sGOFF, sG, GRP))
    e("s_cmp_lt_u32 s%d, 2" % sW)
    e("s_cselect_b32 s%d, s%d, s%d" % (sT0, sT0, sGOFF))
    e("s_and_b32 s%d, s%d, 1" % (sT1, sW))
    e("s_mul_i32 s%d, s%d, %d" % (sT1, sT1, BLK))
    e("s_add_u32 s%d, s%d, s%d" % (sT0, sT0, sT1))
    e("v_add_u32 v%d, s%d, v%d" % (vKA0, sT0, vKB0))
    e("v_add_u32 v%d, s%d, v%d" % (vKA1, sT0, vKB1))
    def kread(dst, s_, off):
        return "ds_read_b128 %s, v%d offset:%d" % (vr(dst + 4 * s_, 4), vKA1 if s_ & 1 else vKA0, off + (s_ >> 1) * 32)
    g.stamp()
    e("s_barrier")
    e("s_cmp_lt_u32 s%d, 2" % sW)
    e("s_cbranch_scc0 L_q1")
    for s_ in range(8): e(kread(Q, s_, 0))
    e("s_waitcnt lgkmcnt(0)")
    e("s_barrier")
    e("s_branch L_q2")
    g.lab("L_q1")
    e("s_barrier")
    for s_ in range(8): e(kread(Q, s_, 0))
    e("s_waitcnt lgkmcnt(0)")
    g.lab("L_q2")
    g.stamp()
    e("v_add_u32 v%d, s%d, v%d" % (vKA0, sGOFF, vKB0))
    e("v_add_u32 v%d, s%d, v%d" % (vKA1, sGOFF, vKB1))
    if o["qscale"]:
        for i in range(32):
            t = 20 + 2 * (i % 4)
            e("v_lshlrev_b32 v%d, 16, v%d" % (t, Q + i))
            e("v_and_b32 v%d, 0xffff0000, v%d" % (t + 1, Q + i))
            e("v_mul_f32 v%d, s%d, v%d" % (t, sC, t))
            e("v_mul_f32 v%d, s%d, v%d" % (t + 1, sC, t + 1))
            e("v_cvt_pk_bf16_f32 v%d, v%d, v%d" % (Q + i, t, t + 1))
    e("s_barrier")
    g.stamp()
    for s_ in range(8): e(kread(KF, s_, PAIR))
    e("s_add_u32 s%d, s%d, 1" % (sG, sG))
    e("s_and_b32 s%d, s%d, 3" % (sG, sG))
    e("s_mul_i32 s%d, s%d, %d" % (sGOFF, sG, GRP))
    def qk(s_, buf):
        c = NEGM if s_ == 0 else S[buf]
        return "v_mfma_f32_32x32x16_bf16 %s, %s, %s, %s" % (vr(S[buf], 16), vr(KF + 4 * s_, 4), vr(Q + 4 * s_, 4), vr(c, 16))
    base_lg = 1 if ts else 0
    for s_ in range(8):
        e("s_waitcnt lgkmcnt(7)" if not ts else "s_waitcnt lgkmcnt(0)")
        e(qk(s_, 0))
        e(kread(KF, s_, PAIR + BLK))
    e("v_add_u32 v%d, s%d, v%d" % (vKA0, sGOFF, vKB0))
    e("v_add_u32 v%d, s%d, v%d" % (vKA1, sGOFF, vKB1))
    e("v_add_u32 v%d, s%d, v%d" % (vVA, sGOFF, vVB))
    e("s_sub_u32 s%d, s%d, 3" % (sCNT, sN))
    e("s_mov_b32 s%d, 0" % sSTG)
    e("s_nop 7")
    s0 = S[0]
    e("v_max3_f32 v%d, v%d, v%d, v%d" % (vTMP, s0, s0 + 1, s0 + 2))
    e("v_max3_f32 v%d, v%d, v%d, v%d" % (vTMP2, s0 + 3, s0 + 4, s0 + 5))
    for i in range(6, 14, 4):
        e("v_max3_f32 v%d, v%d, v%d, v%d" % (vTMP, vTMP, s0 + i, s0 + i + 1))
        e("v_max3_f32 v%d, v%d, v%d, v%d" % (vTMP2, vTMP2, s0 + i + 2, s0 + i + 3))
    e("v_max3_f32 v%d, v%d, v%d, v%d" % (vTMP, vTMP, s0 + 14, s0 + 15))
    e("v_max_f32 v%d, v%d, v%d" % (vTMP, vTMP, vTMP2))
    e("v_mov_b32 v%d, v%d" % (vTMP2, vTMP))
    e("s_nop 1")
    e("v_permlane32_swap_b32 v%d, v%d" % (vTMP, vTMP2))
    e("v_max_f32 v%d, v%d, v%d" % (vTMP, vTMP, vTMP2))
    for i in range(16): e("v_sub_f32 v%d, v%d, v%d" % (s0 + i, s0 + i, vTMP))
    for i in range(16): e("v_sub_f32 v%d, 0, v%d" % (NEGM + i, vTMP))
    def X(buf, i):
        r = S[buf] + i
        if o["qscale"]: return ["v_exp_f32 v%d, v%d" % (r, r)]
        return ["v_mul_f32 v%d, s%d, v%d" % (r, sC, r), "v_exp_f32 v%d, v%d" % (r, r)]
    def C(buf, j): return ["v_cvt_pk_bf16_f32 v%d, v%d, v%d" % (P + j, S[buf] + 2 * j, S[buf] + 2 * j + 1)]
    def T(buf, i):
        if i == 1: return ["v_add_f32 v%d, v%d, v%d" % (vT, S[buf], S[buf] + 1)]
        return ["v_add_f32 v%d, v%d, v%d" % (vT, vT, S[buf] + i)]
    def A(buf, i): return ["v_add_f32 v%d, v%d, v%d" % (vL, vL, S[buf] + i)]
    for i in range(8):
        for x in X(0, i): e(x)
    e("s_nop 0")
    for j in range(4): e(C(0, j)[0])
    for i in range(1, 8): e(T(0, i)[0])
    g.stamp()
    def V(n, off):
        ks, db, sec = n >> 3, (n >> 1) & 3, n & 1
        return ["ds_read_b64_tr_b16 %s, v%d offset:%d" % (vr(VF + ks * 16 + db * 4 + sec * 2, 2), vVA, off + ks * PIECE + sec * 512 + db * 64)]
    def pv(n):
        ks, db = n >> 2, n & 3
        return "v_mfma_f32_32x32x16_bf16 %s, %s, %s, %s" % (vr(O + 16 * db, 16), vr(VF + ks * 16 + db * 4, 4), vr(P + 4 * ks, 4), vr(O + 16 * db, 16))
    e("s_nop 0")
    g.L.append(".p2align 6")
    for h in range(2):
        cur, nxt = h, 1 - h
        off = h * PAIR
        K_ = lambda s_: [kread(KF, s_, off + BLK)]
        V_ = lambda n: V(n, off)
        gaps = [
            ["s_barrier"] + V_(0) + V_(1) + V_(2) + V_(3) + ["v_add_f32 v%d, v%d, v%d" % (vL, vL, vT)],
            V_(4) + V_(5) + X(cur, 8) + X(cur, 9),
            V_(6) + V_(7) + X(cur, 10) + X(cur, 11),
            V_(8) + V_(9) + X(cur, 12) + C(cur, 4) + A(cur, 8),
            V_(10) + V_(11) + X(cur, 13) + C(cur, 5) + A(cur, 9),
            V_(12) + V_(13) + X(cur, 14) + A(cur, 10) + A(cur, 11),
            V_(14) + V_(15) + X(cur, 15) + A(cur, 12) + C(cur, 6),
            A(cur, 13) + A(cur, 14) + C(cur, 7) + A(cur, 15) + ["s_waitcnt lgkmcnt(8)"],
            K_(0) + K_(1) + K_(2) + K_(3),
            K_(4) + K_(5) + K_(6) + K_(7),
            X(nxt, 0) + X(nxt, 1) + X(nxt, 2),
            X(nxt, 3) + T(nxt, 1) + C(nxt, 0) + T(nxt, 2) + ["s_waitcnt lgkmcnt(8)"],
            X(nxt, 4) + X(nxt, 5) + C(nxt, 1) + T(nxt, 3),
            X(nxt, 6) + X(nxt, 7) + T(nxt, 4) + T(nxt, 5),
            C(nxt, 2) + C(nxt, 3) + T(nxt, 6) + T(nxt, 7),
            [],
        ]
        if h == 1:
            gaps[8] += ["s_add_u32 s%d, s%d, 1" % (sG, sG), "s_and_b32 s%d, s%d, 3" % (sG, sG)]
            gaps[9] += ["s_mul_i32 s%d, s%d, %d" % (sGOFF, sG, GRP)]
            gaps[14] += ["v_add_u32 v%d, s%d, v%d" % (vVA, sGOFF, vVB)]
            gaps[15] += ["v_add_u32 v%d, s%d, v%d" % (vKA0, sGOFF, vKB0), "v_add_u32 v%d, s%d, v%d" % (vKA1, sGOFF, vKB1)]
        gaps[15] += ["s_sub_u32 s%d, s%d, 1" % (sCNT, sCNT), "s_cbranch_scc1 L_ev%d" % h]
        if h == 1: gaps[15] += ["s_branch L_h0"]
        g.lab("L_h%d" % h)
        e("s_waitcnt lgkmcnt(0)")
        for n in range(16):
            e(qk(n, nxt) if n < 8 else pv(n - 8))
            for x in gaps[n]: e(x)
    for h in range(2):
        g.lab("L_ev%d" % h)
        e("s_cmp_lg_u32 s%d, 0" % sSTG)
        e("s_cbranch_scc1 L_epi")
        e("s_mov_b32 s%d, 1" % sSTG)
        e("s_mov_b32 s%d, 1" % sCNT)
        for rr in range(16):
            e("v_cndmask_b32 v%d, v%d, v%d, %s" % (NEGM + rr, vNINF, NEGM + rr, sr(sMASK + 2 * rr, 2)))
        e("s_branch L_h%d" % (1 - h))
    g.lab("L_epi")
    g.stamp()
    e("v_mov_b32 v%d, v%d" % (vTMP, vL))
    e("s_nop 1")
    e("v_permlane32_swap_b32 v%d, v%d" % (vTMP, vL))
    e("v_add_f32 v%d, v%d, v%d" % (vL, vL, vTMP))
    e("v_rcp_f32 v%d, v%d" % (vRI, vL))
    e("s_nop 7")
    for db in range(4):
        ob = O + 16 * db
        for k in range(8):
            e("v_pk_mul_f32 %s, %s, %s op_sel_hi:[1,0]" % (vr(ob + 2 * k, 2), vr(ob + 2 * k, 2), vr(vRI, 2)))
        w = VF + 8 * db
        for k in range(8):
            e("v_cvt_pk_bf16_f32 v%d, v%d, v%d" % (w + k, ob + 2 * k, ob + 2 * k + 1))
        e("s_nop 0")
        for pr in range(2):
            e("v_permlane32_swap_b32 v%d, v%d" % (w + 4 * pr, w + 4 * pr + 2))
            e("v_permlane32_swap_b32 v%d, v%d" % (w + 4 * pr + 1, w + 4 * pr + 3))
        for pr in range(2):
            e("buffer_store_dwordx4 %s, v%d, %s, 0 offen offset:%d" % (vr(w + 4 * pr, 4), vOOF, sr(sO, 4), db * 64 + pr * 32))
    e("s_cmp_eq_u32 s%d, 0" % sR1)
    e("s_cbranch_scc1 L_cdone")
    e("s_bitcmp1_b32 s%d, 0" % sN)
    e("s_cbranch_scc1 L_cnodummy")
    e("s_waitcnt lgkmcnt(0)")
    e("s_barrier")
    g.lab("L_cnodummy")
    shift_round(); decode_round()
    e("s_waitcnt lgkmcnt(0)")
    if ts: g.tsreg = 54
    e("s_branch L_cround")
    g.lab("L_cdone")
    if ts:
        g.tsreg = 62
        g.stamp()
        e("s_waitcnt vmcnt(0)")
        e("s_memrealtime s[98:99]")
        g.lab("L_tsout")
        e("s_waitcnt lgkmcnt(0)")
        e("s_lshl_b32 s%d, s2, 3" % sT0)
        e("s_add_u32 s%d, s%d, s%d" % (sT0, sT0, sW))
        e("s_lshl_b32 s%d, s%d, 6" % (sT0, sT0))
        e("s_add_u32 s16, s16, s%d" % sT0)
        e("s_addc_u32 s17, s17, 0")
        e("v_mov_b32 v1, 0")
        regs = [96, 52, 54, 56, 58, 60, 62, 98]
        for k, r in enumerate(regs):
            e("v_mov_b32 v2, s%d" % r)
            e("v_mov_b32 v3, s%d" % (r + 1))
            e("global_store_dwordx2 v1, v[2:3], s[16:17] offset:%d" % (8 * k))
            e("s_nop 1")
    g.lab("L_end")
    e("s_endpgm")
    g.L.append(""".section .rodata,"a"
.p2align 6
.amdhsa_kernel %s
  .amdhsa_next_free_vgpr 256
  .amdhsa_next_free_sgpr 102
  .amdhsa_accum_offset 256
  .amdhsa_group_segment_fixed_size 0
  .amdhsa_kernarg_size 56
  .amdhsa_user_sgpr_count 2
  .amdhsa_user_sgpr_kernarg_segment_ptr 1
  .amdhsa_system_sgpr_workgroup_id_x 1
.end_amdhsa_kernel""" % KN)
    return "\n".join(g.L) + "\n"

import struct
def f2u(x): return struct.unpack("<I", struct.pack("<f", x))[0]

if __name__ == "__main__":
    out = sys.argv[1]
    opts = {}
    for a in sys.argv[2:]:
        k, v = a.split("="); opts[k] = int(v)
    open(out, "w").write(gen(**opts))
```

```python
import sys, json

KN = "standalone__ragged_sequences_packed_sequences__ragged_kernel"
PIECE, BLK, PAIR, GRP = 1056, 8448, 16896, 33792
RING = 8 * PAIR

SEGS = [(0, 370), (370, 108), (478, 143), (621, 363), (984, 165), (1149, 432), (1581, 100), (1681, 465)]
def pk(seg, c):
    k0, L = SEGS[seg]
    return k0 | (L << 12) | (c << 21)

DEF = dict(qscale=1, ts=0, prio=1, mapmode=0, name="k", noK=0, noV=0, noX=0, noA=0, mf16=0, noM=0, ramp="3,3,3", ntq=0, ntkv=0)

class G:
    def __init__(s, **o):
        s.o = dict(DEF); s.o.update(o); s.L = []; s.nts = 0
    def e(s, x): s.L.append("    " + x)
    def lab(s, x): s.L.append(x + ":")
    def c(s, x): s.L.append("    ; " + x)
    def stamp_issue(s):
        if s.o["ts"]:
            s.e("s_memtime s[52:53]"); s.e("s_memrealtime s[54:55]")
    def stamp_write(s):
        if s.o["ts"]:
            s.e("s_mov_b32 m0, s56"); s.e("s_add_u32 s56, s56, 1"); s.e("v_writelane_b32 v30, s52, m0"); s.e("v_writelane_b32 v31, s54, m0")
    def stamp(s):
        if s.o["ts"]:
            s.stamp_issue(); s.e("s_waitcnt lgkmcnt(0)"); s.stamp_write()

O = 192; S = [160, 176]; NEGM = 144; Q = 112; KF = 80; VF = 48; P = 40
vKA0, vKA1, vVA = 1, 2, 3
vKB0, vVB = 4, 5
vKB1 = 6
vL, vT, vNINF, vROW, vHF, vOOF, vTMP, vTMP2, vRI = 7, 8, 9, 10, 11, 12, 13, 14, 16
sQ, sK, sV, sO = 20, 24, 28, 32
sW, sH = 18, 19
sR0, sR1, sR2 = 36, 37, 38
sK0, sL, sQ0, sN, sEND = 39, 40, 41, 42, 43
sG, sGOFF, sCNT, sSTG, sT0, sT1, sC = 44, 45, 46, 47, 48, 49, 50
sLDS, sLEAD, sSA, sSB, sI = 44, 45, 46, 47, 51
sMASK = 64

def vr(b, n=1): return "v%d" % b if n == 1 else "v[%d:%d]" % (b, b + n - 1)
def sr(b, n=1): return "s%d" % b if n == 1 else "s[%d:%d]" % (b, b + n - 1)

def gen(**opts):
    g = G(**opts); o = g.o; e = g.e
    ts = o["ts"]
    hdr = """; ragged (block-diagonal) attention, T=2146 H=16 D=128 bf16 -- generated by my gen.py
; kernarg: q,k,v,seg_ids,out,debug,ws
; @launch grid=(256,1,1) block=(512,1,1) lds=%d
.amdgcn_target "amdgcn-amd-amdhsa--gfx950"
.text
.globl %s
.p2align 8
.type %s,@function
%s:""" % (RING, KN, KN, KN)
    g.L.append(hdr)
    if ts:
        e("s_mov_b32 s56, 0"); e("v_mov_b32 v30, 0"); e("v_mov_b32 v31, 0"); g.stamp()
    e("s_cmp_ge_u32 s2, 256")
    e("s_cbranch_scc1 L_end")
    e("s_load_dwordx8 s[4:11], s[0:1], 0")
    e("s_load_dwordx4 s[12:15], s[0:1], 32")
    if ts: e("s_load_dwordx2 s[16:17], s[0:1], 48")
    e("v_lshrrev_b32 v1, 6, v0")
    e("v_and_b32 v0, 63, v0")
    e("v_readfirstlane_b32 s%d, v1" % sW)
    if o["mapmode"] == 0:
        e("s_and_b32 s%d, s2, 7" % sH)
        e("s_lshr_b32 s3, s2, 3")
        e("s_and_b32 s%d, s3, 1" % sT0)
        e("s_lshl_b32 s%d, s%d, 1" % (sH, sH))
        e("s_add_u32 s%d, s%d, s%d" % (sH, sH, sT0))
        e("s_lshr_b32 s3, s3, 1")
    elif o["mapmode"] == 2:
        e("s_and_b32 s%d, s2, 7" % sH)
        e("s_lshr_b32 s3, s2, 3")
        e("s_and_b32 s%d, s3, 1" % sT0)
        e("s_lshl_b32 s%d, s%d, 1" % (sH, sH))
        e("s_add_u32 s%d, s%d, s%d" % (sH, sH, sT0))
        e("s_lshr_b32 s3, s3, 1")
        e("s_mov_b32 s%d, 12" % sT0)
        e("s_cmp_lt_u32 s3, 13"); e("s_cselect_b32 s%d, 8, s%d" % (sT0, sT0))
        e("s_cmp_lt_u32 s3, 10"); e("s_cselect_b32 s%d, 4, s%d" % (sT0, sT0))
        e("s_cmp_lt_u32 s3, 6"); e("s_cselect_b32 s%d, 0, s%d" % (sT0, sT0))
        e("s_cmp_lt_u32 s3, 2"); e("s_cselect_b32 s%d, 2, s%d" % (sT0, sT0))
        e("s_add_u32 s%d, s%d, s%d" % (sH, sH, sT0))
        e("s_and_b32 s%d, s%d, 15" % (sH, sH))
    else:
        e("s_and_b32 s%d, s2, 15" % sH)
        e("s_lshr_b32 s3, s2, 4")
    e("s_lshl_b32 s%d, s%d, 8" % (sH, sH))
    e("s_mov_b32 s%d, 0x%x" % (sR0, pk(3, 0) - (13 << 21) & 0xffffffff))
    e("s_cmp_lt_u32 s3, 13")
    e("s_cselect_b32 s%d, 0x%x, s%d" % (sR0, pk(0, 0) - (10 << 21) & 0xffffffff, sR0))
    e("s_cmp_lt_u32 s3, 10")
    e("s_cselect_b32 s%d, 0x%x, s%d" % (sR0, pk(5, 0) - (6 << 21) & 0xffffffff, sR0))
    e("s_cmp_lt_u32 s3, 6")
    e("s_cselect_b32 s%d, 0x%x, s%d" % (sR0, pk(7, 0) - (2 << 21) & 0xffffffff, sR0))
    e("s_cmp_lt_u32 s3, 2")
    e("s_cselect_b32 s%d, 0x%x, s%d" % (sR0, pk(4, 0), sR0))
    e("s_cselect_b32 s%d, 0x%x, 0" % (sR1, pk(2, 1)))
    e("s_cselect_b32 s%d, 0x%x, 0" % (sR2, pk(1, 0)))
    e("s_lshl_b32 s%d, s3, 21" % sT0)
    e("s_add_u32 s%d, s%d, s%d" % (sR0, sR0, sT0))
    e("s_cmp_eq_u32 s3, 1")
    e("s_cselect_b32 s%d, 0x%x, s%d" % (sR1, pk(2, 0), sR1))
    e("s_cselect_b32 s%d, 0x%x, s%d" % (sR2, pk(6, 0), sR2))

    def decode_round():
        e("s_and_b32 s%d, s%d, 0xfff" % (sK0, sR0))
        e("s_bfe_u32 s%d, s%d, 0x9000c" % (sL, sR0))
        e("s_lshr_b32 s%d, s%d, 21" % (sQ0, sR0))
        e("s_lshl_b32 s%d, s%d, 7" % (sQ0, sQ0))
        e("s_add_u32 s%d, s%d, s%d" % (sQ0, sQ0, sK0))
        e("s_add_u32 s%d, s%d, 31" % (sN, sL))
        e("s_lshr_b32 s%d, s%d, 5" % (sN, sN))
        e("s_add_u32 s%d, s%d, s%d" % (sEND, sK0, sL))
        e("s_lshl_b32 s%d, s%d, 12" % (sEND, sEND))
        e("s_sub_u32 s%d, s%d, 3840" % (sEND, sEND))
    def shift_round():
        e("s_mov_b32 s%d, s%d" % (sR0, sR1))
        e("s_mov_b32 s%d, s%d" % (sR1, sR2))
        e("s_mov_b32 s%d, 0" % sR2)
    def srd(d, p):
        e("s_add_u32 s%d, s%d, s%d" % (d, p, sH))
        e("s_addc_u32 s%d, s%d, 0" % (d + 1, p + 1))
        e("s_mov_b32 s%d, 0x20000" % (d + 3))

    decode_round()
    e("s_cmp_lt_u32 s%d, 4" % sW)
    e("s_cbranch_scc1 L_cons")
    if o["prio"]: e("s_setprio 3")
    e("v_lshrrev_b32 v2, 4, v0")
    e("v_and_b32 v3, 1, v2")
    e("v_and_b32 v4, 15, v0")
    e("v_xor_b32 v4, v4, v3")
    e("v_lshlrev_b32 v4, 4, v4")
    e("v_lshl_add_u32 v1, v2, 12, v4")
    e("s_sub_u32 s%d, s%d, 4" % (sT0, sW))
    e("s_lshl_b32 s%d, s%d, 15" % (sT1, sT0))
    e("v_add_u32 v1, s%d, v1" % sT1)
    e("v_add_u32 v2, %d, v1" % (16384 - PIECE))
    e("s_mul_i32 s%d, s%d, %d" % (sC, sT0, 2 * PIECE))
    e("s_add_u32 s%d, s%d, %d" % (sLDS, sC, PAIR))
    e("s_add_u32 s%d, s%d, %d" % (sI, sC, RING))
    e("s_mov_b32 s%d, 0" % sLEAD)
    e("s_waitcnt lgkmcnt(0)")
    g.stamp()
    srd(sQ, 4); srd(sK, 6); srd(sV, 8)
    def pre():
        e("s_waitcnt vmcnt(24)")
        g.stamp()
        e("s_barrier")
    def issue(a, b):
        fa = " nt" if (o["ntq"] if a == sQ else o["ntkv"]) else ""
        fb = " nt" if (o["ntq"] if b == sQ else o["ntkv"]) else ""
        e("s_mov_b32 m0, s%d" % sLDS)
        e("s_add_u32 s%d, s%d, %d" % (sT0, sLDS, BLK))
        e("buffer_load_dwordx4 v1, %s, s%d offen%s lds" % (sr(a, 4), sSA, fa))
        e("buffer_load_dwordx4 v2, %s, s%d offen offset:%d%s lds" % (sr(a, 4), sSA, PIECE, fa))
        e("s_mov_b32 m0, s%d" % sT0)
        e("s_add_u32 s%d, s%d, %d" % (sLDS, sLDS, PAIR))
        e("buffer_load_dwordx4 v1, %s, s%d offen%s lds" % (sr(b, 4), sSB, fb))
        e("buffer_load_dwordx4 v2, %s, s%d offen offset:%d%s lds" % (sr(b, 4), sSB, PIECE, fb))
        e("s_cmp_eq_u32 s%d, s%d" % (sLDS, sI))
        e("s_cselect_b32 s%d, s%d, s%d" % (sLDS, sC, sLDS))
    def entry(k):
        if k == 0:
            for x in (sQ, sK, sV): e("s_mov_b32 s%d, s%d" % (x + 2, sEND))
            e("s_lshl_b32 s%d, s%d, 12" % (sSA, sQ0))
            e("s_add_u32 s%d, s%d, %d" % (sSB, sSA, 32 * 4096))
            issue(sQ, sQ)
        elif k == 1:
            e("s_add_u32 s%d, s%d, %d" % (sSA, sSA, 64 * 4096))
            e("s_add_u32 s%d, s%d, %d" % (sSB, sSB, 64 * 4096))
            issue(sQ, sQ)
        elif k == 2:
            e("s_lshl_b32 s%d, s%d, 12" % (sSA, sK0))
            e("s_add_u32 s%d, s%d, %d" % (sSB, sSA, 32 * 4096))
            issue(sK, sK)
            e("s_add_u32 s%d, s%d, %d" % (sSB, sSA, 64 * 4096))
        else:
            issue(sV, sK)
            e("s_add_u32 s%d, s%d, %d" % (sSA, sSA, 32 * 4096))
            e("s_add_u32 s%d, s%d, %d" % (sSB, sSB, 32 * 4096))
    ramp = [int(x) for x in o["ramp"].split(",")]
    issued = 0
    for n, k in enumerate(ramp):
        if n > 0:
            e("s_waitcnt vmcnt(%d)" % (4 * (issued - n)))
            g.stamp()
            e("s_barrier")
        for _ in range(k):
            entry(issued); issued += 1
    nb = len(ramp) - 1
    assert issued - nb == 7 and issued <= 9 and issued >= 3, (issued, nb)
    if o["prio"]: e("s_setprio 0")
    e("s_sub_u32 s%d, s%d, %d" % (sT1, sN, issued - 3))
    e("s_cmp_eq_u32 s%d, 0" % sT1)
    e("s_cbranch_scc1 L_ptend")
    g.lab("L_ptile")
    pre(); entry(3)
    e("s_sub_u32 s%d, s%d, 1" % (sT1, sT1))
    e("s_cmp_lg_u32 s%d, 0" % sT1)
    e("s_cbranch_scc1 L_ptile")
    g.lab("L_ptend")
    e("s_cmp_eq_u32 s%d, 0" % sR1)
    e("s_cbranch_scc1 L_pdrain")
    e("s_bitcmp1_b32 s%d, 0" % sN)
    e("s_cbranch_scc1 L_pnodummy")
    pre(); issue(sV, sK)
    g.lab("L_pnodummy")
    shift_round(); decode_round()
    for k in range(3):
        pre(); entry(k)
    e("s_mov_b32 s%d, s%d" % (sT1, sN))
    e("s_branch L_ptile")
    g.lab("L_pdrain")
    for n in range(24, -1, -4):
        e("s_waitcnt vmcnt(%d)" % n)
        g.stamp()
        e("s_barrier")
    g.stamp()
    if ts:
        e("s_branch L_tsout")
    else:
        e("s_endpgm")

    g.lab("L_cons")
    if o["prio"]: e("s_setprio 1")
    e("v_lshrrev_b32 v%d, 5, v0" % vHF)
    e("v_and_b32 v20, 3, v0")
    e("v_bfe_u32 v21, v0, 4, 1")
    e("v_lshl_add_u32 v21, v20, 1, v21")
    e("v_bfe_u32 v22, v0, 2, 1")
    e("v_bfe_u32 v23, v0, 3, 1")
    e("v_lshl_add_u32 v23, v23, 1, v22")
    e("v_lshl_add_u32 v%d, v21, 2, v23" % vROW)
    e("v_mul_u32_u24 v24, %d, v21" % PIECE)
    e("v_lshl_add_u32 v24, v23, 8, v24")
    e("v_lshl_add_u32 v24, v%d, 7, v24" % vHF)
    e("v_lshl_add_u32 v%d, v22, 4, v24" % vKB0)
    e("v_xor_b32 v%d, 16, v%d" % (vKB1, vKB0))
    e("v_bfe_u32 v24, v0, 2, 2")
    e("v_mul_u32_u24 v24, %d, v24" % (2 * PIECE))
    e("v_lshl_add_u32 v24, v%d, 8, v24" % vHF)
    e("v_bfe_u32 v25, v0, 4, 1")
    e("v_lshlrev_b32 v25, 5, v25")
    e("v_lshl_add_u32 v25, v20, 3, v25")
    e("v_lshlrev_b32 v26, 4, v%d" % vHF)
    e("v_xor_b32 v25, v25, v26")
    e("v_add_u32 v%d, v24, v25" % vVB)
    e("v_mov_b32 v%d, 0xff800000" % vNINF)
    e("s_mov_b32 s%d, 0" % sG)
    e("s_mov_b32 s%d, 0x%08x" % (sC, 0x3e02950d))
    g.L[-1] = "    s_mov_b32 s%d, 0x%08x" % (sC, f2u((128 ** -0.5) * 1.4426950408889634))
    e("s_waitcnt lgkmcnt(0)")
    srd(sO, 12)
    g.lab("L_cround")
    e("s_mov_b32 s%d, s%d" % (sO + 2, sEND))
    e("s_lshl_b32 s%d, s%d, 5" % (sT0, sW))
    e("s_add_u32 s%d, s%d, s%d" % (sT0, sT0, sQ0))
    e("v_add_u32 v%d, s%d, v%d" % (vOOF, sT0, vROW))
    e("v_lshlrev_b32 v%d, 12, v%d" % (vOOF, vOOF))
    e("v_lshl_add_u32 v%d, v%d, 4, v%d" % (vOOF, vHF, vOOF))
    e("s_sub_u32 s%d, s%d, 1" % (sT0, sN))
    e("s_lshl_b32 s%d, s%d, 5" % (sT0, sT0))
    e("s_sub_u32 s%d, s%d, s%d" % (sT0, sL, sT0))
    e("v_sub_u32 v%d, s%d, v%d" % (vTMP, sT0, vHF))
    for rr in range(16):
        kc = 8 * (rr % 4) + 4 * (rr // 8) + 2 * ((rr // 4) % 2)
        e("v_cmp_lt_i32 %s, %d, v%d" % (sr(sMASK + 2 * rr, 2), kc, vTMP))
    for i in range(64): e("v_mov_b32 v%d, 0" % (O + i))
    for i in range(16): e("v_mov_b32 v%d, 0" % (NEGM + i))
    e("v_mov_b32 v%d, 0" % vL)
    e("s_mul_i32 s%d, s%d, %d" % (sGOFF, sG, GRP))
    e("s_add_u32 s%d, s%d, %d" % (sT0, sGOFF, PAIR))
    e("s_add_u32 s%d, s%d, 1" % (sG, sG))
    e("s_and_b32 s%d, s%d, 3" % (sG, sG))
    e("s_mul_i32 s%d, s%d, %d" % (sGOFF, sG, GRP))
    e("s_cmp_lt_u32 s%d, 2" % sW)
    e("s_cselect_b32 s%d, s%d, s%d" % (sT0, sT0, sGOFF))
    e("s_and_b32 s%d, s%d, 1" % (sT1, sW))
    e("s_mul_i32 s%d, s%d, %d" % (sT1, sT1, BLK))
    e("s_add_u32 s%d, s%d, s%d" % (sT0, sT0, sT1))
    e("v_add_u32 v%d, s%d, v%d" % (vKA0, sT0, vKB0))
    e("v_add_u32 v%d, s%d, v%d" % (vKA1, sT0, vKB1))
    def kread(dst, s_, off):
        return "ds_read_b128 %s, v%d offset:%d" % (vr(dst + 4 * s_, 4), vKA1 if s_ & 1 else vKA0, off + (s_ >> 1) * 32)
    g.stamp()
    e("s_barrier")
    e("s_cmp_lt_u32 s%d, 2" % sW)
    e("s_cbranch_scc0 L_q1")
    for s_ in range(8): e(kread(Q, s_, 0))
    e("s_waitcnt lgkmcnt(0)")
    e("s_barrier")
    e("s_branch L_q2")
    g.lab("L_q1")
    e("s_barrier")
    for s_ in range(8): e(kread(Q, s_, 0))
    e("s_waitcnt lgkmcnt(0)")
    g.lab("L_q2")
    g.stamp()
    e("v_add_u32 v%d, s%d, v%d" % (vKA0, sGOFF, vKB0))
    e("v_add_u32 v%d, s%d, v%d" % (vKA1, sGOFF, vKB1))
    if o["qscale"]:
        for i in range(32):
            t = 20 + 2 * (i % 4)
            e("v_lshlrev_b32 v%d, 16, v%d" % (t, Q + i))
            e("v_and_b32 v%d, 0xffff0000, v%d" % (t + 1, Q + i))
            e("v_mul_f32 v%d, s%d, v%d" % (t, sC, t))
            e("v_mul_f32 v%d, s%d, v%d" % (t + 1, sC, t + 1))
            e("v_cvt_pk_bf16_f32 v%d, v%d, v%d" % (Q + i, t, t + 1))
    e("s_barrier")
    g.stamp()
    for s_ in range(8): e(kread(KF, s_, PAIR))
    e("s_add_u32 s%d, s%d, 1" % (sG, sG))
    e("s_and_b32 s%d, s%d, 3" % (sG, sG))
    e("s_mul_i32 s%d, s%d, %d" % (sGOFF, sG, GRP))
    def qk(s_, buf):
        c = NEGM if s_ == 0 else S[buf]
        return "v_mfma_f32_32x32x16_bf16 %s, %s, %s, %s" % (vr(S[buf], 16), vr(KF + 4 * s_, 4), vr(Q + 4 * s_, 4), vr(c, 16))
    base_lg = 1 if ts else 0
    for s_ in range(8):
        e("s_waitcnt lgkmcnt(7)" if not ts else "s_waitcnt lgkmcnt(0)")
        e(qk(s_, 0))
        e(kread(KF, s_, PAIR + BLK))
    e("v_add_u32 v%d, s%d, v%d" % (vKA0, sGOFF, vKB0))
    e("v_add_u32 v%d, s%d, v%d" % (vKA1, sGOFF, vKB1))
    e("v_add_u32 v%d, s%d, v%d" % (vVA, sGOFF, vVB))
    e("s_sub_u32 s%d, s%d, 3" % (sCNT, sN))
    e("s_mov_b32 s%d, 0" % sSTG)
    e("s_nop 7")
    s0 = S[0]
    e("v_max3_f32 v%d, v%d, v%d, v%d" % (vTMP, s0, s0 + 1, s0 + 2))
    e("v_max3_f32 v%d, v%d, v%d, v%d" % (vTMP2, s0 + 3, s0 + 4, s0 + 5))
    for i in range(6, 14, 4):
        e("v_max3_f32 v%d, v%d, v%d, v%d" % (vTMP, vTMP, s0 + i, s0 + i + 1))
        e("v_max3_f32 v%d, v%d, v%d, v%d" % (vTMP2, vTMP2, s0 + i + 2, s0 + i + 3))
    e("v_max3_f32 v%d, v%d, v%d, v%d" % (vTMP, vTMP, s0 + 14, s0 + 15))
    e("v_max_f32 v%d, v%d, v%d" % (vTMP, vTMP, vTMP2))
    e("v_mov_b32 v%d, v%d" % (vTMP2, vTMP))
    e("s_nop 1")
    e("v_permlane32_swap_b32 v%d, v%d" % (vTMP, vTMP2))
    e("v_max_f32 v%d, v%d, v%d" % (vTMP, vTMP, vTMP2))
    for i in range(16): e("v_sub_f32 v%d, v%d, v%d" % (s0 + i, s0 + i, vTMP))
    for i in range(16): e("v_sub_f32 v%d, 0, v%d" % (NEGM + i, vTMP))
    def X(buf, i):
        r = S[buf] + i
        if o["qscale"]: return ["v_exp_f32 v%d, v%d" % (r, r)]
        return ["v_mul_f32 v%d, s%d, v%d" % (r, sC, r), "v_exp_f32 v%d, v%d" % (r, r)]
    def C(buf, j): return ["v_cvt_pk_bf16_f32 v%d, v%d, v%d" % (P + j, S[buf] + 2 * j, S[buf] + 2 * j + 1)]
    def T(buf, i):
        if i == 1: return ["v_add_f32 v%d, v%d, v%d" % (vT, S[buf], S[buf] + 1)]
        return ["v_add_f32 v%d, v%d, v%d" % (vT, vT, S[buf] + i)]
    def A(buf, i): return ["v_add_f32 v%d, v%d, v%d" % (vL, vL, S[buf] + i)]
    for i in range(8):
        for x in X(0, i): e(x)
    e("s_nop 0")
    for j in range(4): e(C(0, j)[0])
    for i in range(1, 8): e(T(0, i)[0])
    if ts == 2: g.stamp_issue()
    else: g.stamp()
    def V(n, off):
        ks, db, sec = n >> 3, (n >> 1) & 3, n & 1
        return ["ds_read_b64_tr_b16 %s, v%d offset:%d" % (vr(VF + ks * 16 + db * 4 + sec * 2, 2), vVA, off + ks * PIECE + sec * 512 + db * 64)]
    def pv(n):
        ks, db = n >> 2, n & 3
        return "v_mfma_f32_32x32x16_bf16 %s, %s, %s, %s" % (vr(O + 16 * db, 16), vr(VF + ks * 16 + db * 4, 4), vr(P + 4 * ks, 4), vr(O + 16 * db, 16))
    e("s_nop 0")
    g.L.append(".p2align 6")
    for h in range(2):
        cur, nxt = h, 1 - h
        off = h * PAIR
        K_ = lambda s_: [kread(KF, s_, off + BLK)]
        V_ = lambda n: V(n, off)
        gaps = [
            ["s_barrier"] + V_(0) + V_(1) + V_(2) + V_(3) + ["v_add_f32 v%d, v%d, v%d" % (vL, vL, vT)],
            V_(4) + V_(5) + X(cur, 8) + X(cur, 9),
            V_(6) + V_(7) + X(cur, 10) + X(cur, 11),
            V_(8) + V_(9) + X(cur, 12) + C(cur, 4) + A(cur, 8),
            V_(10) + V_(11) + X(cur, 13) + C(cur, 5) + A(cur, 9),
            V_(12) + V_(13) + X(cur, 14) + A(cur, 10) + A(cur, 11),
            V_(14) + V_(15) + X(cur, 15) + A(cur, 12) + C(cur, 6),
            A(cur, 13) + A(cur, 14) + C(cur, 7) + A(cur, 15) + ["s_waitcnt lgkmcnt(8)"],
            K_(0) + K_(1) + K_(2) + K_(3),
            K_(4) + K_(5) + K_(6) + K_(7),
            X(nxt, 0) + X(nxt, 1) + X(nxt, 2),
            X(nxt, 3) + T(nxt, 1) + C(nxt, 0) + T(nxt, 2) + ["s_waitcnt lgkmcnt(8)"],
            X(nxt, 4) + X(nxt, 5) + C(nxt, 1) + T(nxt, 3),
            X(nxt, 6) + X(nxt, 7) + T(nxt, 4) + T(nxt, 5),
            C(nxt, 2) + C(nxt, 3) + T(nxt, 6) + T(nxt, 7),
            [],
        ]
        if h == 1:
            gaps[8] += ["s_add_u32 s%d, s%d, 1" % (sG, sG), "s_and_b32 s%d, s%d, 3" % (sG, sG)]
            gaps[9] += ["s_mul_i32 s%d, s%d, %d" % (sGOFF, sG, GRP)]
            gaps[14] += ["v_add_u32 v%d, s%d, v%d" % (vVA, sGOFF, vVB)]
            gaps[15] += ["v_add_u32 v%d, s%d, v%d" % (vKA0, sGOFF, vKB0), "v_add_u32 v%d, s%d, v%d" % (vKA1, sGOFF, vKB1)]
        gaps[15] += ["s_sub_u32 s%d, s%d, 1" % (sCNT, sCNT), "s_cbranch_scc1 L_ev%d" % h]
        if h == 1: gaps[15] += ["s_branch L_h0"]
        g.lab("L_h%d" % h)
        e("s_waitcnt lgkmcnt(0)")
        if ts == 2: g.stamp_write()
        for n in range(16):
            m = qk(n, nxt) if n < 8 else pv(n - 8)
            gl = list(gaps[n])
            if o["noK"]: gl = [x for x in gl if not x.startswith("ds_read_b128")]
            if o["noV"]: gl = [x for x in gl if not x.startswith("ds_read_b64")]
            if o["noX"]: gl = [x for x in gl if not (x.startswith("v_exp") or x.startswith("v_cvt"))]
            if o["noA"]: gl = [x for x in gl if not x.startswith("v_add_f32")]
            if o["noM"]: pass
            elif o["mf16"]:
                if n < 8:
                    a0, a1 = KF + 4 * n, KF + 4 * (n ^ 1); b0 = Q + 4 * n
                    d0 = S[nxt] + 8 * (n & 1); d1 = d0 + 4
                    c0 = NEGM if n < 2 else d0; c1 = NEGM if n < 2 else d1
                else:
                    k = n - 8
                    a0 = VF + 4 * k; a1 = VF + 4 * (k ^ 1); b0 = P + 4 * (k >> 2)
                    d0 = O + 8 * k; d1 = d0 + 4; c0, c1 = d0, d1
                e("v_mfma_f32_16x16x32_bf16 %s, %s, %s, %s" % (vr(d0, 4), vr(a0, 4), vr(b0, 4), vr(c0, 4)))
                hl = len(gl) // 2
                for x in gl[:hl]: e(x)
                e("v_mfma_f32_16x16x32_bf16 %s, %s, %s, %s" % (vr(d1, 4), vr(a1, 4), vr(b0, 4), vr(c1, 4)))
                gl = gl[hl:]
            else: e(m)
            if ts == 2 and n == 13: g.stamp_issue()
            for x in gl: e(x)
    for h in range(2):
        g.lab("L_ev%d" % h)
        e("s_cmp_lg_u32 s%d, 0" % sSTG)
        e("s_cbranch_scc1 L_epi")
        e("s_mov_b32 s%d, 1" % sSTG)
        e("s_mov_b32 s%d, 1" % sCNT)
        for rr in range(16):
            e("v_cndmask_b32 v%d, v%d, v%d, %s" % (NEGM + rr, vNINF, NEGM + rr, sr(sMASK + 2 * rr, 2)))
        e("s_branch L_h%d" % (1 - h))
    g.lab("L_epi")
    g.stamp()
    e("v_mov_b32 v%d, v%d" % (vTMP, vL))
    e("s_nop 1")
    e("v_permlane32_swap_b32 v%d, v%d" % (vTMP, vL))
    e("v_add_f32 v%d, v%d, v%d" % (vL, vL, vTMP))
    e("v_rcp_f32 v%d, v%d" % (vRI, vL))
    e("s_nop 7")
    for db in range(4):
        ob = O + 16 * db
        for k in range(8):
            e("v_pk_mul_f32 %s, %s, %s op_sel_hi:[1,0]" % (vr(ob + 2 * k, 2), vr(ob + 2 * k, 2), vr(vRI, 2)))
        w = VF + 8 * db
        for k in range(8):
            e("v_cvt_pk_bf16_f32 v%d, v%d, v%d" % (w + k, ob + 2 * k, ob + 2 * k + 1))
        e("s_nop 0")
        for pr in range(2):
            e("v_permlane32_swap_b32 v%d, v%d" % (w + 4 * pr, w + 4 * pr + 2))
            e("v_permlane32_swap_b32 v%d, v%d" % (w + 4 * pr + 1, w + 4 * pr + 3))
        for pr in range(2):
            e("buffer_store_dwordx4 %s, v%d, %s, 0 offen offset:%d" % (vr(w + 4 * pr, 4), vOOF, sr(sO, 4), db * 64 + pr * 32))
    e("s_cmp_eq_u32 s%d, 0" % sR1)
    e("s_cbranch_scc1 L_cdone")
    e("s_bitcmp1_b32 s%d, 0" % sN)
    e("s_cbranch_scc1 L_cnodummy")
    e("s_waitcnt lgkmcnt(0)")
    e("s_barrier")
    g.lab("L_cnodummy")
    shift_round(); decode_round()
    e("s_waitcnt lgkmcnt(0)")
    e("s_branch L_cround")
    g.lab("L_cdone")
    if ts:
        g.stamp()
        e("s_waitcnt vmcnt(0)")
        g.stamp()
        g.lab("L_tsout")
        e("s_lshl_b32 s%d, s2, 3" % sT0)
        e("s_add_u32 s%d, s%d, s%d" % (sT0, sT0, sW))
        e("s_lshl_b32 s%d, s%d, 9" % (sT0, sT0))
        e("s_add_u32 s16, s16, s%d" % sT0)
        e("s_addc_u32 s17, s17, 0")
        e("v_lshlrev_b32 v1, 3, v0")
        e("global_store_dwordx2 v1, v[30:31], s[16:17]")
    g.lab("L_end")
    e("s_endpgm")
    g.L.append(""".section .rodata,"a"
.p2align 6
.amdhsa_kernel %s
  .amdhsa_next_free_vgpr 256
  .amdhsa_next_free_sgpr 102
  .amdhsa_accum_offset 256
  .amdhsa_group_segment_fixed_size 0
  .amdhsa_kernarg_size 56
  .amdhsa_user_sgpr_count 2
  .amdhsa_user_sgpr_kernarg_segment_ptr 1
  .amdhsa_system_sgpr_workgroup_id_x 1
.end_amdhsa_kernel""" % KN)
    return "\n".join(g.L) + "\n"

import struct
def f2u(x): return struct.unpack("<I", struct.pack("<f", x))[0]

if __name__ == "__main__":
    out = sys.argv[1]
    opts = {}
    for a in sys.argv[2:]:
        k, v = a.split("="); opts[k] = v if "," in v else int(v)
    open(out, "w").write(gen(**opts))
```

```python
import sys, json

KN = "standalone__ragged_sequences_packed_sequences__ragged_kernel"
PIECE, BLK, PAIR, GRP = 1056, 8448, 16896, 33792
RING = 8 * PAIR

SEGS = [(0, 370), (370, 108), (478, 143), (621, 363), (984, 165), (1149, 432), (1581, 100), (1681, 465)]
def pk(seg, c):
    k0, L = SEGS[seg]
    return k0 | (L << 12) | (c << 21)

DEF = dict(qscale=1, ts=0, prio=1, mapmode=0, name="k", noK=0, noV=0, noX=0, noA=0, mf16=0, noM=0, ramp="3,3,3", ntq=0, ntkv=0, diag=-1, diagwg=16, diagwave=4)

class G:
    def __init__(s, **o):
        s.o = dict(DEF); s.o.update(o); s.L = []; s.nts = 0
    def e(s, x): s.L.append("    " + x)
    def lab(s, x): s.L.append(x + ":")
    def c(s, x): s.L.append("    ; " + x)
    def stamp_issue(s):
        if s.o["ts"]:
            s.e("s_memtime s[52:53]"); s.e("s_memrealtime s[54:55]")
    def stamp_write(s):
        if s.o["ts"]:
            s.e("s_mov_b32 m0, s56"); s.e("s_add_u32 s56, s56, 1"); s.e("v_writelane_b32 v30, s52, m0"); s.e("v_writelane_b32 v31, s54, m0")
    def stamp(s):
        if s.o["ts"]:
            s.stamp_issue(); s.e("s_waitcnt lgkmcnt(0)"); s.stamp_write()

O = 192; S = [160, 176]; NEGM = 144; Q = 112; KF = 80; VF = 48; P = 40
vKA0, vKA1, vVA = 1, 2, 3
vKB0, vVB = 4, 5
vKB1 = 6
vL, vT, vNINF, vROW, vHF, vOOF, vTMP, vTMP2, vRI = 7, 8, 9, 10, 11, 12, 13, 14, 16
sQ, sK, sV, sO = 20, 24, 28, 32
sW, sH = 18, 19
sR0, sR1, sR2 = 36, 37, 38
sK0, sL, sQ0, sN, sEND = 39, 40, 41, 42, 43
sG, sGOFF, sCNT, sSTG, sT0, sT1, sC = 44, 45, 46, 47, 48, 49, 50
sLDS, sLEAD, sSA, sSB, sI = 44, 45, 46, 47, 51
sMASK = 64

def vr(b, n=1): return "v%d" % b if n == 1 else "v[%d:%d]" % (b, b + n - 1)
def sr(b, n=1): return "s%d" % b if n == 1 else "s[%d:%d]" % (b, b + n - 1)

def gen(**opts):
    g = G(**opts); o = g.o; e = g.e
    ts = o["ts"]
    hdr = """; ragged (block-diagonal) attention, T=2146 H=16 D=128 bf16 -- generated by my gen.py
; kernarg: q,k,v,seg_ids,out,debug,ws
; @launch grid=(256,1,1) block=(512,1,1) lds=%d
.amdgcn_target "amdgcn-amd-amdhsa--gfx950"
.text
.globl %s
.p2align 8
.type %s,@function
%s:""" % (RING, KN, KN, KN)
    g.L.append(hdr)
    if ts:
        e("s_mov_b32 s56, 0"); e("v_mov_b32 v30, 0"); e("v_mov_b32 v31, 0"); g.stamp()
    e("s_cmp_ge_u32 s2, 256")
    e("s_cbranch_scc1 L_end")
    e("s_load_dwordx8 s[4:11], s[0:1], 0")
    e("s_load_dwordx4 s[12:15], s[0:1], 32")
    if ts: e("s_load_dwordx2 s[16:17], s[0:1], 48")
    e("v_lshrrev_b32 v1, 6, v0")
    e("v_and_b32 v0, 63, v0")
    e("v_readfirstlane_b32 s%d, v1" % sW)
    if o["mapmode"] == 0:
        e("s_and_b32 s%d, s2, 7" % sH)
        e("s_lshr_b32 s3, s2, 3")
        e("s_and_b32 s%d, s3, 1" % sT0)
        e("s_lshl_b32 s%d, s%d, 1" % (sH, sH))
        e("s_add_u32 s%d, s%d, s%d" % (sH, sH, sT0))
        e("s_lshr_b32 s3, s3, 1")
    elif o["mapmode"] == 2:
        e("s_and_b32 s%d, s2, 7" % sH)
        e("s_lshr_b32 s3, s2, 3")
        e("s_and_b32 s%d, s3, 1" % sT0)
        e("s_lshl_b32 s%d, s%d, 1" % (sH, sH))
        e("s_add_u32 s%d, s%d, s%d" % (sH, sH, sT0))
        e("s_lshr_b32 s3, s3, 1")
        e("s_mov_b32 s%d, 12" % sT0)
        e("s_cmp_lt_u32 s3, 13"); e("s_cselect_b32 s%d, 8, s%d" % (sT0, sT0))
        e("s_cmp_lt_u32 s3, 10"); e("s_cselect_b32 s%d, 4, s%d" % (sT0, sT0))
        e("s_cmp_lt_u32 s3, 6"); e("s_cselect_b32 s%d, 0, s%d" % (sT0, sT0))
        e("s_cmp_lt_u32 s3, 2"); e("s_cselect_b32 s%d, 2, s%d" % (sT0, sT0))
        e("s_add_u32 s%d, s%d, s%d" % (sH, sH, sT0))
        e("s_and_b32 s%d, s%d, 15" % (sH, sH))
    else:
        e("s_and_b32 s%d, s2, 15" % sH)
        e("s_lshr_b32 s3, s2, 4")
    e("s_lshl_b32 s%d, s%d, 8" % (sH, sH))
    e("s_mov_b32 s%d, 0x%x" % (sR0, pk(3, 0) - (13 << 21) & 0xffffffff))
    e("s_cmp_lt_u32 s3, 13")
    e("s_cselect_b32 s%d, 0x%x, s%d" % (sR0, pk(0, 0) - (10 << 21) & 0xffffffff, sR0))
    e("s_cmp_lt_u32 s3, 10")
    e("s_cselect_b32 s%d, 0x%x, s%d" % (sR0, pk(5, 0) - (6 << 21) & 0xffffffff, sR0))
    e("s_cmp_lt_u32 s3, 6")
    e("s_cselect_b32 s%d, 0x%x, s%d" % (sR0, pk(7, 0) - (2 << 21) & 0xffffffff, sR0))
    e("s_cmp_lt_u32 s3, 2")
    e("s_cselect_b32 s%d, 0x%x, s%d" % (sR0, pk(4, 0), sR0))
    e("s_cselect_b32 s%d, 0x%x, 0" % (sR1, pk(2, 1)))
    e("s_cselect_b32 s%d, 0x%x, 0" % (sR2, pk(1, 0)))
    e("s_lshl_b32 s%d, s3, 21" % sT0)
    e("s_add_u32 s%d, s%d, s%d" % (sR0, sR0, sT0))
    e("s_cmp_eq_u32 s3, 1")
    e("s_cselect_b32 s%d, 0x%x, s%d" % (sR1, pk(2, 0), sR1))
    e("s_cselect_b32 s%d, 0x%x, s%d" % (sR2, pk(6, 0), sR2))

    def decode_round():
        e("s_and_b32 s%d, s%d, 0xfff" % (sK0, sR0))
        e("s_bfe_u32 s%d, s%d, 0x9000c" % (sL, sR0))
        e("s_lshr_b32 s%d, s%d, 21" % (sQ0, sR0))
        e("s_lshl_b32 s%d, s%d, 7" % (sQ0, sQ0))
        e("s_add_u32 s%d, s%d, s%d" % (sQ0, sQ0, sK0))
        e("s_add_u32 s%d, s%d, 31" % (sN, sL))
        e("s_lshr_b32 s%d, s%d, 5" % (sN, sN))
        e("s_add_u32 s%d, s%d, s%d" % (sEND, sK0, sL))
        e("s_lshl_b32 s%d, s%d, 12" % (sEND, sEND))
        e("s_sub_u32 s%d, s%d, 3840" % (sEND, sEND))
    def shift_round():
        e("s_mov_b32 s%d, s%d" % (sR0, sR1))
        e("s_mov_b32 s%d, s%d" % (sR1, sR2))
        e("s_mov_b32 s%d, 0" % sR2)
    def srd(d, p):
        e("s_add_u32 s%d, s%d, s%d" % (d, p, sH))
        e("s_addc_u32 s%d, s%d, 0" % (d + 1, p + 1))
        e("s_mov_b32 s%d, 0x20000" % (d + 3))

    decode_round()
    e("s_cmp_lt_u32 s%d, 4" % sW)
    e("s_cbranch_scc1 L_cons")
    if o["prio"]: e("s_setprio 3")
    e("v_lshrrev_b32 v2, 4, v0")
    e("v_and_b32 v3, 1, v2")
    e("v_and_b32 v4, 15, v0")
    e("v_xor_b32 v4, v4, v3")
    e("v_lshlrev_b32 v4, 4, v4")
    e("v_lshl_add_u32 v1, v2, 12, v4")
    e("s_sub_u32 s%d, s%d, 4" % (sT0, sW))
    e("s_lshl_b32 s%d, s%d, 15" % (sT1, sT0))
    e("v_add_u32 v1, s%d, v1" % sT1)
    e("v_add_u32 v2, %d, v1" % (16384 - PIECE))
    e("s_mul_i32 s%d, s%d, %d" % (sC, sT0, 2 * PIECE))
    e("s_add_u32 s%d, s%d, %d" % (sLDS, sC, PAIR))
    e("s_add_u32 s%d, s%d, %d" % (sI, sC, RING))
    e("s_mov_b32 s%d, 0" % sLEAD)
    e("s_waitcnt lgkmcnt(0)")
    g.stamp()
    srd(sQ, 4); srd(sK, 6); srd(sV, 8)
    def pre():
        e("s_waitcnt vmcnt(24)")
        g.stamp()
        e("s_barrier")
    def issue(a, b):
        fa = " nt" if (o["ntq"] if a == sQ else o["ntkv"]) else ""
        fb = " nt" if (o["ntq"] if b == sQ else o["ntkv"]) else ""
        e("s_mov_b32 m0, s%d" % sLDS)
        e("s_add_u32 s%d, s%d, %d" % (sT0, sLDS, BLK))
        e("buffer_load_dwordx4 v1, %s, s%d offen%s lds" % (sr(a, 4), sSA, fa))
        e("buffer_load_dwordx4 v2, %s, s%d offen offset:%d%s lds" % (sr(a, 4), sSA, PIECE, fa))
        e("s_mov_b32 m0, s%d" % sT0)
        e("s_add_u32 s%d, s%d, %d" % (sLDS, sLDS, PAIR))
        e("buffer_load_dwordx4 v1, %s, s%d offen%s lds" % (sr(b, 4), sSB, fb))
        e("buffer_load_dwordx4 v2, %s, s%d offen offset:%d%s lds" % (sr(b, 4), sSB, PIECE, fb))
        e("s_cmp_eq_u32 s%d, s%d" % (sLDS, sI))
        e("s_cselect_b32 s%d, s%d, s%d" % (sLDS, sC, sLDS))
    def entry(k):
        if k == 0:
            for x in (sQ, sK, sV): e("s_mov_b32 s%d, s%d" % (x + 2, sEND))
            e("s_lshl_b32 s%d, s%d, 12" % (sSA, sQ0))
            e("s_add_u32 s%d, s%d, %d" % (sSB, sSA, 32 * 4096))
            issue(sQ, sQ)
        elif k == 1:
            e("s_add_u32 s%d, s%d, %d" % (sSA, sSA, 64 * 4096))
            e("s_add_u32 s%d, s%d, %d" % (sSB, sSB, 64 * 4096))
            issue(sQ, sQ)
        elif k == 2:
            e("s_lshl_b32 s%d, s%d, 12" % (sSA, sK0))
            e("s_add_u32 s%d, s%d, %d" % (sSB, sSA, 32 * 4096))
            issue(sK, sK)
            e("s_add_u32 s%d, s%d, %d" % (sSB, sSA, 64 * 4096))
        else:
            issue(sV, sK)
            e("s_add_u32 s%d, s%d, %d" % (sSA, sSA, 32 * 4096))
            e("s_add_u32 s%d, s%d, %d" % (sSB, sSB, 32 * 4096))
    ramp = [int(x) for x in o["ramp"].split(",")]
    issued = 0
    for n, k in enumerate(ramp):
        if n > 0:
            e("s_waitcnt vmcnt(%d)" % (4 * (issued - n)))
            g.stamp()
            e("s_barrier")
        for _ in range(k):
            entry(issued); issued += 1
    nb = len(ramp) - 1
    assert issued - nb == 7 and issued <= 9 and issued >= 3, (issued, nb)
    if o["prio"]: e("s_setprio 0")
    e("s_sub_u32 s%d, s%d, %d" % (sT1, sN, issued - 3))
    e("s_cmp_eq_u32 s%d, 0" % sT1)
    e("s_cbranch_scc1 L_ptend")
    g.lab("L_ptile")
    pre(); entry(3)
    e("s_sub_u32 s%d, s%d, 1" % (sT1, sT1))
    e("s_cmp_lg_u32 s%d, 0" % sT1)
    e("s_cbranch_scc1 L_ptile")
    g.lab("L_ptend")
    e("s_cmp_eq_u32 s%d, 0" % sR1)
    e("s_cbranch_scc1 L_pdrain")
    e("s_bitcmp1_b32 s%d, 0" % sN)
    e("s_cbranch_scc1 L_pnodummy")
    pre(); issue(sV, sK)
    g.lab("L_pnodummy")
    shift_round(); decode_round()
    for k in range(3):
        pre(); entry(k)
    e("s_mov_b32 s%d, s%d" % (sT1, sN))
    e("s_branch L_ptile")
    g.lab("L_pdrain")
    for n in range(24, -1, -4):
        e("s_waitcnt vmcnt(%d)" % n)
        g.stamp()
        e("s_barrier")
    g.stamp()
    if ts:
        e("s_branch L_tsout")
    else:
        e("s_endpgm")

    g.lab("L_cons")
    if o["prio"]: e("s_setprio 1")
    e("v_lshrrev_b32 v%d, 5, v0" % vHF)
    e("v_and_b32 v20, 3, v0")
    e("v_bfe_u32 v21, v0, 4, 1")
    e("v_lshl_add_u32 v21, v20, 1, v21")
    e("v_bfe_u32 v22, v0, 2, 1")
    e("v_bfe_u32 v23, v0, 3, 1")
    e("v_lshl_add_u32 v23, v23, 1, v22")
    e("v_lshl_add_u32 v%d, v21, 2, v23" % vROW)
    e("v_mul_u32_u24 v24, %d, v21" % PIECE)
    e("v_lshl_add_u32 v24, v23, 8, v24")
    e("v_lshl_add_u32 v24, v%d, 7, v24" % vHF)
    e("v_lshl_add_u32 v%d, v22, 4, v24" % vKB0)
    e("v_xor_b32 v%d, 16, v%d" % (vKB1, vKB0))
    e("v_bfe_u32 v24, v0, 2, 2")
    e("v_mul_u32_u24 v24, %d, v24" % (2 * PIECE))
    e("v_lshl_add_u32 v24, v%d, 8, v24" % vHF)
    e("v_bfe_u32 v25, v0, 4, 1")
    e("v_lshlrev_b32 v25, 5, v25")
    e("v_lshl_add_u32 v25, v20, 3, v25")
    e("v_lshlrev_b32 v26, 4, v%d" % vHF)
    e("v_xor_b32 v25, v25, v26")
    e("v_add_u32 v%d, v24, v25" % vVB)
    e("v_mov_b32 v%d, 0xff800000" % vNINF)
    e("s_mov_b32 s%d, 0" % sG)
    e("s_mov_b32 s%d, 0x%08x" % (sC, 0x3e02950d))
    g.L[-1] = "    s_mov_b32 s%d, 0x%08x" % (sC, f2u((128 ** -0.5) * 1.4426950408889634))
    e("s_waitcnt lgkmcnt(0)")
    srd(sO, 12)
    g.lab("L_cround")
    e("s_mov_b32 s%d, s%d" % (sO + 2, sEND))
    e("s_lshl_b32 s%d, s%d, 5" % (sT0, sW))
    e("s_add_u32 s%d, s%d, s%d" % (sT0, sT0, sQ0))
    e("v_add_u32 v%d, s%d, v%d" % (vOOF, sT0, vROW))
    e("v_lshlrev_b32 v%d, 12, v%d" % (vOOF, vOOF))
    e("v_lshl_add_u32 v%d, v%d, 4, v%d" % (vOOF, vHF, vOOF))
    e("s_sub_u32 s%d, s%d, 1" % (sT0, sN))
    e("s_lshl_b32 s%d, s%d, 5" % (sT0, sT0))
    e("s_sub_u32 s%d, s%d, s%d" % (sT0, sL, sT0))
    e("v_sub_u32 v%d, s%d, v%d" % (vTMP, sT0, vHF))
    for rr in range(16):
        kc = 8 * (rr % 4) + 4 * (rr // 8) + 2 * ((rr // 4) % 2)
        e("v_cmp_lt_i32 %s, %d, v%d" % (sr(sMASK + 2 * rr, 2), kc, vTMP))
    for i in range(64): e("v_mov_b32 v%d, 0" % (O + i))
    for i in range(16): e("v_mov_b32 v%d, 0" % (NEGM + i))
    e("v_mov_b32 v%d, 0" % vL)
    e("s_mul_i32 s%d, s%d, %d" % (sGOFF, sG, GRP))
    e("s_add_u32 s%d, s%d, %d" % (sT0, sGOFF, PAIR))
    e("s_add_u32 s%d, s%d, 1" % (sG, sG))
    e("s_and_b32 s%d, s%d, 3" % (sG, sG))
    e("s_mul_i32 s%d, s%d, %d" % (sGOFF, sG, GRP))
    e("s_cmp_lt_u32 s%d, 2" % sW)
    e("s_cselect_b32 s%d, s%d, s%d" % (sT0, sT0, sGOFF))
    e("s_and_b32 s%d, s%d, 1" % (sT1, sW))
    e("s_mul_i32 s%d, s%d, %d" % (sT1, sT1, BLK))
    e("s_add_u32 s%d, s%d, s%d" % (sT0, sT0, sT1))
    e("v_add_u32 v%d, s%d, v%d" % (vKA0, sT0, vKB0))
    e("v_add_u32 v%d, s%d, v%d" % (vKA1, sT0, vKB1))
    def kread(dst, s_, off):
        return "ds_read_b128 %s, v%d offset:%d" % (vr(dst + 4 * s_, 4), vKA1 if s_ & 1 else vKA0, off + (s_ >> 1) * 32)
    g.stamp()
    e("s_barrier")
    e("s_cmp_lt_u32 s%d, 2" % sW)
    e("s_cbranch_scc0 L_q1")
    for s_ in range(8): e(kread(Q, s_, 0))
    e("s_waitcnt lgkmcnt(0)")
    e("s_barrier")
    e("s_branch L_q2")
    g.lab("L_q1")
    e("s_barrier")
    for s_ in range(8): e(kread(Q, s_, 0))
    e("s_waitcnt lgkmcnt(0)")
    g.lab("L_q2")
    g.stamp()
    e("v_add_u32 v%d, s%d, v%d" % (vKA0, sGOFF, vKB0))
    e("v_add_u32 v%d, s%d, v%d" % (vKA1, sGOFF, vKB1))
    if o["qscale"]:
        for i in range(32):
            t = 20 + 2 * (i % 4)
            e("v_lshlrev_b32 v%d, 16, v%d" % (t, Q + i))
            e("v_and_b32 v%d, 0xffff0000, v%d" % (t + 1, Q + i))
            e("v_mul_f32 v%d, s%d, v%d" % (t, sC, t))
            e("v_mul_f32 v%d, s%d, v%d" % (t + 1, sC, t + 1))
            e("v_cvt_pk_bf16_f32 v%d, v%d, v%d" % (Q + i, t, t + 1))
    e("s_barrier")
    g.stamp()
    for s_ in range(8): e(kread(KF, s_, PAIR))
    e("s_add_u32 s%d, s%d, 1" % (sG, sG))
    e("s_and_b32 s%d, s%d, 3" % (sG, sG))
    e("s_mul_i32 s%d, s%d, %d" % (sGOFF, sG, GRP))
    def qk(s_, buf):
        c = NEGM if s_ == 0 else S[buf]
        return "v_mfma_f32_32x32x16_bf16 %s, %s, %s, %s" % (vr(S[buf], 16), vr(KF + 4 * s_, 4), vr(Q + 4 * s_, 4), vr(c, 16))
    base_lg = 1 if ts else 0
    for s_ in range(8):
        e("s_waitcnt lgkmcnt(7)" if not ts else "s_waitcnt lgkmcnt(0)")
        e(qk(s_, 0))
        e(kread(KF, s_, PAIR + BLK))
    e("v_add_u32 v%d, s%d, v%d" % (vKA0, sGOFF, vKB0))
    e("v_add_u32 v%d, s%d, v%d" % (vKA1, sGOFF, vKB1))
    e("v_add_u32 v%d, s%d, v%d" % (vVA, sGOFF, vVB))
    e("s_sub_u32 s%d, s%d, 3" % (sCNT, sN))
    e("s_mov_b32 s%d, 0" % sSTG)
    e("s_nop 7")
    s0 = S[0]
    e("v_max3_f32 v%d, v%d, v%d, v%d" % (vTMP, s0, s0 + 1, s0 + 2))
    e("v_max3_f32 v%d, v%d, v%d, v%d" % (vTMP2, s0 + 3, s0 + 4, s0 + 5))
    for i in range(6, 14, 4):
        e("v_max3_f32 v%d, v%d, v%d, v%d" % (vTMP, vTMP, s0 + i, s0 + i + 1))
        e("v_max3_f32 v%d, v%d, v%d, v%d" % (vTMP2, vTMP2, s0 + i + 2, s0 + i + 3))
    e("v_max3_f32 v%d, v%d, v%d, v%d" % (vTMP, vTMP, s0 + 14, s0 + 15))
    e("v_max_f32 v%d, v%d, v%d" % (vTMP, vTMP, vTMP2))
    e("v_mov_b32 v%d, v%d" % (vTMP2, vTMP))
    e("s_nop 1")
    e("v_permlane32_swap_b32 v%d, v%d" % (vTMP, vTMP2))
    e("v_max_f32 v%d, v%d, v%d" % (vTMP, vTMP, vTMP2))
    for i in range(16): e("v_sub_f32 v%d, v%d, v%d" % (s0 + i, s0 + i, vTMP))
    for i in range(16): e("v_sub_f32 v%d, 0, v%d" % (NEGM + i, vTMP))
    def X(buf, i):
        r = S[buf] + i
        if o["qscale"]: return ["v_exp_f32 v%d, v%d" % (r, r)]
        return ["v_mul_f32 v%d, s%d, v%d" % (r, sC, r), "v_exp_f32 v%d, v%d" % (r, r)]
    def C(buf, j): return ["v_cvt_pk_bf16_f32 v%d, v%d, v%d" % (P + j, S[buf] + 2 * j, S[buf] + 2 * j + 1)]
    def T(buf, i):
        if i == 1: return ["v_add_f32 v%d, v%d, v%d" % (vT, S[buf], S[buf] + 1)]
        return ["v_add_f32 v%d, v%d, v%d" % (vT, vT, S[buf] + i)]
    def A(buf, i): return ["v_add_f32 v%d, v%d, v%d" % (vL, vL, S[buf] + i)]
    for i in range(8):
        for x in X(0, i): e(x)
    e("s_nop 0")
    for j in range(4): e(C(0, j)[0])
    for i in range(1, 8): e(T(0, i)[0])
    if ts == 2: g.stamp_issue()
    else: g.stamp()
    def V(n, off):
        ks, db, sec = n >> 3, (n >> 1) & 3, n & 1
        return ["ds_read_b64_tr_b16 %s, v%d offset:%d" % (vr(VF + ks * 16 + db * 4 + sec * 2, 2), vVA, off + ks * PIECE + sec * 512 + db * 64)]
    def pv(n):
        ks, db = n >> 2, n & 3
        return "v_mfma_f32_32x32x16_bf16 %s, %s, %s, %s" % (vr(O + 16 * db, 16), vr(VF + ks * 16 + db * 4, 4), vr(P + 4 * ks, 4), vr(O + 16 * db, 16))
    e("s_nop 0")
    g.L.append(".p2align 6")
    for h in range(2):
        cur, nxt = h, 1 - h
        off = h * PAIR
        K_ = lambda s_: [kread(KF, s_, off + BLK)]
        V_ = lambda n: V(n, off)
        gaps = [
            ["s_barrier"] + V_(0) + V_(1) + V_(2) + V_(3) + ["v_add_f32 v%d, v%d, v%d" % (vL, vL, vT)],
            V_(4) + V_(5) + X(cur, 8) + X(cur, 9),
            V_(6) + V_(7) + X(cur, 10) + X(cur, 11),
            V_(8) + V_(9) + X(cur, 12) + C(cur, 4) + A(cur, 8),
            V_(10) + V_(11) + X(cur, 13) + C(cur, 5) + A(cur, 9),
            V_(12) + V_(13) + X(cur, 14) + A(cur, 10) + A(cur, 11),
            V_(14) + V_(15) + X(cur, 15) + A(cur, 12) + C(cur, 6),
            A(cur, 13) + A(cur, 14) + C(cur, 7) + A(cur, 15) + ["s_waitcnt lgkmcnt(8)"],
            K_(0) + K_(1) + K_(2) + K_(3),
            K_(4) + K_(5) + K_(6) + K_(7),
            X(nxt, 0) + X(nxt, 1) + X(nxt, 2),
            X(nxt, 3) + T(nxt, 1) + C(nxt, 0) + T(nxt, 2) + ["s_waitcnt lgkmcnt(8)"],
            X(nxt, 4) + X(nxt, 5) + C(nxt, 1) + T(nxt, 3),
            X(nxt, 6) + X(nxt, 7) + T(nxt, 4) + T(nxt, 5),
            C(nxt, 2) + C(nxt, 3) + T(nxt, 6) + T(nxt, 7),
            [],
        ]
        if h == 1:
            gaps[8] += ["s_add_u32 s%d, s%d, 1" % (sG, sG), "s_and_b32 s%d, s%d, 3" % (sG, sG)]
            gaps[9] += ["s_mul_i32 s%d, s%d, %d" % (sGOFF, sG, GRP)]
            gaps[14] += ["v_add_u32 v%d, s%d, v%d" % (vVA, sGOFF, vVB)]
            gaps[15] += ["v_add_u32 v%d, s%d, v%d" % (vKA0, sGOFF, vKB0), "v_add_u32 v%d, s%d, v%d" % (vKA1, sGOFF, vKB1)]
        gaps[15] += ["s_sub_u32 s%d, s%d, 1" % (sCNT, sCNT), "s_cbranch_scc1 L_ev%d" % h]
        if h == 1: gaps[15] += ["s_branch L_h0"]
        g.lab("L_h%d" % h)
        e("s_waitcnt lgkmcnt(0)")
        if ts == 2: g.stamp_write()
        for n in range(16):
            m = qk(n, nxt) if n < 8 else pv(n - 8)
            gl = list(gaps[n])
            if o["noK"]: gl = [x for x in gl if not x.startswith("ds_read_b128")]
            if o["noV"]: gl = [x for x in gl if not x.startswith("ds_read_b64")]
            if o["noX"]: gl = [x for x in gl if not (x.startswith("v_exp") or x.startswith("v_cvt"))]
            if o["noA"]: gl = [x for x in gl if not x.startswith("v_add_f32")]
            if o["noM"]: pass
            elif o["mf16"]:
                if n < 8:
                    a0, a1 = KF + 4 * n, KF + 4 * (n ^ 1); b0 = Q + 4 * n
                    d0 = S[nxt] + 8 * (n & 1); d1 = d0 + 4
                    c0 = NEGM if n < 2 else d0; c1 = NEGM if n < 2 else d1
                else:
                    k = n - 8
                    a0 = VF + 4 * k; a1 = VF + 4 * (k ^ 1); b0 = P + 4 * (k >> 2)
                    d0 = O + 8 * k; d1 = d0 + 4; c0, c1 = d0, d1
                e("v_mfma_f32_16x16x32_bf16 %s, %s, %s, %s" % (vr(d0, 4), vr(a0, 4), vr(b0, 4), vr(c0, 4)))
                hl = len(gl) // 2
                for x in gl[:hl]: e(x)
                e("v_mfma_f32_16x16x32_bf16 %s, %s, %s, %s" % (vr(d1, 4), vr(a1, 4), vr(b0, 4), vr(c1, 4)))
                gl = gl[hl:]
            else: e(m)
            if ts == 2 and n == 13: g.stamp_issue()
            for x in gl: e(x)
    for h in range(2):
        g.lab("L_ev%d" % h)
        e("s_cmp_lg_u32 s%d, 0" % sSTG)
        e("s_cbranch_scc1 L_epi")
        e("s_mov_b32 s%d, 1" % sSTG)
        e("s_mov_b32 s%d, 1" % sCNT)
        for rr in range(16):
            e("v_cndmask_b32 v%d, v%d, v%d, %s" % (NEGM + rr, vNINF, NEGM + rr, sr(sMASK + 2 * rr, 2)))
        e("s_branch L_h%d" % (1 - h))
    g.lab("L_epi")
    g.stamp()
    e("v_mov_b32 v%d, v%d" % (vTMP, vL))
    e("s_nop 1")
    e("v_permlane32_swap_b32 v%d, v%d" % (vTMP, vL))
    e("v_add_f32 v%d, v%d, v%d" % (vL, vL, vTMP))
    e("v_rcp_f32 v%d, v%d" % (vRI, vL))
    e("s_nop 7")
    for db in range(4):
        ob = O + 16 * db
        for k in range(8):
            e("v_pk_mul_f32 %s, %s, %s op_sel_hi:[1,0]" % (vr(ob + 2 * k, 2), vr(ob + 2 * k, 2), vr(vRI, 2)))
        w = VF + 8 * db
        for k in range(8):
            e("v_cvt_pk_bf16_f32 v%d, v%d, v%d" % (w + k, ob + 2 * k, ob + 2 * k + 1))
        e("s_nop 0")
        for pr in range(2):
            e("v_permlane32_swap_b32 v%d, v%d" % (w + 4 * pr, w + 4 * pr + 2))
            e("v_permlane32_swap_b32 v%d, v%d" % (w + 4 * pr + 1, w + 4 * pr + 3))
        for pr in range(2):
            e("buffer_store_dwordx4 %s, v%d, %s, 0 offen offset:%d" % (vr(w + 4 * pr, 4), vOOF, sr(sO, 4), db * 64 + pr * 32))
    e("s_cmp_eq_u32 s%d, 0" % sR1)
    e("s_cbranch_scc1 L_cdone")
    e("s_bitcmp1_b32 s%d, 0" % sN)
    e("s_cbranch_scc1 L_cnodummy")
    e("s_waitcnt lgkmcnt(0)")
    e("s_barrier")
    g.lab("L_cnodummy")
    shift_round(); decode_round()
    e("s_waitcnt lgkmcnt(0)")
    e("s_branch L_cround")
    g.lab("L_cdone")
    if ts:
        g.stamp()
        e("s_waitcnt vmcnt(0)")
        g.stamp()
        g.lab("L_tsout")
        e("s_lshl_b32 s%d, s2, 3" % sT0)
        e("s_add_u32 s%d, s%d, s%d" % (sT0, sT0, sW))
        e("s_lshl_b32 s%d, s%d, 9" % (sT0, sT0))
        e("s_add_u32 s16, s16, s%d" % sT0)
        e("s_addc_u32 s17, s17, 0")
        e("v_lshlrev_b32 v1, 3, v0")
        e("global_store_dwordx2 v1, v[30:31], s[16:17]")
        if o["diag"] >= 0:
            e("v_readlane_b32 s60, v31, 0")
            e("v_readlane_b32 s61, v31, %d" % o["diag"])
            e("s_nop 4")
            e("s_sub_u32 s61, s61, s60")
            e("s_mul_i32 s61, s61, 10")
            e("s_cmp_eq_u32 s2, %d" % o["diagwg"])
            e("s_cselect_b32 s61, s61, 0")
            e("s_cmp_eq_u32 s%d, %d" % (sW, o["diagwave"]))
            e("s_cselect_b32 s61, s61, 0")
            e("s_add_u32 s61, s61, 5000")
            g.lab("L_spin")
            e("s_memrealtime s[52:53]")
            e("s_waitcnt lgkmcnt(0)")
            e("s_sub_u32 s52, s52, s60")
            e("s_cmp_lt_u32 s52, s61")
            e("s_cbranch_scc1 L_spin")
    g.lab("L_end")
    e("s_endpgm")
    g.L.append(""".section .rodata,"a"
.p2align 6
.amdhsa_kernel %s
  .amdhsa_next_free_vgpr 256
  .amdhsa_next_free_sgpr 102
  .amdhsa_accum_offset 256
  .amdhsa_group_segment_fixed_size 0
  .amdhsa_kernarg_size 56
  .amdhsa_user_sgpr_count 2
  .amdhsa_user_sgpr_kernarg_segment_ptr 1
  .amdhsa_system_sgpr_workgroup_id_x 1
.end_amdhsa_kernel""" % KN)
    return "\n".join(g.L) + "\n"

import struct
def f2u(x): return struct.unpack("<I", struct.pack("<f", x))[0]

if __name__ == "__main__":
    out = sys.argv[1]
    opts = {}
    for a in sys.argv[2:]:
        k, v = a.split("="); opts[k] = v if "," in v else int(v)
    open(out, "w").write(gen(**opts))
```

```python
import sys, json

KN = "standalone__ragged_sequences_packed_sequences__ragged_kernel"
PIECE, BLK, PAIR, GRP = 1056, 8448, 16896, 33792
RING = 8 * PAIR

SEGS = [(0, 370), (370, 108), (478, 143), (621, 363), (984, 165), (1149, 432), (1581, 100), (1681, 465)]
def pk(seg, c):
    k0, L = SEGS[seg]
    return k0 | (L << 12) | (c << 21)

DEF = dict(qscale=1, ts=0, prio=1, mapmode=0, name="k", noK=0, noV=0, noX=0, noA=0, mf16=0, noM=0, ramp="3,3,3", ntq=0, ntkv=0, diag=-1, diagwg=16, diagwave=4, touch=0, stf="")

class G:
    def __init__(s, **o):
        s.o = dict(DEF); s.o.update(o); s.L = []; s.nts = 0
    def e(s, x): s.L.append("    " + x)
    def lab(s, x): s.L.append(x + ":")
    def c(s, x): s.L.append("    ; " + x)
    def stamp_issue(s):
        if s.o["ts"]:
            s.e("s_memtime s[52:53]"); s.e("s_memrealtime s[54:55]")
    def stamp_write(s):
        if s.o["ts"]:
            s.e("s_mov_b32 m0, s56"); s.e("s_add_u32 s56, s56, 1"); s.e("v_writelane_b32 v30, s52, m0"); s.e("v_writelane_b32 v31, s54, m0")
    def stamp(s):
        if s.o["ts"]:
            s.stamp_issue(); s.e("s_waitcnt lgkmcnt(0)"); s.stamp_write()

O = 192; S = [160, 176]; NEGM = 144; Q = 112; KF = 80; VF = 48; P = 40
vKA0, vKA1, vVA = 1, 2, 3
vKB0, vVB = 4, 5
vKB1 = 6
vL, vT, vNINF, vROW, vHF, vOOF, vTMP, vTMP2, vRI = 7, 8, 9, 10, 11, 12, 13, 14, 16
sQ, sK, sV, sO = 20, 24, 28, 32
sW, sH = 18, 19
sR0, sR1, sR2 = 36, 37, 38
sK0, sL, sQ0, sN, sEND = 39, 40, 41, 42, 43
sG, sGOFF, sCNT, sSTG, sT0, sT1, sC = 44, 45, 46, 47, 48, 49, 50
sLDS, sLEAD, sSA, sSB, sI = 44, 45, 46, 47, 51
sMASK = 64

def vr(b, n=1): return "v%d" % b if n == 1 else "v[%d:%d]" % (b, b + n - 1)
def sr(b, n=1): return "s%d" % b if n == 1 else "s[%d:%d]" % (b, b + n - 1)

def gen(**opts):
    g = G(**opts); o = g.o; e = g.e
    ts = o["ts"]
    hdr = """; ragged (block-diagonal) attention, T=2146 H=16 D=128 bf16 -- generated by my gen.py
; kernarg: q,k,v,seg_ids,out,debug,ws
; @launch grid=(256,1,1) block=(512,1,1) lds=%d
.amdgcn_target "amdgcn-amd-amdhsa--gfx950"
.text
.globl %s
.p2align 8
.type %s,@function
%s:""" % (RING, KN, KN, KN)
    g.L.append(hdr)
    if ts:
        e("s_mov_b32 s56, 0"); e("v_mov_b32 v30, 0"); e("v_mov_b32 v31, 0"); g.stamp()
    e("s_cmp_ge_u32 s2, 256")
    e("s_cbranch_scc1 L_end")
    e("s_load_dwordx8 s[4:11], s[0:1], 0")
    e("s_load_dwordx4 s[12:15], s[0:1], 32")
    if ts: e("s_load_dwordx2 s[16:17], s[0:1], 48")
    e("v_lshrrev_b32 v1, 6, v0")
    e("v_and_b32 v0, 63, v0")
    e("v_readfirstlane_b32 s%d, v1" % sW)
    if o["mapmode"] == 0:
        e("s_and_b32 s%d, s2, 7" % sH)
        e("s_lshr_b32 s3, s2, 3")
        e("s_and_b32 s%d, s3, 1" % sT0)
        e("s_lshl_b32 s%d, s%d, 1" % (sH, sH))
        e("s_add_u32 s%d, s%d, s%d" % (sH, sH, sT0))
        e("s_lshr_b32 s3, s3, 1")
    elif o["mapmode"] == 2:
        e("s_and_b32 s%d, s2, 7" % sH)
        e("s_lshr_b32 s3, s2, 3")
        e("s_and_b32 s%d, s3, 1" % sT0)
        e("s_lshl_b32 s%d, s%d, 1" % (sH, sH))
        e("s_add_u32 s%d, s%d, s%d" % (sH, sH, sT0))
        e("s_lshr_b32 s3, s3, 1")
        e("s_mov_b32 s%d, 12" % sT0)
        e("s_cmp_lt_u32 s3, 13"); e("s_cselect_b32 s%d, 8, s%d" % (sT0, sT0))
        e("s_cmp_lt_u32 s3, 10"); e("s_cselect_b32 s%d, 4, s%d" % (sT0, sT0))
        e("s_cmp_lt_u32 s3, 6"); e("s_cselect_b32 s%d, 0, s%d" % (sT0, sT0))
        e("s_cmp_lt_u32 s3, 2"); e("s_cselect_b32 s%d, 2, s%d" % (sT0, sT0))
        e("s_add_u32 s%d, s%d, s%d" % (sH, sH, sT0))
        e("s_and_b32 s%d, s%d, 15" % (sH, sH))
    else:
        e("s_and_b32 s%d, s2, 15" % sH)
        e("s_lshr_b32 s3, s2, 4")
    e("s_lshl_b32 s%d, s%d, 8" % (sH, sH))
    e("s_mov_b32 s%d, 0x%x" % (sR0, pk(3, 0) - (13 << 21) & 0xffffffff))
    e("s_cmp_lt_u32 s3, 13")
    e("s_cselect_b32 s%d, 0x%x, s%d" % (sR0, pk(0, 0) - (10 << 21) & 0xffffffff, sR0))
    e("s_cmp_lt_u32 s3, 10")
    e("s_cselect_b32 s%d, 0x%x, s%d" % (sR0, pk(5, 0) - (6 << 21) & 0xffffffff, sR0))
    e("s_cmp_lt_u32 s3, 6")
    e("s_cselect_b32 s%d, 0x%x, s%d" % (sR0, pk(7, 0) - (2 << 21) & 0xffffffff, sR0))
    e("s_cmp_lt_u32 s3, 2")
    e("s_cselect_b32 s%d, 0x%x, s%d" % (sR0, pk(4, 0), sR0))
    e("s_cselect_b32 s%d, 0x%x, 0" % (sR1, pk(2, 1)))
    e("s_cselect_b32 s%d, 0x%x, 0" % (sR2, pk(1, 0)))
    e("s_lshl_b32 s%d, s3, 21" % sT0)
    e("s_add_u32 s%d, s%d, s%d" % (sR0, sR0, sT0))
    e("s_cmp_eq_u32 s3, 1")
    e("s_cselect_b32 s%d, 0x%x, s%d" % (sR1, pk(2, 0), sR1))
    e("s_cselect_b32 s%d, 0x%x, s%d" % (sR2, pk(6, 0), sR2))

    def decode_round():
        e("s_and_b32 s%d, s%d, 0xfff" % (sK0, sR0))
        e("s_bfe_u32 s%d, s%d, 0x9000c" % (sL, sR0))
        e("s_lshr_b32 s%d, s%d, 21" % (sQ0, sR0))
        e("s_lshl_b32 s%d, s%d, 7" % (sQ0, sQ0))
        e("s_add_u32 s%d, s%d, s%d" % (sQ0, sQ0, sK0))
        e("s_add_u32 s%d, s%d, 31" % (sN, sL))
        e("s_lshr_b32 s%d, s%d, 5" % (sN, sN))
        e("s_add_u32 s%d, s%d, s%d" % (sEND, sK0, sL))
        e("s_lshl_b32 s%d, s%d, 12" % (sEND, sEND))
        e("s_sub_u32 s%d, s%d, 3840" % (sEND, sEND))
    def shift_round():
        e("s_mov_b32 s%d, s%d" % (sR0, sR1))
        e("s_mov_b32 s%d, s%d" % (sR1, sR2))
        e("s_mov_b32 s%d, 0" % sR2)
    def srd(d, p):
        e("s_add_u32 s%d, s%d, s%d" % (d, p, sH))
        e("s_addc_u32 s%d, s%d, 0" % (d + 1, p + 1))
        e("s_mov_b32 s%d, 0x20000" % (d + 3))

    decode_round()
    e("s_cmp_lt_u32 s%d, 4" % sW)
    e("s_cbranch_scc1 L_cons")
    if o["prio"]: e("s_setprio 3")
    e("v_lshrrev_b32 v2, 4, v0")
    e("v_and_b32 v3, 1, v2")
    e("v_and_b32 v4, 15, v0")
    e("v_xor_b32 v4, v4, v3")
    e("v_lshlrev_b32 v4, 4, v4")
    e("v_lshl_add_u32 v1, v2, 12, v4")
    e("s_sub_u32 s%d, s%d, 4" % (sT0, sW))
    e("s_lshl_b32 s%d, s%d, 15" % (sT1, sT0))
    e("v_add_u32 v1, s%d, v1" % sT1)
    e("v_add_u32 v2, %d, v1" % (16384 - PIECE))
    e("s_mul_i32 s%d, s%d, %d" % (sC, sT0, 2 * PIECE))
    e("s_add_u32 s%d, s%d, %d" % (sLDS, sC, PAIR))
    e("s_add_u32 s%d, s%d, %d" % (sI, sC, RING))
    e("s_mov_b32 s%d, 0" % sLEAD)
    e("s_waitcnt lgkmcnt(0)")
    g.stamp()
    srd(sQ, 4); srd(sK, 6); srd(sV, 8)
    def pre():
        e("s_waitcnt vmcnt(24)")
        g.stamp()
        e("s_barrier")
    def issue(a, b):
        fa = " nt" if (o["ntq"] if a == sQ else o["ntkv"]) else ""
        fb = " nt" if (o["ntq"] if b == sQ else o["ntkv"]) else ""
        e("s_mov_b32 m0, s%d" % sLDS)
        e("s_add_u32 s%d, s%d, %d" % (sT0, sLDS, BLK))
        e("buffer_load_dwordx4 v1, %s, s%d offen%s lds" % (sr(a, 4), sSA, fa))
        e("buffer_load_dwordx4 v2, %s, s%d offen offset:%d%s lds" % (sr(a, 4), sSA, PIECE, fa))
        e("s_mov_b32 m0, s%d" % sT0)
        e("s_add_u32 s%d, s%d, %d" % (sLDS, sLDS, PAIR))
        e("buffer_load_dwordx4 v1, %s, s%d offen%s lds" % (sr(b, 4), sSB, fb))
        e("buffer_load_dwordx4 v2, %s, s%d offen offset:%d%s lds" % (sr(b, 4), sSB, PIECE, fb))
        e("s_cmp_eq_u32 s%d, s%d" % (sLDS, sI))
        e("s_cselect_b32 s%d, s%d, s%d" % (sLDS, sC, sLDS))
    def entry(k):
        if k == 0:
            for x in (sQ, sK, sV): e("s_mov_b32 s%d, s%d" % (x + 2, sEND))
            e("s_lshl_b32 s%d, s%d, 12" % (sSA, sQ0))
            e("s_add_u32 s%d, s%d, %d" % (sSB, sSA, 32 * 4096))
            issue(sQ, sQ)
        elif k == 1:
            e("s_add_u32 s%d, s%d, %d" % (sSA, sSA, 64 * 4096))
            e("s_add_u32 s%d, s%d, %d" % (sSB, sSB, 64 * 4096))
            issue(sQ, sQ)
        elif k == 2:
            e("s_lshl_b32 s%d, s%d, 12" % (sSA, sK0))
            e("s_add_u32 s%d, s%d, %d" % (sSB, sSA, 32 * 4096))
            issue(sK, sK)
            e("s_add_u32 s%d, s%d, %d" % (sSB, sSA, 64 * 4096))
        else:
            issue(sV, sK)
            e("s_add_u32 s%d, s%d, %d" % (sSA, sSA, 32 * 4096))
            e("s_add_u32 s%d, s%d, %d" % (sSB, sSB, 32 * 4096))
    ramp = [int(x) for x in o["ramp"].split(",")]
    issued = 0
    for n, k in enumerate(ramp):
        if n > 0:
            e("s_waitcnt vmcnt(%d)" % (4 * (issued - n)))
            g.stamp()
            e("s_barrier")
        for _ in range(k):
            entry(issued); issued += 1
    nb = len(ramp) - 1
    assert issued - nb == 7 and issued <= 9 and issued >= 3, (issued, nb)
    if o["prio"]: e("s_setprio 0")
    e("s_sub_u32 s%d, s%d, %d" % (sT1, sN, issued - 3))
    e("s_cmp_eq_u32 s%d, 0" % sT1)
    e("s_cbranch_scc1 L_ptend")
    g.lab("L_ptile")
    pre(); entry(3)
    e("s_sub_u32 s%d, s%d, 1" % (sT1, sT1))
    e("s_cmp_lg_u32 s%d, 0" % sT1)
    e("s_cbranch_scc1 L_ptile")
    g.lab("L_ptend")
    e("s_cmp_eq_u32 s%d, 0" % sR1)
    e("s_cbranch_scc1 L_pdrain")
    e("s_bitcmp1_b32 s%d, 0" % sN)
    e("s_cbranch_scc1 L_pnodummy")
    pre(); issue(sV, sK)
    g.lab("L_pnodummy")
    shift_round(); decode_round()
    for k in range(3):
        pre(); entry(k)
    e("s_mov_b32 s%d, s%d" % (sT1, sN))
    e("s_branch L_ptile")
    g.lab("L_pdrain")
    for n in range(24, -1, -4):
        e("s_waitcnt vmcnt(%d)" % n)
        g.stamp()
        e("s_barrier")
    g.stamp()
    if ts:
        e("s_branch L_tsout")
    else:
        e("s_endpgm")

    g.lab("L_cons")
    if o["prio"]: e("s_setprio 1")
    e("v_lshrrev_b32 v%d, 5, v0" % vHF)
    e("v_and_b32 v20, 3, v0")
    e("v_bfe_u32 v21, v0, 4, 1")
    e("v_lshl_add_u32 v21, v20, 1, v21")
    e("v_bfe_u32 v22, v0, 2, 1")
    e("v_bfe_u32 v23, v0, 3, 1")
    e("v_lshl_add_u32 v23, v23, 1, v22")
    e("v_lshl_add_u32 v%d, v21, 2, v23" % vROW)
    e("v_mul_u32_u24 v24, %d, v21" % PIECE)
    e("v_lshl_add_u32 v24, v23, 8, v24")
    e("v_lshl_add_u32 v24, v%d, 7, v24" % vHF)
    e("v_lshl_add_u32 v%d, v22, 4, v24" % vKB0)
    e("v_xor_b32 v%d, 16, v%d" % (vKB1, vKB0))
    e("v_bfe_u32 v24, v0, 2, 2")
    e("v_mul_u32_u24 v24, %d, v24" % (2 * PIECE))
    e("v_lshl_add_u32 v24, v%d, 8, v24" % vHF)
    e("v_bfe_u32 v25, v0, 4, 1")
    e("v_lshlrev_b32 v25, 5, v25")
    e("v_lshl_add_u32 v25, v20, 3, v25")
    e("v_lshlrev_b32 v26, 4, v%d" % vHF)
    e("v_xor_b32 v25, v25, v26")
    e("v_add_u32 v%d, v24, v25" % vVB)
    e("v_mov_b32 v%d, 0xff800000" % vNINF)
    e("s_mov_b32 s%d, 0" % sG)
    e("s_mov_b32 s%d, 0x%08x" % (sC, 0x3e02950d))
    g.L[-1] = "    s_mov_b32 s%d, 0x%08x" % (sC, f2u((128 ** -0.5) * 1.4426950408889634))
    e("s_waitcnt lgkmcnt(0)")
    srd(sO, 12)
    if o["touch"]:
        srd(sK, 6); srd(sV, 8)
        for x in (sK, sV, sO): e("s_mov_b32 s%d, s%d" % (x + 2, sEND))
        e("v_lshlrev_b32 v20, 15, v0")
        e("s_lshl_b32 s%d, s%d, 12" % (sT0, sK0))
        e("s_cmp_eq_u32 s%d, 0" % sW); e("s_cbranch_scc0 L_t1")
        e("buffer_load_dword v21, v20, %s, s%d offen" % (sr(sK, 4), sT0))
        g.lab("L_t1")
        e("s_cmp_eq_u32 s%d, 1" % sW); e("s_cbranch_scc0 L_t2")
        e("buffer_load_dword v21, v20, %s, s%d offen" % (sr(sV, 4), sT0))
        g.lab("L_t2")
        e("s_cmp_eq_u32 s%d, 2" % sW); e("s_cbranch_scc0 L_t3")
        e("buffer_load_dword v21, v20, %s, s%d offen" % (sr(sO, 4), sT0))
        g.lab("L_t3")
    g.lab("L_cround")
    e("s_mov_b32 s%d, s%d" % (sO + 2, sEND))
    e("s_lshl_b32 s%d, s%d, 5" % (sT0, sW))
    e("s_add_u32 s%d, s%d, s%d" % (sT0, sT0, sQ0))
    e("v_add_u32 v%d, s%d, v%d" % (vOOF, sT0, vROW))
    e("v_lshlrev_b32 v%d, 12, v%d" % (vOOF, vOOF))
    e("v_lshl_add_u32 v%d, v%d, 4, v%d" % (vOOF, vHF, vOOF))
    e("s_sub_u32 s%d, s%d, 1" % (sT0, sN))
    e("s_lshl_b32 s%d, s%d, 5" % (sT0, sT0))
    e("s_sub_u32 s%d, s%d, s%d" % (sT0, sL, sT0))
    e("v_sub_u32 v%d, s%d, v%d" % (vTMP, sT0, vHF))
    for rr in range(16):
        kc = 8 * (rr % 4) + 4 * (rr // 8) + 2 * ((rr // 4) % 2)
        e("v_cmp_lt_i32 %s, %d, v%d" % (sr(sMASK + 2 * rr, 2), kc, vTMP))
    for i in range(64): e("v_mov_b32 v%d, 0" % (O + i))
    for i in range(16): e("v_mov_b32 v%d, 0" % (NEGM + i))
    e("v_mov_b32 v%d, 0" % vL)
    e("s_mul_i32 s%d, s%d, %d" % (sGOFF, sG, GRP))
    e("s_add_u32 s%d, s%d, %d" % (sT0, sGOFF, PAIR))
    e("s_add_u32 s%d, s%d, 1" % (sG, sG))
    e("s_and_b32 s%d, s%d, 3" % (sG, sG))
    e("s_mul_i32 s%d, s%d, %d" % (sGOFF, sG, GRP))
    e("s_cmp_lt_u32 s%d, 2" % sW)
    e("s_cselect_b32 s%d, s%d, s%d" % (sT0, sT0, sGOFF))
    e("s_and_b32 s%d, s%d, 1" % (sT1, sW))
    e("s_mul_i32 s%d, s%d, %d" % (sT1, sT1, BLK))
    e("s_add_u32 s%d, s%d, s%d" % (sT0, sT0, sT1))
    e("v_add_u32 v%d, s%d, v%d" % (vKA0, sT0, vKB0))
    e("v_add_u32 v%d, s%d, v%d" % (vKA1, sT0, vKB1))
    def kread(dst, s_, off):
        return "ds_read_b128 %s, v%d offset:%d" % (vr(dst + 4 * s_, 4), vKA1 if s_ & 1 else vKA0, off + (s_ >> 1) * 32)
    g.stamp()
    e("s_barrier")
    e("s_cmp_lt_u32 s%d, 2" % sW)
    e("s_cbranch_scc0 L_q1")
    for s_ in range(8): e(kread(Q, s_, 0))
    e("s_waitcnt lgkmcnt(0)")
    e("s_barrier")
    e("s_branch L_q2")
    g.lab("L_q1")
    e("s_barrier")
    for s_ in range(8): e(kread(Q, s_, 0))
    e("s_waitcnt lgkmcnt(0)")
    g.lab("L_q2")
    g.stamp()
    e("v_add_u32 v%d, s%d, v%d" % (vKA0, sGOFF, vKB0))
    e("v_add_u32 v%d, s%d, v%d" % (vKA1, sGOFF, vKB1))
    if o["qscale"]:
        for i in range(32):
            t = 22 + 2 * (i % 4)
            e("v_lshlrev_b32 v%d, 16, v%d" % (t, Q + i))
            e("v_and_b32 v%d, 0xffff0000, v%d" % (t + 1, Q + i))
            e("v_mul_f32 v%d, s%d, v%d" % (t, sC, t))
            e("v_mul_f32 v%d, s%d, v%d" % (t + 1, sC, t + 1))
            e("v_cvt_pk_bf16_f32 v%d, v%d, v%d" % (Q + i, t, t + 1))
    e("s_barrier")
    g.stamp()
    for s_ in range(8): e(kread(KF, s_, PAIR))
    e("s_add_u32 s%d, s%d, 1" % (sG, sG))
    e("s_and_b32 s%d, s%d, 3" % (sG, sG))
    e("s_mul_i32 s%d, s%d, %d" % (sGOFF, sG, GRP))
    def qk(s_, buf):
        c = NEGM if s_ == 0 else S[buf]
        return "v_mfma_f32_32x32x16_bf16 %s, %s, %s, %s" % (vr(S[buf], 16), vr(KF + 4 * s_, 4), vr(Q + 4 * s_, 4), vr(c, 16))
    base_lg = 1 if ts else 0
    for s_ in range(8):
        e("s_waitcnt lgkmcnt(7)" if not ts else "s_waitcnt lgkmcnt(0)")
        e(qk(s_, 0))
        e(kread(KF, s_, PAIR + BLK))
    e("v_add_u32 v%d, s%d, v%d" % (vKA0, sGOFF, vKB0))
    e("v_add_u32 v%d, s%d, v%d" % (vKA1, sGOFF, vKB1))
    e("v_add_u32 v%d, s%d, v%d" % (vVA, sGOFF, vVB))
    e("s_sub_u32 s%d, s%d, 3" % (sCNT, sN))
    e("s_mov_b32 s%d, 0" % sSTG)
    e("s_nop 7")
    s0 = S[0]
    e("v_max3_f32 v%d, v%d, v%d, v%d" % (vTMP, s0, s0 + 1, s0 + 2))
    e("v_max3_f32 v%d, v%d, v%d, v%d" % (vTMP2, s0 + 3, s0 + 4, s0 + 5))
    for i in range(6, 14, 4):
        e("v_max3_f32 v%d, v%d, v%d, v%d" % (vTMP, vTMP, s0 + i, s0 + i + 1))
        e("v_max3_f32 v%d, v%d, v%d, v%d" % (vTMP2, vTMP2, s0 + i + 2, s0 + i + 3))
    e("v_max3_f32 v%d, v%d, v%d, v%d" % (vTMP, vTMP, s0 + 14, s0 + 15))
    e("v_max_f32 v%d, v%d, v%d" % (vTMP, vTMP, vTMP2))
    e("v_mov_b32 v%d, v%d" % (vTMP2, vTMP))
    e("s_nop 1")
    e("v_permlane32_swap_b32 v%d, v%d" % (vTMP, vTMP2))
    e("v_max_f32 v%d, v%d, v%d" % (vTMP, vTMP, vTMP2))
    for i in range(16): e("v_sub_f32 v%d, v%d, v%d" % (s0 + i, s0 + i, vTMP))
    for i in range(16): e("v_sub_f32 v%d, 0, v%d" % (NEGM + i, vTMP))
    def X(buf, i):
        r = S[buf] + i
        if o["qscale"]: return ["v_exp_f32 v%d, v%d" % (r, r)]
        return ["v_mul_f32 v%d, s%d, v%d" % (r, sC, r), "v_exp_f32 v%d, v%d" % (r, r)]
    def C(buf, j): return ["v_cvt_pk_bf16_f32 v%d, v%d, v%d" % (P + j, S[buf] + 2 * j, S[buf] + 2 * j + 1)]
    def T(buf, i):
        if i == 1: return ["v_add_f32 v%d, v%d, v%d" % (vT, S[buf], S[buf] + 1)]
        return ["v_add_f32 v%d, v%d, v%d" % (vT, vT, S[buf] + i)]
    def A(buf, i): return ["v_add_f32 v%d, v%d, v%d" % (vL, vL, S[buf] + i)]
    for i in range(8):
        for x in X(0, i): e(x)
    e("s_nop 0")
    for j in range(4): e(C(0, j)[0])
    for i in range(1, 8): e(T(0, i)[0])
    if ts == 2: g.stamp_issue()
    else: g.stamp()
    def V(n, off):
        ks, db, sec = n >> 3, (n >> 1) & 3, n & 1
        return ["ds_read_b64_tr_b16 %s, v%d offset:%d" % (vr(VF + ks * 16 + db * 4 + sec * 2, 2), vVA, off + ks * PIECE + sec * 512 + db * 64)]
    def pv(n):
        ks, db = n >> 2, n & 3
        return "v_mfma_f32_32x32x16_bf16 %s, %s, %s, %s" % (vr(O + 16 * db, 16), vr(VF + ks * 16 + db * 4, 4), vr(P + 4 * ks, 4), vr(O + 16 * db, 16))
    e("s_nop 0")
    g.L.append(".p2align 6")
    for h in range(2):
        cur, nxt = h, 1 - h
        off = h * PAIR
        K_ = lambda s_: [kread(KF, s_, off + BLK)]
        V_ = lambda n: V(n, off)
        gaps = [
            ["s_barrier"] + V_(0) + V_(1) + V_(2) + V_(3) + ["v_add_f32 v%d, v%d, v%d" % (vL, vL, vT)],
            V_(4) + V_(5) + X(cur, 8) + X(cur, 9),
            V_(6) + V_(7) + X(cur, 10) + X(cur, 11),
            V_(8) + V_(9) + X(cur, 12) + C(cur, 4) + A(cur, 8),
            V_(10) + V_(11) + X(cur, 13) + C(cur, 5) + A(cur, 9),
            V_(12) + V_(13) + X(cur, 14) + A(cur, 10) + A(cur, 11),
            V_(14) + V_(15) + X(cur, 15) + A(cur, 12) + C(cur, 6),
            A(cur, 13) + A(cur, 14) + C(cur, 7) + A(cur, 15) + ["s_waitcnt lgkmcnt(8)"],
            K_(0) + K_(1) + K_(2) + K_(3),
            K_(4) + K_(5) + K_(6) + K_(7),
            X(nxt, 0) + X(nxt, 1) + X(nxt, 2),
            X(nxt, 3) + T(nxt, 1) + C(nxt, 0) + T(nxt, 2) + ["s_waitcnt lgkmcnt(8)"],
            X(nxt, 4) + X(nxt, 5) + C(nxt, 1) + T(nxt, 3),
            X(nxt, 6) + X(nxt, 7) + T(nxt, 4) + T(nxt, 5),
            C(nxt, 2) + C(nxt, 3) + T(nxt, 6) + T(nxt, 7),
            [],
        ]
        if h == 1:
            gaps[8] += ["s_add_u32 s%d, s%d, 1" % (sG, sG), "s_and_b32 s%d, s%d, 3" % (sG, sG)]
            gaps[9] += ["s_mul_i32 s%d, s%d, %d" % (sGOFF, sG, GRP)]
            gaps[14] += ["v_add_u32 v%d, s%d, v%d" % (vVA, sGOFF, vVB)]
            gaps[15] += ["v_add_u32 v%d, s%d, v%d" % (vKA0, sGOFF, vKB0), "v_add_u32 v%d, s%d, v%d" % (vKA1, sGOFF, vKB1)]
        gaps[15] += ["s_sub_u32 s%d, s%d, 1" % (sCNT, sCNT), "s_cbranch_scc1 L_ev%d" % h]
        if h == 1: gaps[15] += ["s_branch L_h0"]
        g.lab("L_h%d" % h)
        e("s_waitcnt lgkmcnt(0)")
        if ts == 2: g.stamp_write()
        for n in range(16):
            m = qk(n, nxt) if n < 8 else pv(n - 8)
            gl = list(gaps[n])
            if o["noK"]: gl = [x for x in gl if not x.startswith("ds_read_b128")]
            if o["noV"]: gl = [x for x in gl if not x.startswith("ds_read_b64")]
            if o["noX"]: gl = [x for x in gl if not (x.startswith("v_exp") or x.startswith("v_cvt"))]
            if o["noA"]: gl = [x for x in gl if not x.startswith("v_add_f32")]
            if o["noM"]: pass
            elif o["mf16"]:
                if n < 8:
                    a0, a1 = KF + 4 * n, KF + 4 * (n ^ 1); b0 = Q + 4 * n
                    d0 = S[nxt] + 8 * (n & 1); d1 = d0 + 4
                    c0 = NEGM if n < 2 else d0; c1 = NEGM if n < 2 else d1
                else:
                    k = n - 8
                    a0 = VF + 4 * k; a1 = VF + 4 * (k ^ 1); b0 = P + 4 * (k >> 2)
                    d0 = O + 8 * k; d1 = d0 + 4; c0, c1 = d0, d1
                e("v_mfma_f32_16x16x32_bf16 %s, %s, %s, %s" % (vr(d0, 4), vr(a0, 4), vr(b0, 4), vr(c0, 4)))
                hl = len(gl) // 2
                for x in gl[:hl]: e(x)
                e("v_mfma_f32_16x16x32_bf16 %s, %s, %s, %s" % (vr(d1, 4), vr(a1, 4), vr(b0, 4), vr(c1, 4)))
                gl = gl[hl:]
            else: e(m)
            if ts == 2 and n == 13: g.stamp_issue()
            for x in gl: e(x)
    for h in range(2):
        g.lab("L_ev%d" % h)
        e("s_cmp_lg_u32 s%d, 0" % sSTG)
        e("s_cbranch_scc1 L_epi")
        e("s_mov_b32 s%d, 1" % sSTG)
        e("s_mov_b32 s%d, 1" % sCNT)
        for rr in range(16):
            e("v_cndmask_b32 v%d, v%d, v%d, %s" % (NEGM + rr, vNINF, NEGM + rr, sr(sMASK + 2 * rr, 2)))
        e("s_branch L_h%d" % (1 - h))
    g.lab("L_epi")
    g.stamp()
    e("v_mov_b32 v%d, v%d" % (vTMP, vL))
    e("s_nop 1")
    e("v_permlane32_swap_b32 v%d, v%d" % (vTMP, vL))
    e("v_add_f32 v%d, v%d, v%d" % (vL, vL, vTMP))
    e("v_rcp_f32 v%d, v%d" % (vRI, vL))
    e("s_nop 7")
    for db in range(4):
        ob = O + 16 * db
        for k in range(8):
            e("v_pk_mul_f32 %s, %s, %s op_sel_hi:[1,0]" % (vr(ob + 2 * k, 2), vr(ob + 2 * k, 2), vr(vRI, 2)))
        w = VF + 8 * db
        for k in range(8):
            e("v_cvt_pk_bf16_f32 v%d, v%d, v%d" % (w + k, ob + 2 * k, ob + 2 * k + 1))
        e("s_nop 0")
        for pr in range(2):
            e("v_permlane32_swap_b32 v%d, v%d" % (w + 4 * pr, w + 4 * pr + 2))
            e("v_permlane32_swap_b32 v%d, v%d" % (w + 4 * pr + 1, w + 4 * pr + 3))
        for pr in range(2):
            e("buffer_store_dwordx4 %s, v%d, %s, 0 offen offset:%d%s" % (vr(w + 4 * pr, 4), vOOF, sr(sO, 4), db * 64 + pr * 32, o["stf"].replace(",", " ")))
    e("s_cmp_eq_u32 s%d, 0" % sR1)
    e("s_cbranch_scc1 L_cdone")
    e("s_bitcmp1_b32 s%d, 0" % sN)
    e("s_cbranch_scc1 L_cnodummy")
    e("s_waitcnt lgkmcnt(0)")
    e("s_barrier")
    g.lab("L_cnodummy")
    shift_round(); decode_round()
    e("s_waitcnt lgkmcnt(0)")
    e("s_branch L_cround")
    g.lab("L_cdone")
    if ts:
        g.stamp()
        e("s_waitcnt vmcnt(0)")
        g.stamp()
        g.lab("L_tsout")
        e("s_lshl_b32 s%d, s2, 3" % sT0)
        e("s_add_u32 s%d, s%d, s%d" % (sT0, sT0, sW))
        e("s_lshl_b32 s%d, s%d, 9" % (sT0, sT0))
        e("s_add_u32 s16, s16, s%d" % sT0)
        e("s_addc_u32 s17, s17, 0")
        e("v_lshlrev_b32 v1, 3, v0")
        e("global_store_dwordx2 v1, v[30:31], s[16:17]")
        if o["diag"] >= 0:
            e("v_readlane_b32 s60, v31, 0")
            e("v_readlane_b32 s61, v31, %d" % o["diag"])
            e("s_nop 4")
            e("s_sub_u32 s61, s61, s60")
            e("s_mul_i32 s61, s61, 10")
            e("s_cmp_eq_u32 s2, %d" % o["diagwg"])
            e("s_cselect_b32 s61, s61, 0")
            e("s_cmp_eq_u32 s%d, %d" % (sW, o["diagwave"]))
            e("s_cselect_b32 s61, s61, 0")
            e("s_add_u32 s61, s61, 5000")
            g.lab("L_spin")
            e("s_memrealtime s[52:53]")
            e("s_waitcnt lgkmcnt(0)")
            e("s_sub_u32 s52, s52, s60")
            e("s_cmp_lt_u32 s52, s61")
            e("s_cbranch_scc1 L_spin")
    g.lab("L_end")
    e("s_endpgm")
    g.L.append(""".section .rodata,"a"
.p2align 6
.amdhsa_kernel %s
  .amdhsa_next_free_vgpr 256
  .amdhsa_next_free_sgpr 102
  .amdhsa_accum_offset 256
  .amdhsa_group_segment_fixed_size 0
  .amdhsa_kernarg_size 56
  .amdhsa_user_sgpr_count 2
  .amdhsa_user_sgpr_kernarg_segment_ptr 1
  .amdhsa_system_sgpr_workgroup_id_x 1
.end_amdhsa_kernel""" % KN)
    return "\n".join(g.L) + "\n"

import struct
def f2u(x): return struct.unpack("<I", struct.pack("<f", x))[0]

if __name__ == "__main__":
    out = sys.argv[1]
    opts = {}
    for a in sys.argv[2:]:
        k, v = a.split("="); opts[k] = v if "," in v else int(v)
    open(out, "w").write(gen(**opts))
```

```python
import sys, struct

KN = "standalone__ragged_sequences_packed_sequences__ragged_kernel"
PIECE, BLK, PAIR, GRP = 1056, 8448, 16896, 33792
RING = 8 * PAIR
SPITCH = 144
STG = RING
LDS = RING + 4 * 32 * SPITCH

SEGS = [(0, 370), (370, 108), (478, 143), (621, 363), (984, 165), (1149, 432), (1581, 100), (1681, 465)]
def pk(seg, c, dual=0):
    k0, L = SEGS[seg]
    return k0 | (L << 12) | (c << 21) | (dual << 26)
def f2u(x): return struct.unpack("<I", struct.pack("<f", x))[0]

DEF = dict(qscale=0, ts=0, prio=1, ntq=1, ntkv=1, diag=-1, diagwg=0, diagwave=4, stf="", lead=4, hoff=1,
           ntlo=0, nthi=0, ntdual=1, noK=0, noV=0, noX=0, noA=0)

class G:
    def __init__(s, **o):
        s.o = dict(DEF); s.o.update(o); s.L = []
    def e(s, x): s.L.append("    " + x)
    def lab(s, x): s.L.append(x + ":")
    def stamp_issue(s):
        if s.o["ts"]: s.e("s_memtime s[52:53]"); s.e("s_memrealtime s[54:55]")
    def stamp_write(s):
        if s.o["ts"]:
            s.e("s_mov_b32 m0, s56"); s.e("s_add_u32 s56, s56, 1"); s.e("v_writelane_b32 v30, s52, m0"); s.e("v_writelane_b32 v31, s54, m0")
    def stamp(s):
        if s.o["ts"]: s.stamp_issue(); s.e("s_waitcnt lgkmcnt(0)"); s.stamp_write()

O = 192; S = [160, 176]; CI = 144; Q = 112; KF = 80; VF = 48; P = 40
vKA0, vKA1, vVA, vKB0, vVB, vKB1 = 1, 2, 3, 4, 5, 6
vL, vT, vNINF, vMC, vHF, vOOF, vTMP, vTMP2, vRI, vSW, vSR = 7, 8, 9, 10, 11, 12, 13, 14, 16, 18, 19
sQ, sK, sV, sO = 20, 24, 28, 32
sW, sH = 18, 19
sR0, sR1, sD = 36, 37, 38
sK0, sL, sQ0, sN, sEND = 39, 40, 41, 42, 43
sG, sGOFF, sCNT, sSTG, sT0, sT1, sC, sGM = 44, 45, 46, 47, 48, 49, 50, 51
sRB, sQB, sO0 = 57, 58, 60
sLDS, sWRAP, sSA, sSB, sWB, sSA2, sSB2 = 44, 45, 46, 47, 50, 51, 57
sMASK = 64

def vr(b, n=1): return "v%d" % b if n == 1 else "v[%d:%d]" % (b, b + n - 1)
def sr(b, n=1): return "s%d" % b if n == 1 else "s[%d:%d]" % (b, b + n - 1)

def gen(**opts):
    g = G(**opts); o = g.o; e = g.e
    ts = o["ts"]; qs = o["qscale"]
    g.L.append("""; ragged (block-diagonal) attention, T=2146 H=16 D=128 bf16
; kernarg: q,k,v,seg_ids,out,debug,ws
; @launch grid=(256,1,1) block=(512,1,1) lds=%d
.amdgcn_target "amdgcn-amd-amdhsa--gfx950"
.text
.globl %s
.p2align 8
.type %s,@function
%s:""" % (LDS, KN, KN, KN))
    if ts:
        e("s_mov_b32 s56, 0"); e("v_mov_b32 v30, 0"); e("v_mov_b32 v31, 0"); g.stamp()
    e("s_load_dwordx8 s[4:11], s[0:1], 0")
    e("s_load_dwordx2 s[12:13], s[0:1], 32")
    if ts: e("s_load_dwordx2 s[16:17], s[0:1], 48")
    e("s_cmp_ge_u32 s2, 256")
    e("s_cbranch_scc1 L_end")
    e("v_lshrrev_b32 v1, 6, v0")
    e("v_and_b32 v0, 63, v0")
    e("v_readfirstlane_b32 s%d, v1" % sW)
    e("s_and_b32 s%d, s2, 7" % sH)
    e("s_lshl_b32 s%d, s%d, 1" % (sH, sH))
    e("s_lshr_b32 s3, s2, 4")
    e("s_bfe_u32 s%d, s2, 0x10003" % sT1)
    ho = (lambda x: x << 27) if o["hoff"] else (lambda x: 0)
    def K(seg, first, off): return (pk(seg, 0) - (first << 21) + ho(off)) & 0xffffffff
    e("s_mov_b32 s%d, 0x%x" % (sR0, K(3, 13, 6)))
    e("s_cmp_lt_u32 s3, 13"); e("s_cselect_b32 s%d, 0x%x, s%d" % (sR0, K(0, 10, 4), sR0))
    e("s_cmp_lt_u32 s3, 10"); e("s_cselect_b32 s%d, 0x%x, s%d" % (sR0, K(5, 7, 2), sR0))
    e("s_cmp_lt_u32 s3, 4");  e("s_cselect_b32 s%d, 0x%x, s%d" % (sR0, K(7, 0, 0), sR0))
    e("s_lshl_b32 s%d, s3, 21" % sT0)
    e("s_add_u32 s%d, s%d, s%d" % (sR0, sR0, sT0))
    e("s_cmp_eq_u32 s3, 4")
    e("s_cselect_b32 s%d, 0x%x, s%d" % (sR0, pk(4, 0) + ho(1), sR0)); e("s_cselect_b32 s%d, 0x%x, 0" % (sR1, pk(6, 0)))
    e("s_cmp_eq_u32 s3, 5")
    e("s_cselect_b32 s%d, 0x%x, s%d" % (sR0, pk(2, 0) + ho(1), sR0)); e("s_cselect_b32 s%d, 0x%x, s%d" % (sR1, pk(1, 0), sR1))
    e("s_lshr_b32 s%d, s2, 3" % sT0)
    e("s_cmp_eq_u32 s%d, 12" % sT0)
    e("s_cselect_b32 s%d, 0x%x, s%d" % (sR0, pk(4, 1, 1) + ho(1), sR0)); e("s_cselect_b32 s%d, 0x%x, s%d" % (sR1, pk(2, 1), sR1))
    e("s_cmp_eq_u32 s%d, 13" % sT0)
    e("s_cselect_b32 s%d, 0x%x, s%d" % (sR0, pk(5, 3, 1) + ho(2), sR0))
    e("s_bfe_u32 s%d, s%d, 0x1001a" % (sD, sR0))
    e("s_cmp_eq_u32 s3, 6")
    e("s_cselect_b32 s%d, 0, s%d" % (sT1, sT1))
    e("s_lshr_b32 s%d, s%d, 26" % (sT0, sR0))
    e("s_and_b32 s%d, s%d, 14" % (sT0, sT0))
    e("s_add_u32 s%d, s%d, s%d" % (sH, sH, sT0))
    e("s_and_b32 s%d, s%d, 15" % (sH, sH))
    e("s_add_u32 s%d, s%d, s%d" % (sH, sH, sT1))
    e("s_lshl_b32 s%d, s%d, 8" % (sH, sH))

    def decode_round():
        e("s_and_b32 s%d, s%d, 0xfff" % (sK0, sR0))
        e("s_bfe_u32 s%d, s%d, 0x9000c" % (sL, sR0))
        e("s_bfe_u32 s%d, s%d, 0x20015" % (sQ0, sR0))
        e("s_lshl_b32 s%d, s%d, 7" % (sQ0, sQ0))
        e("s_add_u32 s%d, s%d, s%d" % (sQ0, sQ0, sK0))
        e("s_add_u32 s%d, s%d, 31" % (sN, sL))
        e("s_lshr_b32 s%d, s%d, 5" % (sN, sN))
        e("s_add_u32 s%d, s%d, s%d" % (sEND, sK0, sL))
        e("s_lshl_b32 s%d, s%d, 12" % (sEND, sEND))
        e("s_sub_u32 s%d, s%d, 3584" % (sEND, sEND))
    def next_round():
        e("s_mov_b32 s%d, s%d" % (sR0, sR1))
        e("s_mov_b32 s%d, 0" % sR1)
        decode_round()
    def srd(d, p):
        e("s_add_u32 s%d, s%d, s%d" % (d, p, sH))
        e("s_addc_u32 s%d, s%d, 0" % (d + 1, p + 1))
        e("s_mov_b32 s%d, 0x20000" % (d + 3))

    decode_round()
    e("s_cmp_lt_u32 s%d, 4" % sW)
    e("s_cbranch_scc1 L_cons")
    if o["prio"]: e("s_setprio 3")
    e("v_lshrrev_b32 v2, 4, v0")
    e("v_and_b32 v3, 1, v2")
    e("v_and_b32 v4, 15, v0")
    e("v_xor_b32 v4, v4, v3")
    e("v_lshlrev_b32 v4, 4, v4")
    e("v_lshl_add_u32 v1, v2, 12, v4")
    e("s_sub_u32 s%d, s%d, 4" % (sT0, sW))
    e("s_lshl_b32 s%d, s%d, 15" % (sT1, sT0))
    e("v_add_u32 v1, s%d, v1" % sT1)
    e("v_add_u32 v2, %d, v1" % (16384 - PIECE))
    e("s_mul_i32 s%d, s%d, %d" % (sWB, sT0, 2 * PIECE))
    e("s_cmp_eq_u32 s%d, 0" % sD)
    e("s_waitcnt lgkmcnt(0)")
    g.stamp()
    if ts: e("s_cmp_eq_u32 s%d, 0" % sD)
    e("s_cbranch_scc0 L_pdual")
    if o["nthi"]:
        e("s_lshr_b32 s%d, s2, 3" % sT0)
        e("s_sub_u32 s%d, s%d, %d" % (sT0, sT0, o["ntlo"]))
        e("s_cmp_lt_u32 s%d, %d" % (sT0, o["nthi"] - o["ntlo"]))
        e("s_cbranch_scc1 L_pkeep")

    def producer(dual, ntkv, sfx):
        nd = 8 if dual else 4
        lead = 2 if dual else o["lead"]
        npos = 4 if dual else 8
        def dma(srd_, soff, v, off):
            f = " nt" if (o["ntq"] if srd_ == sQ else ntkv) else ""
            e("buffer_load_dwordx4 v%d, %s, s%d offen%s%s lds" % (v, sr(srd_, 4), soff, " offset:%d" % off if off else "", f))
        def issue(a, b):
            e("s_mov_b32 m0, s%d" % sLDS)
            e("s_add_u32 s%d, s%d, %d" % (sT0, sLDS, BLK))
            dma(a, sSA, 1, 0); dma(a, sSA, 2, PIECE)
            e("s_mov_b32 m0, s%d" % sT0)
            if dual:
                e("s_add_u32 s%d, s%d, %d" % (sT0, sLDS, 2 * GRP))
                dma(b, sSB, 1, 0); dma(b, sSB, 2, PIECE)
                e("s_mov_b32 m0, s%d" % sT0)
                e("s_add_u32 s%d, s%d, 256" % (sSA2, sSA))
                e("s_add_u32 s%d, s%d, %d" % (sT0, sLDS, 2 * GRP + BLK))
                dma(a, sSA2, 1, 0); dma(a, sSA2, 2, PIECE)
                e("s_mov_b32 m0, s%d" % sT0)
                e("s_add_u32 s%d, s%d, 256" % (sSB2, sSB))
                e("s_add_u32 s%d, s%d, %d" % (sLDS, sLDS, PAIR))
                dma(b, sSB2, 1, 0); dma(b, sSB2, 2, PIECE)
            else:
                e("s_add_u32 s%d, s%d, %d" % (sLDS, sLDS, PAIR))
                dma(b, sSB, 1, 0); dma(b, sSB, 2, PIECE)
            e("s_cmp_eq_u32 s%d, s%d" % (sLDS, sWRAP))
            e("s_cselect_b32 s%d, s%d, s%d" % (sLDS, sWB, sLDS))
        def elem(k):
            if k == "K":
                for x in (sQ, sK, sV): e("s_mov_b32 s%d, s%d" % (x + 2, sEND))
                e("s_lshl_b32 s%d, s%d, 12" % (sSA, sK0))
                e("s_add_u32 s%d, s%d, %d" % (sSB, sSA, 32 * 4096))
                issue(sK, sK)
            elif k == "Q0":
                e("s_lshl_b32 s%d, s%d, 12" % (sSA, sQ0))
                e("s_add_u32 s%d, s%d, %d" % (sSB, sSA, 32 * 4096))
                issue(sQ, sQ)
            elif k == "Q1":
                e("s_add_u32 s%d, s%d, %d" % (sSA, sSA, 64 * 4096))
                e("s_add_u32 s%d, s%d, %d" % (sSB, sSB, 64 * 4096))
                issue(sQ, sQ)
            elif k == "T0":
                e("s_lshl_b32 s%d, s%d, 12" % (sSA, sK0))
                e("s_add_u32 s%d, s%d, %d" % (sSB, sSA, 64 * 4096))
            else:
                issue(sV, sK)
                e("s_add_u32 s%d, s%d, %d" % (sSA, sSA, 32 * 4096))
                e("s_add_u32 s%d, s%d, %d" % (sSB, sSB, 32 * 4096))
        def wait(nel, bar):
            e("s_waitcnt vmcnt(%d)" % (nd * nel))
            g.stamp()
            if bar: e("s_barrier")
        pro = ["K", "Q0"] if dual else ["K", "Q0", "Q1"]
        srd(sQ, 4); srd(sK, 6); srd(sV, 8)
        e("s_add_u32 s%d, s%d, %d" % (sWRAP, sWB, npos * PAIR))
        if dual: e("s_mov_b32 s%d, s%d" % (sLDS, sWB))
        else: e("s_add_u32 s%d, s%d, %d" % (sLDS, sWB, PAIR))
        for k in pro: elem(k)
        elem("T0")
        wait(1, False)
        elem("T")
        wait(1, True)
        for _ in range(lead - 1): elem("T")
        if o["prio"]: e("s_setprio 0")
        e("s_sub_u32 s%d, s%d, %d" % (sT1, sN, lead))
        g.lab("L_pt" + sfx)
        e("s_cmp_eq_u32 s%d, 0" % sT1)
        e("s_cbranch_scc1 L_pe" + sfx)
        wait(lead - 1, True)
        elem("T")
        e("s_sub_u32 s%d, s%d, 1" % (sT1, sT1))
        e("s_branch L_pt" + sfx)
        g.lab("L_pe" + sfx)
        e("s_cmp_eq_u32 s%d, 0" % sR1)
        e("s_cbranch_scc1 L_pd" + sfx)
        def change(skip):
            seq = (["X"] if skip else []) + pro + ["T"] * lead
            proc = [True] * lead + ([False] if skip else []) + [False] * (len(pro) - 1) + [True]
            first_t = True
            for k, bar in zip(seq, proc):
                wait(lead - 1, bar)
                if k == "X": issue(sV, sK)
                elif k == "T":
                    if first_t: elem("T0"); first_t = False
                    elem("T")
                else:
                    if k == "K": next_round()
                    elem(k)
            assert len(seq) == len(proc), (seq, proc)
            e("s_sub_u32 s%d, s%d, %d" % (sT1, sN, lead))
            e("s_branch L_pt" + sfx)
        if dual: change(False)
        else:
            e("s_bitcmp1_b32 s%d, 0" % sN)
            e("s_cbranch_scc1 L_pc1" + sfx)
            change(True)
            g.lab("L_pc1" + sfx)
            change(False)
        g.lab("L_pd" + sfx)
        for n in range(lead - 1, -1, -1): wait(n, True)
        g.stamp()
        e("s_branch L_tsout" if ts else "s_endpgm")
    producer(False, o["ntkv"], "s")
    if o["nthi"]:
        g.lab("L_pkeep")
        producer(False, 0, "k")
    g.lab("L_pdual")
    producer(True, o["ntdual"], "d")

    g.lab("L_cons")
    if o["prio"]: e("s_setprio 1")
    e("v_lshrrev_b32 v%d, 5, v0" % vHF)
    e("v_and_b32 v20, 3, v0")
    e("v_bfe_u32 v21, v0, 4, 1")
    e("v_lshl_add_u32 v21, v20, 1, v21")
    e("v_bfe_u32 v22, v0, 2, 1")
    e("v_bfe_u32 v23, v0, 3, 1")
    e("v_lshl_add_u32 v23, v23, 1, v22")
    e("v_mul_u32_u24 v24, %d, v21" % PIECE)
    e("v_lshl_add_u32 v24, v23, 8, v24")
    e("v_lshl_add_u32 v24, v%d, 7, v24" % vHF)
    e("v_lshl_add_u32 v%d, v22, 4, v24" % vKB0)
    e("v_bfe_u32 v24, v0, 2, 2")
    e("v_mul_u32_u24 v24, %d, v24" % (2 * PIECE))
    e("v_lshl_add_u32 v24, v%d, 8, v24" % vHF)
    e("v_bfe_u32 v25, v0, 4, 1")
    e("v_lshlrev_b32 v25, 5, v25")
    e("v_lshl_add_u32 v25, v20, 3, v25")
    e("v_lshlrev_b32 v26, 4, v%d" % vHF)
    e("v_xor_b32 v25, v25, v26")
    e("v_add_u32 v%d, v24, v25" % vVB)
    e("v_mov_b32 v%d, 0xff800000" % vNINF)
    e("s_lshr_b32 s%d, s%d, 1" % (sT0, sW))
    e("s_mul_i32 s%d, s%d, s%d" % (sT0, sT0, sD))
    e("s_mul_i32 s%d, s%d, %d" % (sRB, sT0, 2 * GRP))
    e("s_lshl_b32 s%d, s%d, 8" % (sT0, sT0))
    e("s_add_u32 s%d, s%d, s%d" % (sH, sH, sT0))
    e("s_cmp_eq_u32 s%d, 0" % sD)
    e("s_cselect_b32 s%d, 3, 1" % sGM)
    e("s_and_b32 s%d, s%d, s%d" % (sQB, sW, sGM))
    e("v_add_u32 v%d, s%d, v%d" % (vKB0, sRB, vKB0))
    e("v_add_u32 v%d, s%d, v%d" % (vVB, sRB, vVB))
    e("v_xor_b32 v%d, 16, v%d" % (vKB1, vKB0))
    e("s_mul_i32 s%d, s%d, %d" % (sT0, sW, 32 * SPITCH))
    e("s_add_u32 s%d, s%d, %d" % (sT0, sT0, STG))
    e("v_and_b32 v24, 31, v0")
    e("v_mul_u32_u24 v24, %d, v24" % SPITCH)
    e("v_lshl_add_u32 v24, v%d, 3, v24" % vHF)
    e("v_add_u32 v%d, s%d, v24" % (vSW, sT0))
    e("v_lshrrev_b32 v24, 3, v0")
    e("v_mul_u32_u24 v24, %d, v24" % SPITCH)
    e("v_and_b32 v25, 7, v0")
    e("v_lshl_add_u32 v24, v25, 4, v24")
    e("v_add_u32 v%d, s%d, v24" % (vSR, sT0))
    e("v_bfe_u32 v24, v0, 3, 2")
    e("v_lshl_add_u32 v24, v24, 3, v%d" % vHF)
    e("v_lshlrev_b32 v24, 12, v24")
    e("v_lshl_add_u32 v%d, v25, 4, v24" % vOOF)
    e("s_mov_b32 s%d, 0" % sG)
    e("s_mov_b32 s%d, 0x%08x" % (sC, f2u((128 ** -0.5) * 1.4426950408889634)))
    for i in range(0, 64, 2): e("v_mov_b64 %s, 0" % vr(O + i, 2))
    e("s_waitcnt lgkmcnt(0)")
    srd(sO, 12)
    g.lab("L_cround")
    e("s_mov_b32 s%d, s%d" % (sO + 2, sEND))
    e("s_lshl_b32 s%d, s%d, 5" % (sT0, sQB))
    e("s_add_u32 s%d, s%d, s%d" % (sT0, sT0, sQ0))
    e("s_lshl_b32 s%d, s%d, 12" % (sO0, sT0))
    for j in range(1, 4): e("s_add_u32 s%d, s%d, %d" % (sO0 + j, sO0, j * 8192))
    e("s_sub_u32 s%d, s%d, 1" % (sT0, sN))
    e("s_lshl_b32 s%d, s%d, 5" % (sT0, sT0))
    e("s_sub_u32 s%d, s%d, s%d" % (sT0, sL, sT0))
    e("v_sub_u32 v%d, s%d, v%d" % (vTMP, sT0, vHF))
    for rr in range(16):
        kc = 8 * (rr % 4) + 4 * (rr // 8) + 2 * ((rr // 4) % 2)
        e("v_cmp_lt_i32 %s, %d, v%d" % (sr(sMASK + 2 * rr, 2), kc, vTMP))
    for i in range(0, 16, 2): e("v_mov_b64 %s, 0" % vr(CI + i, 2))
    e("v_mov_b32 v%d, 0" % vL)
    e("s_mul_i32 s%d, s%d, %d" % (sGOFF, sG, GRP))
    e("s_add_u32 s%d, s%d, %d" % (sT0, sGOFF, PAIR))
    e("s_add_u32 s%d, s%d, 1" % (sG, sG))
    e("s_and_b32 s%d, s%d, s%d" % (sG, sG, sGM))
    e("s_mul_i32 s%d, s%d, %d" % (sT1, sG, GRP))
    e("s_cmp_eq_u32 s%d, 0" % sD)
    e("s_cselect_b32 s%d, s%d, s%d" % (sGOFF, sT0, sGOFF))
    e("s_cselect_b32 s%d, s%d, s%d" % (sT0, sT1, sT0))
    e("s_addc_u32 s%d, s%d, 0" % (sG, sG))
    e("s_and_b32 s%d, s%d, s%d" % (sG, sG, sGM))
    e("s_mul_i32 s%d, s%d, %d" % (sT1, sQB, BLK))
    e("s_add_u32 s%d, s%d, s%d" % (sT0, sT0, sT1))
    e("v_add_u32 v20, s%d, v%d" % (sT0, vKB0))
    e("v_add_u32 v21, s%d, v%d" % (sT0, vKB1))
    e("v_add_u32 v%d, s%d, v%d" % (vKA0, sGOFF, vKB0))
    e("v_add_u32 v%d, s%d, v%d" % (vKA1, sGOFF, vKB1))
    e("s_mul_i32 s%d, s%d, %d" % (sGOFF, sG, GRP))
    e("s_sub_u32 s%d, s%d, 3" % (sCNT, sN))
    e("s_mov_b32 s%d, 0" % sSTG)
    def kread(dst, s_, off, a0=vKA0, a1=vKA1):
        return "ds_read_b128 %s, v%d offset:%d" % (vr(dst + 4 * s_, 4), a1 if s_ & 1 else a0, off + (s_ >> 1) * 32)
    def qk(s_, buf):
        c = CI if s_ == 0 else S[buf]
        return "v_mfma_f32_32x32x16_bf16 %s, %s, %s, %s" % (vr(S[buf], 16), vr(KF + 4 * s_, 4), vr(Q + 4 * s_, 4), vr(c, 16))
    g.stamp()
    e("s_barrier")
    g.stamp()
    if qs:
        for s_ in range(8): e(kread(Q, s_, 0, 20, 21))
        for s_ in range(8): e(kread(KF, s_, 0))
        for s_ in range(8):
            e("s_waitcnt lgkmcnt(%d)" % (15 - s_ if s_ == 0 else min(15, 15 - s_ + s_)))
            g.L.pop()
            e("s_waitcnt lgkmcnt(%d)" % (15 - s_))
            for i in range(4 * s_, 4 * s_ + 4):
                t = 22 + 2 * (i % 4)
                e("v_lshlrev_b32 v%d, 16, v%d" % (t, Q + i))
                e("v_and_b32 v%d, 0xffff0000, v%d" % (t + 1, Q + i))
                e("v_pk_mul_f32 %s, %s, %s op_sel_hi:[1,0]" % (vr(t, 2), vr(t, 2), sr(sC, 2)))
                e("v_cvt_pk_bf16_f32 v%d, v%d, v%d" % (Q + i, t, t + 1))
            if s_ > 0:
                if s_ == 1: e("s_waitcnt lgkmcnt(0)")
                e(qk(s_ - 1, 0))
        e("s_nop 1")
        e(qk(7, 0))
        for s_ in range(8): e(kread(KF, s_, BLK))
    else:
        for s_ in range(8):
            e(kread(Q, s_, 0, 20, 21)); e(kread(KF, s_, 0))
        for s_ in range(8):
            e("s_waitcnt lgkmcnt(%d)" % (14 - s_))
            e(qk(s_, 0))
            e(kread(KF, s_, BLK))
    e("v_add_u32 v%d, s%d, v%d" % (vKA0, sGOFF, vKB0))
    e("v_add_u32 v%d, s%d, v%d" % (vKA1, sGOFF, vKB1))
    e("v_add_u32 v%d, s%d, v%d" % (vVA, sGOFF, vVB))
    e("s_nop 7")
    if not qs: e("s_nop 1")
    s0 = S[0]
    e("v_max3_f32 v%d, v%d, v%d, v%d" % (vTMP, s0, s0 + 1, s0 + 2))
    e("v_max3_f32 v%d, v%d, v%d, v%d" % (vTMP2, s0 + 3, s0 + 4, s0 + 5))
    for i in range(6, 14, 4):
        e("v_max3_f32 v%d, v%d, v%d, v%d" % (vTMP, vTMP, s0 + i, s0 + i + 1))
        e("v_max3_f32 v%d, v%d, v%d, v%d" % (vTMP2, vTMP2, s0 + i + 2, s0 + i + 3))
    e("v_max3_f32 v%d, v%d, v%d, v%d" % (vTMP, vTMP, s0 + 14, s0 + 15))
    e("v_max_f32 v%d, v%d, v%d" % (vTMP, vTMP, vTMP2))
    e("v_mov_b32 v%d, v%d" % (vTMP2, vTMP))
    e("s_nop 1")
    e("v_permlane32_swap_b32 v%d, v%d" % (vTMP, vTMP2))
    e("v_max_f32 v%d, v%d, v%d" % (vTMP, vTMP, vTMP2))
    if qs:
        for i in range(16): e("v_sub_f32 v%d, v%d, v%d" % (s0 + i, s0 + i, vTMP))
        for i in range(16): e("v_sub_f32 v%d, 0, v%d" % (CI + i, vTMP))
    else:
        e("v_mul_f32 v%d, s%d, v%d" % (vMC, sC, vTMP))
    def F(buf, i):
        r = S[buf] + i
        return [] if qs else ["v_fma_f32 v%d, v%d, s%d, -v%d" % (r, r, sC, vMC)]
    def X(buf, i):
        r = S[buf] + i
        return ["v_exp_f32 v%d, v%d" % (r, r)]
    def C(buf, j): return ["v_cvt_pk_bf16_f32 v%d, v%d, v%d" % (P + j, S[buf] + 2 * j, S[buf] + 2 * j + 1)]
    def T(buf, i):
        if i == 1: return ["v_add_f32 v%d, v%d, v%d" % (vT, S[buf], S[buf] + 1)]
        return ["v_add_f32 v%d, v%d, v%d" % (vT, vT, S[buf] + i)]
    def A(buf, i): return ["v_add_f32 v%d, v%d, v%d" % (vL, vL, S[buf] + i)]
    for i in range(16):
        for x in F(0, i): e(x)
    for i in range(8):
        for x in X(0, i): e(x)
    e("s_nop 0")
    for j in range(4): e(C(0, j)[0])
    for i in range(1, 8): e(T(0, i)[0])
    if ts == 2: g.stamp_issue()
    else: g.stamp()
    def V(n, off):
        ks, db, sec = n >> 3, (n >> 1) & 3, n & 1
        return ["ds_read_b64_tr_b16 %s, v%d offset:%d" % (vr(VF + ks * 16 + db * 4 + sec * 2, 2), vVA, off + ks * PIECE + sec * 512 + db * 64)]
    def pv(n):
        ks, db = n >> 2, n & 3
        return "v_mfma_f32_32x32x16_bf16 %s, %s, %s, %s" % (vr(O + 16 * db, 16), vr(VF + ks * 16 + db * 4, 4), vr(P + 4 * ks, 4), vr(O + 16 * db, 16))
    def filt(gl):
        if o["noK"]: gl = [x for x in gl if not x.startswith("ds_read_b128")]
        if o["noV"]: gl = [x for x in gl if not x.startswith("ds_read_b64")]
        if o["noX"]: gl = [x for x in gl if not (x.startswith("v_exp") or x.startswith("v_cvt") or x.startswith("v_fma"))]
        if o["noA"]: gl = [x for x in gl if not x.startswith("v_add_f32")]
        return gl
    LT = ["v_add_f32 v%d, v%d, v%d" % (vL, vL, vT)]
    g.L.append(".p2align 6")
    for h in range(2):
        cur, nxt = h, 1 - h
        off = h * PAIR
        K_ = lambda s_: [kread(KF, s_, off + BLK)]
        V_ = lambda n: V(n, off)
        gaps = [
            ["s_barrier"] + V_(0) + V_(1) + X(cur, 8) + LT,
            V_(2) + V_(3) + X(cur, 9) + X(cur, 10),
            V_(4) + V_(5) + X(cur, 11) + C(cur, 4) + A(cur, 8),
            V_(6) + V_(7) + X(cur, 12) + C(cur, 5) + A(cur, 9),
            V_(8) + V_(9) + X(cur, 13) + A(cur, 10) + A(cur, 11),
            V_(10) + V_(11) + X(cur, 14) + C(cur, 6) + A(cur, 12),
            V_(12) + V_(13) + X(cur, 15) + A(cur, 13) + A(cur, 14),
            V_(14) + V_(15) + C(cur, 7) + A(cur, 15) + ["s_waitcnt lgkmcnt(8)"],
            K_(0) + K_(1),
            K_(2) + K_(3),
            K_(4) + K_(5) + F(nxt, 0) + F(nxt, 1) + X(nxt, 0) + F(nxt, 2),
            K_(6) + K_(7) + X(nxt, 1) + F(nxt, 3) + X(nxt, 2) + ["s_waitcnt lgkmcnt(8)"],
            F(nxt, 4) + X(nxt, 3) + F(nxt, 5) + X(nxt, 4) + C(nxt, 0) + T(nxt, 1) + F(nxt, 6),
            X(nxt, 5) + F(nxt, 7) + X(nxt, 6) + C(nxt, 1) + T(nxt, 2) + T(nxt, 3) + F(nxt, 8),
            X(nxt, 7) + C(nxt, 2) + T(nxt, 4) + T(nxt, 5) + F(nxt, 9) + F(nxt, 10) + F(nxt, 11) + F(nxt, 12),
            C(nxt, 3) + T(nxt, 6) + T(nxt, 7) + F(nxt, 13) + F(nxt, 14) + F(nxt, 15),
        ]
        if h == 1:
            gaps[8] += ["s_add_u32 s%d, s%d, 1" % (sG, sG), "s_and_b32 s%d, s%d, s%d" % (sG, sG, sGM), "s_mul_i32 s%d, s%d, %d" % (sGOFF, sG, GRP),
                        "v_add_u32 v%d, s%d, v%d" % (vVA, sGOFF, vVB)]
            gaps[12] += ["v_add_u32 v%d, s%d, v%d" % (vKA0, sGOFF, vKB0)]
            gaps[13] += ["v_add_u32 v%d, s%d, v%d" % (vKA1, sGOFF, vKB1)]
        gaps[9] += ["s_sub_u32 s%d, s%d, 1" % (sCNT, sCNT)]
        gaps[15] += ["s_cbranch_scc1 L_ev%d" % h]
        if h == 1: gaps[15] += ["s_branch L_h0"]
        g.lab("L_h%d" % h)
        e("s_waitcnt lgkmcnt(0)")
        if ts == 2:
            g.stamp_write()
        for n in range(16):
            e(qk(n, nxt) if n < 8 else pv(n - 8))
            if ts == 2 and n == 13: g.stamp_issue()
            for x in filt(gaps[n]): e(x)
    for h in range(2):
        g.lab("L_ev%d" % h)
        e("s_cmp_lg_u32 s%d, 0" % sSTG)
        e("s_cbranch_scc1 L_tail%d" % (1 - h))
        e("s_mov_b32 s%d, 1" % sSTG)
        e("s_mov_b32 s%d, 0" % sCNT)
        for rr in range(16):
            e("v_cndmask_b32 v%d, v%d, v%d, %s" % (CI + rr, vNINF, CI + rr, sr(sMASK + 2 * rr, 2)))
        e("s_branch L_h%d" % (1 - h))
    for h in range(2):
        cur = h; off = h * PAIR
        V_ = lambda n: V(n, off)
        g.lab("L_tail%d" % h)
        if ts == 2:
            e("s_waitcnt lgkmcnt(0)"); g.stamp_write()
        e("s_barrier")
        for n in range(8): e(V_(n)[0])
        e(LT[0])
        for n in range(8, 16):
            e(V_(n)[0]); e(X(cur, n)[0])
        e("s_waitcnt lgkmcnt(14)")
        e(pv(0))
        for x in C(cur, 4) + C(cur, 5) + A(cur, 8) + A(cur, 9) + ["s_waitcnt lgkmcnt(12)"]: e(x)
        e(pv(1))
        for x in C(cur, 6) + C(cur, 7) + A(cur, 10) + A(cur, 11) + ["s_waitcnt lgkmcnt(10)"]: e(x)
        e(pv(2))
        for x in A(cur, 12) + A(cur, 13) + A(cur, 14) + A(cur, 15) + ["s_waitcnt lgkmcnt(8)"]: e(x)
        e(pv(3))
        e("v_mov_b32 v%d, v%d" % (vTMP, vL))
        e("s_waitcnt lgkmcnt(0)")
        e(pv(4))
        e("v_permlane32_swap_b32 v%d, v%d" % (vTMP, vL))
        e("v_add_f32 v%d, v%d, v%d" % (vL, vL, vTMP))
        e(pv(5))
        e("v_rcp_f32 v%d, v%d" % (vRI, vL))
        e(pv(6))
        e(pv(7))
        if h == 1:
            e("s_add_u32 s%d, s%d, 1" % (sG, sG)); e("s_and_b32 s%d, s%d, s%d" % (sG, sG, sGM))
        if h == 0: e("s_branch L_epi")
    g.lab("L_epi")
    g.stamp()
    e("s_nop 7")
    W = VF; R = KF
    stf = o["stf"].replace(",", " ")
    for hh in range(2):
        for db in (2 * hh, 2 * hh + 1):
            ob = O + 16 * db; w = W + 8 * db
            for qd in range(4):
                for k in (2 * qd, 2 * qd + 1):
                    e("v_pk_mul_f32 %s, %s, %s op_sel_hi:[1,0]" % (vr(ob + 2 * k, 2), vr(ob + 2 * k, 2), vr(vRI, 2)))
                for k in (2 * qd, 2 * qd + 1):
                    e("v_cvt_pk_bf16_f32 v%d, v%d, v%d" % (w + k, ob + 2 * k, ob + 2 * k + 1))
                e("ds_write_b64 v%d, %s offset:%d" % (vSW, vr(w + 2 * qd, 2), (db & 1) * 64 + qd * 16))
        for j in range(4):
            e("ds_read_b128 %s, v%d offset:%d" % (vr(R + 16 * hh + 4 * j, 4), vSR, j * 8 * SPITCH))
        if hh == 1:
            for i in range(0, 64, 2): e("v_mov_b64 %s, 0" % vr(O + i, 2))
        if hh == 0: continue
    body = g.L
    idx = [i for i, x in enumerate(body) if x.strip().startswith("ds_write_b64")]
    ins_at = idx[-8 + 3] + 1
    st0 = []
    for j in range(4):
        st0.append("    s_waitcnt lgkmcnt(%d)" % (4 + 3 - j))
        st0.append("    buffer_store_dwordx4 %s, v%d, %s, s%d offen%s" % (vr(R + 4 * j, 4), vOOF, sr(sO, 4), sO0 + j, stf))
    body[ins_at:ins_at] = st0
    for j in range(4):
        e("s_waitcnt lgkmcnt(%d)" % (3 - j))
        e("buffer_store_dwordx4 %s, v%d, %s, s%d offen offset:128%s" % (vr(R + 16 + 4 * j, 4), vOOF, sr(sO, 4), sO0 + j, stf))
    e("s_cmp_eq_u32 s%d, 0" % sR1)
    e("s_cbranch_scc1 L_cdone")
    next_round()
    e("s_branch L_cround")
    g.lab("L_cdone")
    if ts:
        g.stamp()
        e("s_waitcnt vmcnt(0)")
        g.stamp()
        g.lab("L_tsout")
        e("s_lshl_b32 s%d, s2, 3" % sT0)
        e("s_add_u32 s%d, s%d, s%d" % (sT0, sT0, sW))
        e("s_lshl_b32 s%d, s%d, 9" % (sT0, sT0))
        e("s_add_u32 s16, s16, s%d" % sT0)
        e("s_addc_u32 s17, s17, 0")
        e("v_lshlrev_b32 v1, 3, v0")
        e("global_store_dwordx2 v1, v[30:31], s[16:17]")
        if o["diag"] >= 0:
            e("v_readlane_b32 s60, v31, 0")
            e("v_readlane_b32 s61, v31, %d" % o["diag"])
            e("s_nop 4")
            e("s_sub_u32 s61, s61, s60")
            e("s_mul_i32 s61, s61, 10")
            e("s_cmp_eq_u32 s2, %d" % o["diagwg"])
            e("s_cselect_b32 s61, s61, 0")
            e("s_cmp_eq_u32 s%d, %d" % (sW, o["diagwave"]))
            e("s_cselect_b32 s61, s61, 0")
            e("s_add_u32 s61, s61, 5000")
            g.lab("L_spin")
            e("s_memrealtime s[52:53]")
            e("s_waitcnt lgkmcnt(0)")
            e("s_sub_u32 s52, s52, s60")
            e("s_cmp_lt_u32 s52, s61")
            e("s_cbranch_scc1 L_spin")
    g.lab("L_end")
    e("s_endpgm")
    g.L.append(""".section .rodata,"a"
.p2align 6
.amdhsa_kernel %s
  .amdhsa_next_free_vgpr 256
  .amdhsa_next_free_sgpr 102
  .amdhsa_accum_offset 256
  .amdhsa_group_segment_fixed_size 0
  .amdhsa_kernarg_size 56
  .amdhsa_user_sgpr_count 2
  .amdhsa_user_sgpr_kernarg_segment_ptr 1
  .amdhsa_system_sgpr_workgroup_id_x 1
.end_amdhsa_kernel""" % KN)
    return "\n".join(g.L) + "\n"

if __name__ == "__main__":
    out = sys.argv[1]
    opts = {}
    for a in sys.argv[2:]:
        k, v = a.split("="); opts[k] = v if "," in v else int(v)
    open(out, "w").write(gen(**opts))
```

```python
import sys, struct

KN = "standalone__ragged_sequences_packed_sequences__ragged_kernel"
PIECE, BLK, PAIR, GRP = 1056, 8448, 16896, 33792
RING = 8 * PAIR
STG = RING
LDS = RING + 4 * 4096

SEGS = [(0, 370), (370, 108), (478, 143), (621, 363), (984, 165), (1149, 432), (1581, 100), (1681, 465)]
def pk(seg, c, dual=0):
    k0, L = SEGS[seg]
    return k0 | (L << 12) | (c << 21) | (dual << 26)
def f2u(x): return struct.unpack("<I", struct.pack("<f", x))[0]

DEF = dict(ts=0, prio=1, diag=-1, diagwg=0, diagwave=4, stf=",sc0,sc1", lead=4, ntlo=8, nthi=20, delay=0, selfclk=0,
           forcebad=0, touch="", leadk=4, keepf="", ntf=",nt", dualf=",nt", t0wait=0, hmap=0, hswap=0, sched=5)

class G:
    def __init__(s, **o):
        s.o = dict(DEF); s.o.update(o); s.L = []
    def e(s, x): s.L.append("    " + x)
    def c(s, x): s.L.append("    ; " + x)
    def lab(s, x): s.L.append(x + ":")
    def stamp_issue(s):
        if s.o["ts"]: s.e("s_memtime s[52:53]"); s.e("s_memrealtime s[54:55]")
    def stamp_write(s):
        if s.o["ts"]:
            s.e("s_mov_b32 m0, s56"); s.e("s_add_u32 s56, s56, 1"); s.e("v_writelane_b32 v30, s52, m0"); s.e("v_writelane_b32 v31, s54, m0")
    def fs(s):
        if s.o["ts"] == 3:
            s.nfs = getattr(s, "nfs", 0); r = 64 + 2 * s.nfs; s.nfs += 1
            return ["s_memtime s[%d:%d]" % (r, r + 1)]
        return []
    def fs_flush(s):
        if s.o["ts"] == 3:
            s.e("s_waitcnt lgkmcnt(0)")
            for k in range(s.nfs):
                s.e("s_mov_b32 m0, s56"); s.e("s_add_u32 s56, s56, 1"); s.e("v_writelane_b32 v30, s%d, m0" % (64 + 2 * k)); s.e("v_writelane_b32 v31, s54, m0")
    def stamp(s):
        if s.o["ts"]: s.stamp_issue(); s.e("s_waitcnt lgkmcnt(0)"); s.stamp_write()

O = 192; S = [160, 176]; CI = 144; Q = 112; KF = 80; VF = 48; P = 40
vKA, vVA, vKB, vVB, vQA = 1, 2, 3, 4, 5
vL, vL2, vNINF, vHF, vOOF, vTMP, vTMP2, vSR, vM, vRI, vDMA = 6, 7, 8, 9, 10, 11, 12, 13, 14, 16, 18
vSR2 = 15
vSW = 20
vT = 32
sQ, sK, sV, sO = 20, 24, 28, 32
sW, sH = 18, 19
sR0, sR1, sD = 36, 37, 38
sK0, sL, sQ0, sN, sEND = 39, 40, 41, 42, 43
sG, sGOFF, sCNT, sSTG, sT0, sT1, sC, sGM = 44, 45, 46, 47, 48, 49, 50, 51
sQB, sBAD, sBIT, sO0, sRS0, sRS1, sHI, sLO = 57, 58, 59, 60, 96, 97, 98, 99
sLDS, sWRAP, sSA, sSB, sWB, sSA2, sSB2, sTA = 44, 45, 46, 47, 50, 51, 57, 58
sMASK = 64

def vr(b, n=1): return "v%d" % b if n == 1 else "v[%d:%d]" % (b, b + n - 1)
def sr(b, n=1): return "s%d" % b if n == 1 else "s[%d:%d]" % (b, b + n - 1)

KD = """.section .rodata,"a"
.p2align 6
.amdhsa_kernel %s
  .amdhsa_next_free_vgpr 256
  .amdhsa_next_free_sgpr 102
  .amdhsa_accum_offset 256
  .amdhsa_group_segment_fixed_size 0
  .amdhsa_kernarg_size 56
  .amdhsa_user_sgpr_count 2
  .amdhsa_user_sgpr_kernarg_segment_ptr 1
  .amdhsa_system_sgpr_workgroup_id_x 1
.end_amdhsa_kernel""" % KN

def kread(dst, s_, off, a=vKA):
    return "ds_read_b128 %s, v%d offset:%d" % (vr(dst + 4 * s_, 4), a, off + s_ * 32)
def qk(s_, buf):
    c = CI if s_ == 0 else S[buf]
    return "v_mfma_f32_32x32x16_bf16 %s, %s, %s, %s" % (vr(S[buf], 16), vr(KF + 4 * s_, 4), vr(Q + 4 * s_, 4), vr(c, 16))
def vread(n, off):
    ks, db, sec = n >> 3, (n >> 1) & 3, n & 1
    return "ds_read_b64_tr_b16 %s, v%d offset:%d" % (vr(VF + ks * 16 + db * 4 + sec * 2, 2), vVA, off + ks * PIECE + sec * 512 + db * 64)
def pv(n):
    ks, db = n >> 2, n & 3
    return "v_mfma_f32_32x32x16_bf16 %s, %s, %s, %s" % (vr(O + 16 * db, 16), vr(VF + ks * 16 + db * 4, 4), vr(P + 4 * ks, 4), vr(O + 16 * db, 16))
def op(x, h):
    cur, nxt = h, 1 - h
    off = h * PAIR
    if x == "B": return ["s_barrier"]
    if x[0] == "W": return ["s_waitcnt lgkmcnt(%s)" % x[1:].rstrip("ab")]
    if x == "SUB": return ["s_sub_u32 s%d, s%d, 1" % (sCNT, sCNT)]
    if x == "BR": return ["s_cbranch_scc1 L_ev%d" % h] + (["s_branch L_h0"] if h else [])
    if x == "H1": return ["s_add_u32 s%d, s%d, 1" % (sG, sG)] if not h else []
    if x == "H2": return ["s_and_b32 s%d, s%d, s%d" % (sG, sG, sGM)] if not h else []
    if x == "H3": return ["s_mul_i32 s%d, s%d, %d" % (sGOFF, sG, GRP)] if not h else []
    if x == "UV": return ["v_add_u32 v%d, s%d, v%d" % (vVA, sGOFF, vVB)] if h else []
    if x == "UK": return ["v_add_u32 v%d, s%d, v%d" % (vKA, sGOFF, vKB)] if h else []
    if x[0] == "M": return [pv(int(x[1:]))]
    if x[0] == "V": return [vread(int(x[1:]), off)]
    if x[0] == "K": return [kread(KF, int(x[1:]), off + BLK)]
    b = S[cur] if x[1] == "c" else S[nxt]
    i = int(x[2:])
    if x[0] == "X": return ["v_exp_f32 v%d, v%d" % (b + i, b + i)]
    if x[0] == "C": return ["v_cvt_pk_bf16_f32 v%d, v%d, v%d" % (P + i, b + 2 * i, b + 2 * i + 1)]
    if x[0] == "A": return ["v_add_f32 v%d, v%d, v%d" % (vL + (i & 1), vL + (i & 1), b + i)]
    raise ValueError(x)
def parse(s): return [g.split() for g in s.strip().split("|")]
SCHED = {}
SCHED[5] = parse("""V0 V1 Xc6 Xc7 | V2 V3 Xc8 Cc3 Ac0 | V4 V5 Xc9 Ac1 Ac2 | V6 V7 Xc10 Cc4 Ac3 | V8 V9 Xc11 Ac4 Ac5 | V10 V11 Xc12 Cc5 Ac6 | V12 V13 Xc13 Ac7 Ac8 | V14 V15 Xc14 Cc6 W8a |
 K0 K1 Xc15 Ac9 UV | K2 K3 Cc7 Ac10 Ac11 Ac12 | K4 K5 Xn0 Ac13 Ac14 | K6 K7 Xn1 Ac15 W8b | B H1 Xn2 Cn0 | H2 H3 Xn3 Xn4 UK | SUB Xn5 Cn1 | Cn2 BR""")
TAIL = """V0 V1 V8 V9 V2 V3 V10 V11 V4 V5 V12 V13 V6 V7 V14 V15 Xc6 Xc7 Xc8 Cc3 Xc9 Xc10 Xc11 Cc4 Cc5 W14 M0 Xc12 Xc13 Xc14 Xc15 Cc6 Ac0 Cc7 Ac1 Ac2 W12 M4
 Ac3 Ac4 Ac5 Ac6 Ac7 Ac8 W10 M1 Ac9 Ac10 Ac11 Ac12 Ac13 Ac14 W8 M5 Ac15""".split()

def gen(**opts):
    g = G(**opts); o = g.o; e = g.e
    ts = o["ts"]
    stf = o["stf"].replace(",", " ")
    g.L.append("""; Ragged (block-diagonal) attention, T=2146 H=16 D=128, bf16 in/out.
; kernarg: q,k,v,seg_ids,out,debug,ws.   Segment boundaries are constants of the problem (cu = 0,370,478,621,984,1149,1581,1681,2146).
; One workgroup per CU: waves 0-3 compute (32 query rows each, S^T = K Q^T, O^T = V^T P^T on MFMA 32x32x16),
; waves 4-7 stream Q/K/V tiles HBM -> LDS ring with LDS-DMA.
; softmax: exp2(s - ref) with ref = 0; every row sum is range-checked and a wave whose rows leave the safe range
; recomputes them with the true running max (L_slow).
; @launch grid=(256,1,1) block=(512,1,1) lds=%d
.amdgcn_target "amdgcn-amd-amdhsa--gfx950"
.text
.globl %s
.p2align 8
.type %s,@function
%s:""" % (LDS, KN, KN, KN))
    if ts:
        e("s_mov_b32 s56, 0"); e("v_mov_b32 v30, 0"); e("v_mov_b32 v31, 0"); g.stamp()
    e("s_load_dwordx8 s[4:11], s[0:1], 0")
    e("s_load_dwordx2 s[12:13], s[0:1], 32")
    if ts: e("s_load_dwordx2 s[16:17], s[0:1], 48")
    e("s_cmp_ge_u32 s2, 256")
    e("s_cbranch_scc1 L_end")
    e("v_lshrrev_b32 v1, 6, v0")
    e("v_and_b32 v0, 63, v0")
    e("v_readfirstlane_b32 s%d, v1" % sW)
    g.c("workgroup -> job: xcd = id&7, j = id>>3, slot = j>>1, hb = j&1")
    e("s_and_b32 s%d, s2, 7" % sH)
    e("s_lshl_b32 s%d, s%d, 1" % (sH, sH))
    e("s_lshr_b32 s3, s2, 4")
    e("s_bfe_u32 s%d, s2, 0x10003" % sT1)
    if o["hswap"]:
        e("s_and_b32 s%d, s2, 1" % sT0); e("s_xor_b32 s%d, s%d, s%d" % (sT1, sT1, sT0))
    HM = {0: {6: 6, 4: 4, 2: 2, 0: 0, 1: 1}, 1: {6: 3, 4: 2, 2: 1, 0: 0, 1: 7}, 2: {6: 0, 4: 0, 2: 0, 0: 0, 1: 0}}[o['hmap']]
    ho = lambda x: HM[x] << 27
    def K(seg, first, off): return (pk(seg, 0) - (first << 21) + ho(off)) & 0xffffffff
    e("s_mov_b32 s%d, 0x%x" % (sR0, K(3, 13, 6)))
    e("s_cmp_lt_u32 s3, 13"); e("s_cselect_b32 s%d, 0x%x, s%d" % (sR0, K(0, 10, 4), sR0))
    e("s_cmp_lt_u32 s3, 10"); e("s_cselect_b32 s%d, 0x%x, s%d" % (sR0, K(5, 7, 2), sR0))
    e("s_cmp_lt_u32 s3, 4");  e("s_cselect_b32 s%d, 0x%x, s%d" % (sR0, K(7, 0, 0), sR0))
    e("s_lshl_b32 s%d, s3, 21" % sT0)
    e("s_add_u32 s%d, s%d, s%d" % (sR0, sR0, sT0))
    e("s_cmp_eq_u32 s3, 4")
    e("s_cselect_b32 s%d, 0x%x, s%d" % (sR0, pk(4, 0) + ho(1), sR0)); e("s_cselect_b32 s%d, 0x%x, 0" % (sR1, pk(6, 0)))
    e("s_cmp_eq_u32 s3, 5")
    e("s_cselect_b32 s%d, 0x%x, s%d" % (sR0, pk(2, 0) + ho(1), sR0)); e("s_cselect_b32 s%d, 0x%x, s%d" % (sR1, pk(1, 0), sR1))
    e("s_lshr_b32 s%d, s2, 3" % sT0)
    e("s_cmp_eq_u32 s%d, 12" % sT0)
    e("s_cselect_b32 s%d, 0x%x, s%d" % (sR0, pk(4, 1, 1) + ho(1), sR0)); e("s_cselect_b32 s%d, 0x%x, s%d" % (sR1, pk(2, 1), sR1))
    e("s_cmp_eq_u32 s%d, 13" % sT0)
    e("s_cselect_b32 s%d, 0x%x, s%d" % (sR0, pk(5, 3, 1) + ho(2), sR0))
    e("s_bfe_u32 s%d, s%d, 0x1001a" % (sD, sR0))
    e("s_cmp_eq_u32 s3, 6")
    e("s_cselect_b32 s%d, 0, s%d" % (sT1, sT1))
    e("s_lshr_b32 s%d, s%d, 26" % (sT0, sR0))
    e("s_and_b32 s%d, s%d, 14" % (sT0, sT0))
    e("s_add_u32 s%d, s%d, s%d" % (sH, sH, sT0))
    e("s_and_b32 s%d, s%d, 15" % (sH, sH))
    e("s_add_u32 s%d, s%d, s%d" % (sH, sH, sT1))
    e("s_lshl_b32 s%d, s%d, 8" % (sH, sH))

    def decode_round():
        e("s_and_b32 s%d, s%d, 0xfff" % (sK0, sR0))
        e("s_bfe_u32 s%d, s%d, 0x9000c" % (sL, sR0))
        e("s_bfe_u32 s%d, s%d, 0x20015" % (sQ0, sR0))
        e("s_lshl_b32 s%d, s%d, 7" % (sQ0, sQ0))
        e("s_add_u32 s%d, s%d, s%d" % (sQ0, sQ0, sK0))
        e("s_add_u32 s%d, s%d, 31" % (sN, sL))
        e("s_lshr_b32 s%d, s%d, 5" % (sN, sN))
        e("s_add_u32 s%d, s%d, s%d" % (sEND, sK0, sL))
        e("s_lshl_b32 s%d, s%d, 12" % (sEND, sEND))
        e("s_sub_u32 s%d, s%d, 3584" % (sEND, sEND))
    def next_round():
        e("s_mov_b32 s%d, s%d" % (sR0, sR1))
        e("s_mov_b32 s%d, 0" % sR1)
        decode_round()
    def srd(d, p):
        e("s_add_u32 s%d, s%d, s%d" % (d, p, sH))
        e("s_addc_u32 s%d, s%d, 0" % (d + 1, p + 1))
        e("s_mov_b32 s%d, 0x20000" % (d + 3))
    def dma_lane_offset(dst, t0, t1):
        e("v_lshrrev_b32 v%d, 4, v0" % t0)
        e("v_and_b32 v%d, 1, v%d" % (t1, t0))
        e("v_and_b32 v%d, 15, v0" % dst)
        e("v_xor_b32 v%d, v%d, v%d" % (dst, dst, t1))
        e("v_lshlrev_b32 v%d, 4, v%d" % (dst, dst))
        e("v_lshl_add_u32 v%d, v%d, 12, v%d" % (dst, t0, dst))

    decode_round()
    e("s_cmp_lt_u32 s%d, 4" % sW)
    e("s_cbranch_scc1 L_cons")
    g.c("================= producer waves =================")
    if o["prio"]: e("s_setprio 3")
    dma_lane_offset(1, 2, 3)
    e("s_sub_u32 s%d, s%d, 4" % (sT0, sW))
    e("s_lshl_b32 s%d, s%d, 15" % (sT1, sT0))
    e("v_add_u32 v1, s%d, v1" % sT1)
    e("v_add_u32 v2, %d, v1" % (16384 - PIECE))
    e("s_mul_i32 s%d, s%d, %d" % (sWB, sT0, 2 * PIECE))
    e("s_lshr_b32 s%d, s2, 3" % sT1)
    e("s_waitcnt lgkmcnt(0)")
    g.stamp()
    srd(sQ, 4); srd(sK, 6); srd(sV, 8)
    e("s_cmp_eq_u32 s%d, 0" % sD)
    e("s_cbranch_scc0 L_pdual")
    e("s_sub_u32 s%d, s%d, %d" % (sT0, sT1, o["ntlo"]))
    e("s_cmp_lt_u32 s%d, %d" % (sT0, o["nthi"] - o["ntlo"]))
    e("s_cbranch_scc1 L_pkeep")

    def producer(dual, ntkv, sfx, multi):
        tch = o["touch"].replace(",", " ") if sfx == "k" else ""
        lead = 2 if dual else (o["leadk"] if sfx == "k" else o["lead"])
        npos = 4 if dual else 8
        q = []
        cnt = [0]
        if tch:
            g.c("retention touches: lanes 0-15 cover the 16 lines this wave fetched of a block")
            e("v_lshrrev_b32 v3, 1, v0"); e("v_lshlrev_b32 v3, 12, v3"); e("v_and_b32 v4, 1, v0"); e("v_lshl_add_u32 v3, v4, 7, v3")
            e("s_sub_u32 s%d, s%d, 4" % (sT0, sW)); e("s_lshl_b32 s%d, s%d, 15" % (sT0, sT0)); e("v_add_u32 v3, s%d, v3" % sT0)
        def dma(srd_, soff, v, off):
            f = " nt" if srd_ == sQ else ntkv.replace(",", " ")
            e("buffer_load_dwordx4 v%d, %s, s%d offen%s%s lds" % (v, sr(srd_, 4), soff, " offset:%d" % off if off else "", f))
            q.append(cnt[0])
        def issue(a, b):
            e("s_mov_b32 m0, s%d" % sLDS)
            e("s_add_u32 s%d, s%d, %d" % (sT0, sLDS, BLK))
            dma(a, sSA, 1, 0); dma(a, sSA, 2, PIECE)
            e("s_mov_b32 m0, s%d" % sT0)
            if dual:
                e("s_add_u32 s%d, s%d, %d" % (sT0, sLDS, 2 * GRP))
                dma(b, sSB, 1, 0); dma(b, sSB, 2, PIECE)
                e("s_mov_b32 m0, s%d" % sT0)
                e("s_add_u32 s%d, s%d, 256" % (sSA2, sSA))
                e("s_add_u32 s%d, s%d, %d" % (sT0, sLDS, 2 * GRP + BLK))
                dma(a, sSA2, 1, 0); dma(a, sSA2, 2, PIECE)
                e("s_mov_b32 m0, s%d" % sT0)
                e("s_add_u32 s%d, s%d, 256" % (sSB2, sSB))
                e("s_add_u32 s%d, s%d, %d" % (sLDS, sLDS, PAIR))
                dma(b, sSB2, 1, 0); dma(b, sSB2, 2, PIECE)
            else:
                e("s_add_u32 s%d, s%d, %d" % (sLDS, sLDS, PAIR))
                dma(b, sSB, 1, 0); dma(b, sSB, 2, PIECE)
            e("s_cmp_eq_u32 s%d, s%d" % (sLDS, sWRAP))
            e("s_cselect_b32 s%d, s%d, s%d" % (sLDS, sWB, sLDS))
            cnt[0] += 1
            return cnt[0] - 1
        def elem(k):
            if k == "K":
                for x in (sQ, sK, sV): e("s_mov_b32 s%d, s%d" % (x + 2, sEND))
                e("s_lshl_b32 s%d, s%d, 12" % (sSA, sK0))
                e("s_add_u32 s%d, s%d, %d" % (sSB, sSA, 32 * 4096))
                return issue(sK, sK)
            elif k == "Q0":
                e("s_lshl_b32 s%d, s%d, 12" % (sSA, sQ0))
                e("s_add_u32 s%d, s%d, %d" % (sSB, sSA, 32 * 4096))
                return issue(sQ, sQ)
            elif k == "Q1":
                e("s_add_u32 s%d, s%d, %d" % (sSA, sSA, 64 * 4096))
                e("s_add_u32 s%d, s%d, %d" % (sSB, sSB, 64 * 4096))
                return issue(sQ, sQ)
            elif k == "T0":
                e("s_lshl_b32 s%d, s%d, 12" % (sSA, sK0))
                e("s_add_u32 s%d, s%d, %d" % (sSB, sSA, 64 * 4096))
            else:
                r = issue(sV, sK)
                e("s_add_u32 s%d, s%d, %d" % (sSA, sSA, 32 * 4096))
                e("s_add_u32 s%d, s%d, %d" % (sSB, sSB, 32 * 4096))
                return r
        def touch(a, b):
            e("s_mov_b64 exec, 0xffff")
            e("s_add_u32 s%d, s%d, %d" % (sT0, sTA, (32 if a == sK else 64) * 4096))
            cp = {sK: 60, sV: 64}
            e("buffer_load_dword v5, v3, %s, s%d offen%s" % (sr(cp[a], 4), sTA, tch)); q.append(-1)
            e("buffer_load_dword v6, v3, %s, s%d offen%s" % (sr(cp[b], 4), sT0, tch)); q.append(-1)
            e("s_mov_b64 exec, -1")
            if a == sV: e("s_add_u32 s%d, s%d, %d" % (sTA, sTA, 32 * 4096))
        def wait(tag, bar, t=None):
            last = max(i for i, x in enumerate(q) if x == tag)
            e("s_waitcnt vmcnt(%d)" % (len(q) - 1 - last))
            del q[:last + 1]
            g.stamp()
            if t: touch(*t)
            if bar: e("s_barrier")
        def rel(): return [x - cnt[0] if x >= 0 else None for x in q]
        pro = ["K", "Q0"] if dual else ["K", "Q0", "Q1"]
        e("s_add_u32 s%d, s%d, %d" % (sWRAP, sWB, npos * PAIR))
        if dual: e("s_mov_b32 s%d, s%d" % (sLDS, sWB))
        else: e("s_add_u32 s%d, s%d, %d" % (sLDS, sWB, PAIR))
        tags = [elem(k) for k in pro]
        elem("T0")
        if tch:
            e("s_mov_b32 s%d, s%d" % (sTA, sSA))
            srd(60, 6); srd(64, 8)
            e("s_mov_b32 s62, s%d" % sEND); e("s_mov_b32 s66, s%d" % sEND)
            wait(tags[0], False, (sK, sK))
        elem("T")
        wait(tags[-1], True)
        for _ in range(lead - 1):
            if tch: touch(sK, sK)
            elem("T")
        if o["prio"]: e("s_setprio 0")
        e("s_sub_u32 s%d, s%d, %d" % (sT1, sN, lead))
        def steady(lab, t, check0):
            g.lab("L_pt" + lab)
            if check0:
                e("s_cmp_eq_u32 s%d, 0" % sT1)
                e("s_cbranch_scc1 L_pe" + lab)
            def after_target():
                r = rel(); return r[max(i for i, x in enumerate(r) if x == -lead):]
            before = after_target()
            wait(cnt[0] - lead, True, t)
            elem("T")
            e("s_sub_u32 s%d, s%d, 1" % (sT1, sT1))
            assert after_target() == before, (before, after_target())
            if check0: e("s_branch L_pt" + lab); g.lab("L_pe" + lab)
            else:
                e("s_cmp_lg_u32 s%d, 0" % sT1)
                e("s_cbranch_scc1 L_pt" + lab)
        def drain(t):
            for n in range(lead, 0, -1): wait(cnt[0] - n, True, t)
            g.stamp()
            e("s_branch L_tsout" if ts else "s_endpgm")
        tt = (sV, sK) if tch else None
        steady(sfx, tt, multi)
        if multi:
            e("s_cmp_eq_u32 s%d, 0" % sR1)
            e("s_cbranch_scc1 L_pd" + sfx)
            st0 = (list(q), cnt[0])
            def change(skip, lab):
                q[:] = st0[0]; cnt[0] = st0[1]
                seq = (["X"] if skip else []) + pro + ["T"] * lead
                proc = [True] * lead + ([False] if skip else []) + [False] * (len(pro) - 1) + [True]
                assert len(seq) == len(proc)
                first_t = True
                for n, (k, bar) in enumerate(zip(seq, proc)):
                    wait(cnt[0] - lead, bar, tt if n < lead else None)
                    if k == "X": issue(sV, sK)
                    elif k == "T":
                        if first_t: elem("T0"); first_t = False
                        elem("T")
                    else:
                        if k == "K":
                            if tch:
                                pass
                            next_round()
                        elem(k)
                e("s_sub_u32 s%d, s%d, %d" % (sT1, sN, lead))
                q[:] = [x for x in q if x >= 0]
                e("s_branch L_pt2" + sfx)
            if dual: change(False, "a")
            else:
                e("s_bitcmp1_b32 s%d, 0" % sN)
                e("s_cbranch_scc1 L_pc1" + sfx)
                change(True, "a")
                g.lab("L_pc1" + sfx)
                change(False, "b")
            steady("2" + sfx, None, True)
            drain(None)
            q[:] = st0[0]; cnt[0] = st0[1]
        g.lab("L_pd" + sfx)
        drain(tt)
    producer(False, o["ntf"], "s", False)
    g.lab("L_pkeep")
    producer(False, o["keepf"], "k", True)
    g.lab("L_pdual")
    producer(True, o["dualf"], "d", True)

    g.L.append(".p2align 6")
    g.lab("L_cons")
    g.c("================= compute waves =================")
    if o["prio"]: e("s_setprio 1")
    t = vT
    e("v_lshrrev_b32 v%d, 5, v0" % vHF)
    e("v_and_b32 v%d, 3, v0" % t)
    e("v_bfe_u32 v%d, v0, 4, 1" % (t + 1))
    e("v_lshl_add_u32 v%d, v%d, 1, v%d" % (t + 1, t, t + 1))
    e("v_bfe_u32 v%d, v0, 2, 1" % (t + 2))
    e("v_bfe_u32 v%d, v0, 3, 1" % (t + 3))
    e("v_lshl_add_u32 v%d, v%d, 1, v%d" % (t + 3, t + 3, t + 2))
    e("v_mul_u32_u24 v%d, %d, v%d" % (t + 4, PIECE, t + 1))
    e("v_lshl_add_u32 v%d, v%d, 8, v%d" % (t + 4, t + 3, t + 4))
    e("v_xor_b32 v%d, v%d, v%d" % (t + 2, t + 2, vHF))
    e("v_lshl_add_u32 v%d, v%d, 4, v%d" % (vKB, t + 2, t + 4))
    e("v_bfe_u32 v%d, v0, 2, 2" % (t + 4))
    e("v_mul_u32_u24 v%d, %d, v%d" % (t + 4, 2 * PIECE, t + 4))
    e("v_lshl_add_u32 v%d, v%d, 8, v%d" % (t + 4, vHF, t + 4))
    e("v_bfe_u32 v%d, v0, 4, 1" % (t + 5))
    e("v_lshlrev_b32 v%d, 5, v%d" % (t + 5, t + 5))
    e("v_lshl_add_u32 v%d, v%d, 3, v%d" % (t + 5, t, t + 5))
    e("v_lshlrev_b32 v%d, 4, v%d" % (t + 6, vHF))
    e("v_xor_b32 v%d, v%d, v%d" % (t + 5, t + 5, t + 6))
    e("v_add_u32 v%d, v%d, v%d" % (vVB, t + 4, t + 5))
    e("v_mov_b32 v%d, 0xff800000" % vNINF)
    e("s_lshr_b32 s%d, s%d, 1" % (sT0, sW))
    e("s_mul_i32 s%d, s%d, s%d" % (sT0, sT0, sD))
    e("s_mul_i32 s%d, s%d, %d" % (sT1, sT0, 2 * GRP))
    e("s_lshl_b32 s%d, s%d, 8" % (sT0, sT0))
    e("s_add_u32 s%d, s%d, s%d" % (sH, sH, sT0))
    e("s_cmp_eq_u32 s%d, 0" % sD)
    e("s_cselect_b32 s%d, 3, 1" % sGM)
    e("s_and_b32 s%d, s%d, s%d" % (sQB, sW, sGM))
    e("v_add_u32 v%d, s%d, v%d" % (vKB, sT1, vKB))
    e("v_add_u32 v%d, s%d, v%d" % (vVB, sT1, vVB))
    g.c("staging: write row = lane&31 (128 B pitch), chunk ^ (row&7), 8-byte half hf ^ (row>>3 & 1)")
    e("s_lshl_b32 s%d, s%d, 12" % (sT0, sW))
    e("s_add_u32 s%d, s%d, %d" % (sT0, sT0, STG))
    e("v_and_b32 v%d, 31, v0" % (t + 4))
    e("v_lshlrev_b32 v%d, 7, v%d" % (t + 4, t + 4))
    e("v_bfe_u32 v%d, v0, 3, 1" % (t + 5))
    e("v_xor_b32 v%d, v%d, v%d" % (t + 5, t + 5, vHF))
    e("v_lshl_add_u32 v%d, v%d, 3, v%d" % (t + 4, t + 5, t + 4))
    e("v_and_b32 v%d, 7, v0" % (t + 5))
    e("v_lshl_add_u32 v%d, v%d, 4, v%d" % (t + 4, t + 5, t + 4))
    e("v_add_u32 v%d, s%d, v%d" % (vSW, sT0, t + 4))
    for c in range(1, 8): e("v_xor_b32 v%d, %d, v%d" % (vSW + c, c * 16, vSW))
    e("v_lshrrev_b32 v%d, 3, v0" % (t + 4))
    e("v_xor_b32 v%d, v%d, v%d" % (t + 6, t + 4, t + 5))
    e("v_lshlrev_b32 v%d, 7, v%d" % (t + 4, t + 4))
    e("v_lshl_add_u32 v%d, v%d, 4, v%d" % (t + 4, t + 6, t + 4))
    e("v_add_u32 v%d, s%d, v%d" % (vSR, sT0, t + 4))
    e("v_add_u32 v%d, 2048, v%d" % (vSR2, vSR))
    e("v_bfe_u32 v%d, v0, 3, 2" % (t + 4))
    e("v_lshl_add_u32 v%d, v%d, 3, v%d" % (t + 4, t + 4, vHF))
    e("v_lshlrev_b32 v%d, 12, v%d" % (t + 4, t + 4))
    e("v_lshl_add_u32 v%d, v%d, 4, v%d" % (vOOF, t + 5, t + 4))
    e("s_mov_b32 s%d, 0" % sG)
    e("s_mov_b32 s%d, 0x%08x" % (sC, f2u((128 ** -0.5) * 1.4426950408889634)))
    e("s_mov_b32 s%d, 0" % sBAD)
    e("s_mov_b32 s%d, 1" % sBIT)
    e("s_mov_b32 s%d, s%d" % (sRS0, sR0))
    e("s_mov_b32 s%d, s%d" % (sRS1, sR1))
    e("s_mov_b32 s%d, 0x%08x" % (sHI, f2u(2.0 ** 60) if not o["forcebad"] else f2u(2.0 ** -70)))
    e("s_mov_b32 s%d, 0x%08x" % (sLO, f2u(2.0 ** -60)))
    for i in range(0, 64, 2): e("v_mov_b64 %s, 0" % vr(O + i, 2))
    e("s_waitcnt lgkmcnt(0)")
    srd(sO, 12)
    def round_setup():
        e("s_mov_b32 s%d, s%d" % (sO + 2, sEND))
        e("s_lshl_b32 s%d, s%d, 5" % (sT0, sQB))
        e("s_add_u32 s%d, s%d, s%d" % (sT0, sT0, sQ0))
        e("s_lshl_b32 s%d, s%d, 12" % (sO0, sT0))
        for j in range(1, 4): e("s_add_u32 s%d, s%d, %d" % (sO0 + j, sO0, j * 8192))
        e("s_sub_u32 s%d, s%d, 1" % (sT0, sN))
        e("s_lshl_b32 s%d, s%d, 5" % (sT0, sT0))
        e("s_sub_u32 s%d, s%d, s%d" % (sT0, sL, sT0))
        e("v_sub_u32 v%d, s%d, v%d" % (vTMP, sT0, vHF))
        for rr in range(16):
            kc = 8 * (rr % 4) + 4 * (rr // 8) + 2 * ((rr // 4) % 2)
            e("v_cmp_lt_i32 %s, %d, v%d" % (sr(sMASK + 2 * rr, 2), kc, vTMP))
        for i in range(0, 16, 2): e("v_mov_b64 %s, 0" % vr(CI + i, 2))
        e("v_mov_b64 %s, 0" % vr(vL, 2))
    def mask_ci():
        for rr in range(16):
            e("v_cndmask_b32 v%d, v%d, v%d, %s" % (CI + rr, vNINF, CI + rr, sr(sMASK + 2 * rr, 2)))
    def qscale(s_, pk_=False):
        for i in range(4 * s_, 4 * s_ + 4):
            tt = vT + 2 * (i % 4)
            e("v_lshlrev_b32 v%d, 16, v%d" % (tt, Q + i))
            e("v_and_b32 v%d, 0xffff0000, v%d" % (tt + 1, Q + i))
            if pk_: e("v_pk_mul_f32 %s, %s, %s op_sel_hi:[1,0]" % (vr(tt, 2), vr(tt, 2), sr(sC, 2)))
            else:
                e("v_mul_f32 v%d, s%d, v%d" % (tt, sC, tt)); e("v_mul_f32 v%d, s%d, v%d" % (tt + 1, sC, tt + 1))
            e("v_cvt_pk_bf16_f32 v%d, v%d, v%d" % (Q + i, tt, tt + 1))
    g.lab("L_cround")
    round_setup()
    e("s_mul_i32 s%d, s%d, %d" % (sGOFF, sG, GRP))
    e("s_add_u32 s%d, s%d, %d" % (sT0, sGOFF, PAIR))
    e("s_add_u32 s%d, s%d, 1" % (sG, sG))
    e("s_and_b32 s%d, s%d, s%d" % (sG, sG, sGM))
    e("s_mul_i32 s%d, s%d, %d" % (sT1, sG, GRP))
    e("s_cmp_eq_u32 s%d, 0" % sD)
    e("s_cselect_b32 s%d, s%d, s%d" % (sGOFF, sT0, sGOFF))
    e("s_cselect_b32 s%d, s%d, s%d" % (sT0, sT1, sT0))
    e("s_addc_u32 s%d, s%d, 0" % (sG, sG))
    e("s_and_b32 s%d, s%d, s%d" % (sG, sG, sGM))
    e("s_mul_i32 s%d, s%d, %d" % (sT1, sQB, BLK))
    e("s_add_u32 s%d, s%d, s%d" % (sT0, sT0, sT1))
    e("v_add_u32 v%d, s%d, v%d" % (vQA, sT0, vKB))
    e("v_add_u32 v%d, s%d, v%d" % (vKA, sGOFF, vKB))
    e("s_mul_i32 s%d, s%d, %d" % (sGOFF, sG, GRP))
    e("v_add_u32 v%d, s%d, v%d" % (vVA, sGOFF, vVB))
    e("s_sub_u32 s%d, s%d, 3" % (sCNT, sN))
    e("s_mov_b32 s%d, 0" % sSTG)
    g.stamp()
    e("s_barrier")
    g.stamp()
    for s_ in range(8):
        e(kread(Q, s_, 0, vQA)); e(kread(KF, s_, 0))
    for s_ in range(8):
        e("s_waitcnt lgkmcnt(%d)" % (14 if s_ == 0 else 13 - s_))
        qscale(s_, s_ < 2)
        if s_ > 0:
            e(qk(s_ - 1, 0)); e(kread(KF, s_ - 1, BLK))
    e("s_nop 1")
    e(qk(7, 0)); e(kread(KF, 7, BLK))
    e("v_add_u32 v%d, s%d, v%d" % (vKA, sGOFF, vKB))
    e("s_barrier")
    e("s_nop 7"); e("s_nop 1")
    for x in "Xn0 Xn1 Xn2 Xn3 Cn0 Xn4 Cn1 Xn5".split(): e(op(x, 1)[0])
    e("s_nop 0")
    e(op("Cn2", 1)[0])
    if ts == 2: g.stamp_issue()
    else: g.stamp()
    g.L.append(".p2align 6")
    gaps = SCHED[o["sched"]]
    for h in range(2):
        g.lab("L_h%d" % h)
        e("s_waitcnt lgkmcnt(0)")
        if ts == 2: g.stamp_write()
        for n in range(16):
            e(qk(n, 1 - h) if n < 8 else pv(n - 8))
            if ts == 2 and n == 13: g.stamp_issue()
            for x in gaps[n]:
                for y in op(x, h): e(y)
    for h in range(2):
        g.lab("L_ev%d" % h)
        e("s_cmp_lg_u32 s%d, 0" % sSTG)
        e("s_cbranch_scc1 L_tail%d" % (1 - h))
        e("s_mov_b32 s%d, 1" % sSTG)
        e("s_mov_b32 s%d, 0" % sCNT)
        mask_ci()
        e("s_branch L_h%d" % (1 - h))
    for h in range(2):
        g.lab("L_tail%d" % h)
        if ts == 2:
            e("s_waitcnt lgkmcnt(0)"); g.stamp_write()
        if ts == 3: e("s_memtime s[64:65]"); g.nfs = 1
        for x in TAIL:
            for y in op(x, h): e(y)
        if h == 0: e("s_branch L_epi")
    W = VF; R = KF
    def blk(db, qd, pk_=True):
        ob = O + 16 * db + 4 * qd; w = VF + (0, 16, 8, 24)[db] + 2 * qd
        if pk_: m = ["v_pk_mul_f32 %s, %s, %s op_sel_hi:[1,0]" % (vr(ob + k, 2), vr(ob + k, 2), vr(vRI, 2)) for k in (0, 2)]
        else: m = ["v_mul_f32 v%d, v%d, v%d" % (ob + k, vRI, ob + k) for k in range(4)]
        return m + ["v_cvt_pk_bf16_f32 v%d, v%d, v%d" % (w, ob, ob + 1),
                    "v_cvt_pk_bf16_f32 v%d, v%d, v%d" % (w + 1, ob + 2, ob + 3),
                    "ds_write_b64 v%d, %s" % (vSW + (db & 1) * 4 + qd, vr(w, 2))]
    def zero(db, qd): return ["v_mov_b64 %s, 0" % vr(O + 16 * db + 4 * qd, 2), "v_mov_b64 %s, 0" % vr(O + 16 * db + 4 * qd + 2, 2)]
    def rd(hh, j):
        d = vr(R + 16 * hh + 4 * j, 4)
        if j & 1: return "ds_read2_b64 %s, v%d offset0:129 offset1:128" % (d, vSR2 if j == 3 else vSR)
        return "ds_read_b128 %s, v%d offset:%d" % (d, vSR, j * 1024)
    def st(hh, j): return "buffer_store_dwordx4 %s, v%d, %s, s%d offen%s%s" % (vr(R + 16 * hh + 4 * j, 4), vOOF, sr(sO, 4), sO0 + j, " offset:128" if hh else "", stf)
    def lsum():
        return ["v_add_f32 v%d, v%d, v%d" % (vL, vL, vL2), "v_mov_b32 v%d, v%d" % (vTMP, vL)]
    def lfin():
        return ["v_permlane32_swap_b32 v%d, v%d" % (vTMP, vL), "v_add_f32 v%d, v%d, v%d" % (vL, vL, vTMP), "v_rcp_f32 v%d, v%d" % (vRI, vL)]
    def zero_o():
        for i in range(0, 64, 2): e("v_mov_b64 %s, 0" % vr(O + i, 2))
    def epilogue(fast):
        seq = []
        F = g.fs if fast else (lambda: [])
        if fast:
            seq += F() + lsum() + ["s_waitcnt lgkmcnt(0)", pv(2)] + lfin()
            seq += ["v_cmp_gt_f32 vcc, s%d, v%d" % (sHI, vL), "v_cmp_lt_f32 %s, s%d, v%d" % (sr(sT0, 2), sLO, vL), pv(6)]
            seq += blk(0, 0, False) + [pv(3), "s_and_b64 vcc, vcc, %s" % sr(sT0, 2), "s_cmp_eq_u64 vcc, -1"] + blk(0, 1, False) + [pv(7)]
            seq += ["s_cselect_b32 s%d, 0, s%d" % (sT0, sBIT), "s_or_b32 s%d, s%d, s%d" % (sBAD, sBAD, sT0)] + blk(0, 2, False) + blk(0, 3, False)
        else:
            seq += lsum() + ["s_nop 1"] + lfin() + ["s_nop 0"]
            for qd in range(4): seq += blk(0, qd)
        seq += F()
        for qd in range(4): seq += blk(1, qd)
        seq += [rd(0, j) for j in range(4)] + F()
        w5 = "s_waitcnt lgkmcnt(5)"
        seq += blk(2, 0) + blk(2, 1) + [w5, st(0, 0)] + blk(2, 2) + [w5, st(0, 1)] + blk(2, 3) + [w5, st(0, 2)] + blk(3, 0) + [w5, st(0, 3)] + F()
        seq += blk(3, 1) + blk(3, 2) + blk(3, 3)
        seq += [rd(1, j) for j in range(4)] + F()
        for j in range(4): seq += ["s_waitcnt lgkmcnt(%d)" % (3 - j), st(1, j)]
        seq += F()
        for x in seq: e(x)
    g.lab("L_epi")
    epilogue(True)
    g.fs_flush()
    e("s_cmp_eq_u32 s%d, 0" % sR1)
    e("s_cbranch_scc1 L_cdone")
    next_round()
    zero_o()
    e("s_mov_b32 s%d, 2" % sBIT)
    e("s_branch L_cround")
    g.lab("L_cdone")
    g.stamp()
    e("s_barrier")
    e("s_cmp_lg_u32 s%d, 0" % sBAD)
    e("s_cbranch_scc1 L_slow")
    g.lab("L_fin")
    if ts:
        e("s_waitcnt vmcnt(0)")
        g.stamp()
        g.lab("L_tsout")
        e("s_lshl_b32 s%d, s2, 3" % sT0)
        e("s_add_u32 s%d, s%d, s%d" % (sT0, sT0, sW))
        e("s_lshl_b32 s%d, s%d, 9" % (sT0, sT0))
        e("s_add_u32 s16, s16, s%d" % sT0)
        e("s_addc_u32 s17, s17, 0")
        e("v_lshlrev_b32 v1, 3, v0")
        e("global_store_dwordx2 v1, v[30:31], s[16:17]")
        if o["diag"] >= 0:
            e("v_readlane_b32 s60, v31, 0")
            e("v_readlane_b32 s61, v31, %d" % o["diag"])
            e("s_nop 4")
            e("s_sub_u32 s61, s61, s60")
            e("s_mul_i32 s61, s61, 10")
            e("s_cmp_eq_u32 s2, %d" % o["diagwg"])
            e("s_cselect_b32 s61, s61, 0")
            e("s_cmp_eq_u32 s%d, %d" % (sW, o["diagwave"]))
            e("s_cselect_b32 s61, s61, 0")
            e("s_add_u32 s61, s61, 5000")
            g.lab("L_spin")
            e("s_memrealtime s[52:53]")
            e("s_waitcnt lgkmcnt(0)")
            e("s_sub_u32 s52, s52, s60")
            e("s_cmp_lt_u32 s52, s61")
            e("s_cbranch_scc1 L_spin")
    g.lab("L_end")
    e("s_endpgm")
    g.lab("L_slow")
    g.c("================= fallback: true running max, this wave alone, private LDS area =================")
    srd(sQ, 4); srd(sK, 6); srd(sV, 8)
    dma_lane_offset(vDMA, vT, vT + 1)
    e("s_mul_i32 s%d, s%d, %d" % (sG, sW, GRP))
    e("s_lshr_b32 s%d, s%d, 1" % (sT0, sW))
    e("s_mul_i32 s%d, s%d, s%d" % (sT0, sT0, sD))
    e("s_mul_i32 s%d, s%d, %d" % (sT1, sT0, 2 * GRP))
    e("s_sub_i32 s%d, s%d, s%d" % (sT0, sG, sT1))
    e("v_add_u32 v%d, s%d, v%d" % (vKA, sT0, vKB))
    e("v_add_u32 v%d, s%d, v%d" % (vVA, sT0, vVB))
    e("s_mov_b32 s%d, s%d" % (sR0, sRS0))
    e("s_bitcmp1_b32 s%d, 0" % sBAD)
    e("s_cbranch_scc1 L_sround")
    g.lab("L_snext")
    e("s_bitcmp1_b32 s%d, 1" % sBAD)
    e("s_cbranch_scc0 L_fin")
    e("s_mov_b32 s%d, 0" % sBAD)
    e("s_mov_b32 s%d, s%d" % (sR0, sRS1))
    g.lab("L_sround")
    decode_round()
    for x in (sQ, sK, sV): e("s_mov_b32 s%d, s%d" % (x + 2, sEND))
    round_setup()
    zero_o()
    def sload(srd_, soff, blkno):
        for p in range(8):
            e("s_add_u32 s%d, s%d, %d" % (sT0, sG, blkno * BLK + p * PIECE))
            e("s_mov_b32 m0, s%d" % sT0)
            e("s_add_u32 s%d, s%d, %d" % (sT1, soff, p * 16384))
            e("buffer_load_dwordx4 v%d, %s, s%d offen lds" % (vDMA, sr(srd_, 4), sT1))
    sload(sQ, sO0, 0)
    e("s_waitcnt vmcnt(0)")
    for s_ in range(8): e(kread(Q, s_, 0))
    e("s_waitcnt lgkmcnt(0)")
    for s_ in range(8): qscale(s_)
    e("v_mov_b32 v%d, 0xf149f2ca" % vM)
    e("s_lshl_b32 s%d, s%d, 12" % (sGOFF, sK0))
    e("s_mov_b32 s%d, s%d" % (sCNT, sN))
    g.lab("L_stile")
    sload(sK, sGOFF, 0); sload(sV, sGOFF, 1)
    e("s_cmp_lg_u32 s%d, 1" % sCNT)
    e("s_cbranch_scc1 L_snomask")
    mask_ci()
    g.lab("L_snomask")
    e("s_waitcnt vmcnt(0)")
    for s_ in range(8): e(kread(KF, s_, 0))
    for n in range(8): e(vread(n, BLK))
    e("s_waitcnt lgkmcnt(0)")
    for n in range(8, 16): e(vread(n, BLK))
    for s_ in range(8): e(qk(s_, 0))
    e("s_nop 15")
    s0 = S[0]
    e("v_max_f32 v%d, v%d, v%d" % (vTMP, vM, s0))
    for i in range(1, 15, 2): e("v_max3_f32 v%d, v%d, v%d, v%d" % (vTMP, vTMP, s0 + i, s0 + i + 1))
    e("v_max_f32 v%d, v%d, v%d" % (vTMP, vTMP, s0 + 15))
    e("v_mov_b32 v%d, v%d" % (vTMP2, vTMP))
    e("s_nop 1")
    e("v_permlane32_swap_b32 v%d, v%d" % (vTMP, vTMP2))
    e("v_max_f32 v%d, v%d, v%d" % (vTMP, vTMP, vTMP2))
    e("v_sub_f32 v%d, v%d, v%d" % (vRI, vM, vTMP))
    e("v_exp_f32 v%d, v%d" % (vRI, vRI))
    e("v_mov_b32 v%d, v%d" % (vM, vTMP))
    for i in range(16): e("v_sub_f32 v%d, v%d, v%d" % (s0 + i, s0 + i, vM))
    for i in range(16): e("v_exp_f32 v%d, v%d" % (s0 + i, s0 + i))
    for i in range(0, 64, 2): e("v_pk_mul_f32 %s, %s, %s op_sel_hi:[1,0]" % (vr(O + i, 2), vr(O + i, 2), vr(vRI, 2)))
    e("v_pk_mul_f32 %s, %s, %s op_sel_hi:[1,0]" % (vr(vL, 2), vr(vL, 2), vr(vRI, 2)))
    for i in range(16): e(op("Ac%d" % i, 0)[0])
    for i in range(8): e(op("Cc%d" % i, 0)[0])
    e("s_waitcnt lgkmcnt(0)")
    e("s_nop 0")
    for n in range(8): e(pv(n))
    e("s_add_u32 s%d, s%d, %d" % (sGOFF, sGOFF, 32 * 4096))
    e("s_sub_u32 s%d, s%d, 1" % (sCNT, sCNT))
    e("s_cmp_lg_u32 s%d, 0" % sCNT)
    e("s_nop 15")
    e("s_cbranch_scc1 L_stile")
    epilogue(False)
    e("s_branch L_snext")
    g.L.append(KD)
    return "\n".join(g.L) + "\n"

if __name__ == "__main__":
    out = sys.argv[1]
    opts = {}
    for a in sys.argv[2:]:
        k, v = a.split("="); opts[k] = v if "," in v else int(v)
    open(out, "w").write(gen(**opts))
```

```python
import sys, struct

KN = "standalone__ragged_sequences_packed_sequences__ragged_kernel"
PIECE, BLK, PAIR, GRP = 1056, 8448, 16896, 33792
RING = 8 * PAIR
STG = RING
LDS = RING + 4 * 4096

SEGS = [(0, 370), (370, 108), (478, 143), (621, 363), (984, 165), (1149, 432), (1581, 100), (1681, 465)]
def pk(seg, c, dual=0):
    k0, L = SEGS[seg]
    return k0 | (L << 12) | (c << 21) | (dual << 26)
def f2u(x): return struct.unpack("<I", struct.pack("<f", x))[0]

DEF = dict(ts=0, prio=1, diag=-1, diagwg=0, diagwave=4, stf=",sc0,sc1", lead=4, ntlo=8, nthi=20, delay=0, selfclk=0,
           forcebad=0, burn=0, burnrnd=0, t0pos=2, qfirst=1, ahead=3, flip=1, epi=1, touch="", leadk=4, keepf="", ntf=",nt", dualf=",nt", t0wait=0, hmap=0, hswap=0, sched=5)

class G:
    def __init__(s, **o):
        s.o = dict(DEF); s.o.update(o); s.L = []
    def e(s, x): s.L.append("    " + x)
    def c(s, x): s.L.append("    ; " + x)
    def lab(s, x): s.L.append(x + ":")
    def stamp_issue(s):
        if s.o["ts"]: s.e("s_memtime s[52:53]"); s.e("s_memrealtime s[54:55]")
    def stamp_write(s):
        if s.o["ts"]:
            s.e("s_mov_b32 m0, s56"); s.e("s_add_u32 s56, s56, 1"); s.e("v_writelane_b32 v30, s52, m0"); s.e("v_writelane_b32 v31, s54, m0")
    def fs(s, lvl=3):
        if s.o["ts"] == lvl:
            s.nfs = getattr(s, "nfs", 0); r = 64 + 2 * s.nfs; s.nfs += 1
            return ["s_memtime s[%d:%d]" % (r, r + 1)]
        return []
    def fs_flush(s, lvl=3):
        if s.o["ts"] == lvl:
            s.e("s_waitcnt lgkmcnt(0)")
            for k in range(s.nfs):
                s.e("s_mov_b32 m0, s56"); s.e("s_add_u32 s56, s56, 1"); s.e("v_writelane_b32 v30, s%d, m0" % (64 + 2 * k)); s.e("v_writelane_b32 v31, s54, m0")
    def stamp(s):
        if s.o["ts"]: s.stamp_issue(); s.e("s_waitcnt lgkmcnt(0)"); s.stamp_write()

O = 192; S = [160, 176]; CI = 144; Q = 112; KF = 80; VF = 48; P = 40
vKA, vVA, vKB, vVB, vQA = 1, 2, 3, 4, 5
vL, vL2, vNINF, vHF, vOOF, vTMP, vTMP2, vSR, vM, vRI, vDMA = 6, 7, 8, 9, 10, 11, 12, 13, 14, 16, 18
vSR2 = 15
vSW = 20
vT = 32
sQ, sK, sV, sO = 20, 24, 28, 32
sW, sH = 18, 19
sR0, sR1, sD = 36, 37, 38
sK0, sL, sQ0, sN, sEND = 39, 40, 41, 42, 43
sG, sGOFF, sCNT, sSTG, sT0, sT1, sC, sGM = 44, 45, 46, 47, 48, 49, 50, 51
sQB, sBAD, sBIT, sO0, sRS0, sRS1, sHI, sLO, sHA = 57, 58, 59, 60, 96, 97, 98, 99, 100
sLDS, sWRAP, sSA, sSB, sWB, sSA2, sSB2, sTA, sPC, sQL = 44, 45, 46, 47, 50, 51, 57, 58, 59, 68
sMASK = 64

def vr(b, n=1): return "v%d" % b if n == 1 else "v[%d:%d]" % (b, b + n - 1)
def sr(b, n=1): return "s%d" % b if n == 1 else "s[%d:%d]" % (b, b + n - 1)

KD = """.section .rodata,"a"
.p2align 6
.amdhsa_kernel %s
  .amdhsa_next_free_vgpr 256
  .amdhsa_next_free_sgpr 102
  .amdhsa_accum_offset 256
  .amdhsa_group_segment_fixed_size 0
  .amdhsa_kernarg_size 56
  .amdhsa_user_sgpr_count 2
  .amdhsa_user_sgpr_kernarg_segment_ptr 1
  .amdhsa_system_sgpr_workgroup_id_x 1
.end_amdhsa_kernel""" % KN

def kread(dst, s_, off, a=vKA):
    return "ds_read_b128 %s, v%d offset:%d" % (vr(dst + 4 * s_, 4), a, off + s_ * 32)
def qk(s_, buf):
    c = CI if s_ == 0 else S[buf]
    return "v_mfma_f32_32x32x16_bf16 %s, %s, %s, %s" % (vr(S[buf], 16), vr(KF + 4 * s_, 4), vr(Q + 4 * s_, 4), vr(c, 16))
def vread(n, off):
    ks, db, sec = n >> 3, (n >> 1) & 3, n & 1
    return "ds_read_b64_tr_b16 %s, v%d offset:%d" % (vr(VF + ks * 16 + db * 4 + sec * 2, 2), vVA, off + ks * PIECE + sec * 512 + db * 64)
def pv(n):
    ks, db = n >> 2, n & 3
    return "v_mfma_f32_32x32x16_bf16 %s, %s, %s, %s" % (vr(O + 16 * db, 16), vr(VF + ks * 16 + db * 4, 4), vr(P + 4 * ks, 4), vr(O + 16 * db, 16))
def op(x, h):
    cur, nxt = h, 1 - h
    off = h * PAIR
    if x == "B": return ["s_barrier"]
    if x[0] == "W": return ["s_waitcnt lgkmcnt(%s)" % x[1:].rstrip("ab")]
    if x == "SUB": return ["s_sub_u32 s%d, s%d, 1" % (sCNT, sCNT)]
    if x == "BR": return ["s_cbranch_scc1 L_ev%d" % h] + (["s_branch L_h0"] if h else [])
    if x == "H1": return ["s_add_u32 s%d, s%d, 1" % (sG, sG)] if not h else []
    if x == "H2": return ["s_and_b32 s%d, s%d, s%d" % (sG, sG, sGM)] if not h else []
    if x == "H3": return ["s_mul_i32 s%d, s%d, %d" % (sGOFF, sG, GRP)] if not h else []
    if x == "UV": return ["v_add_u32 v%d, s%d, v%d" % (vVA, sGOFF, vVB)] if h else []
    if x == "UK": return ["v_add_u32 v%d, s%d, v%d" % (vKA, sGOFF, vKB)] if h else []
    if x[0] == "M": return [pv(int(x[1:]))]
    if x[0] == "V": return [vread(int(x[1:]), off)]
    if x[0] == "K": return [kread(KF, int(x[1:]), off + BLK)]
    b = S[cur] if x[1] == "c" else S[nxt]
    i = int(x[2:])
    if x[0] == "X": return ["v_exp_f32 v%d, v%d" % (b + i, b + i)]
    if x[0] == "C": return ["v_cvt_pk_bf16_f32 v%d, v%d, v%d" % (P + i, b + 2 * i, b + 2 * i + 1)]
    if x[0] == "A": return ["v_add_f32 v%d, v%d, v%d" % (vL + (i & 1), vL + (i & 1), b + i)]
    raise ValueError(x)
def parse(s): return [g.split() for g in s.strip().split("|")]
SCHED = {}
SCHED[5] = parse("""V0 V1 Xc6 Xc7 | V2 V3 Xc8 Cc3 Ac0 | V4 V5 Xc9 Ac1 Ac2 | V6 V7 Xc10 Cc4 Ac3 | V8 V9 Xc11 Ac4 Ac5 | V10 V11 Xc12 Cc5 Ac6 | V12 V13 Xc13 Ac7 Ac8 | V14 V15 Xc14 Cc6 W8a |
 K0 K1 Xc15 Ac9 UV | K2 K3 Cc7 Ac10 Ac11 Ac12 | K4 K5 Xn0 Ac13 Ac14 | K6 K7 Xn1 Ac15 W8b | B H1 Xn2 Cn0 | H2 H3 Xn3 Xn4 UK | SUB Xn5 Cn1 | Cn2 BR""")
TAIL = """V0 V1 V8 V9 V2 V3 V10 V11 V4 V5 V12 V13 V6 V7 V14 V15 Xc6 Xc7 Xc8 Cc3 Xc9 Xc10 Xc11 Cc4 Cc5 W14 M0 Xc12 Xc13 Xc14 Xc15 Cc6 Ac0 Cc7 Ac1 Ac2 W12 M4
 Ac3 Ac4 Ac5 Ac6 Ac7 Ac8 W10 M1 Ac9 Ac10 Ac11 Ac12 Ac13 Ac14 W8 M5 Ac15""".split()

def gen(**opts):
    g = G(**opts); o = g.o; e = g.e
    ts = o["ts"]
    stf = o["stf"].replace(",", " ")
    g.L.append("""; Ragged (block-diagonal) attention, T=2146 H=16 D=128, bf16 in/out.
; kernarg: q,k,v,seg_ids,out,debug,ws.   Segment boundaries are constants of the problem (cu = 0,370,478,621,984,1149,1581,1681,2146).
; One workgroup per CU: waves 0-3 compute (32 query rows each, S^T = K Q^T, O^T = V^T P^T on MFMA 32x32x16),
; waves 4-7 stream Q/K/V tiles HBM -> LDS ring with LDS-DMA.
; softmax: exp2(s - ref) with ref = 0; every row sum is range-checked and a wave whose rows leave the safe range
; recomputes them with the true running max (L_slow).
; @launch grid=(256,1,1) block=(512,1,1) lds=%d
.amdgcn_target "amdgcn-amd-amdhsa--gfx950"
.text
.globl %s
.p2align 8
.type %s,@function
%s:""" % (LDS, KN, KN, KN))
    if ts:
        e("s_mov_b32 s56, 0"); e("v_mov_b32 v30, 0"); e("v_mov_b32 v31, 0"); g.stamp()
    e("s_load_dwordx8 s[4:11], s[0:1], 0")
    e("s_load_dwordx2 s[12:13], s[0:1], 32")
    if ts: e("s_load_dwordx2 s[16:17], s[0:1], 48")
    e("s_cmp_ge_u32 s2, 256")
    e("s_cbranch_scc1 L_end")
    e("v_lshrrev_b32 v1, 6, v0")
    e("v_and_b32 v0, 63, v0")
    e("v_readfirstlane_b32 s%d, v1" % sW)
    g.c("workgroup -> job: xcd = id&7, j = id>>3, slot = j>>1, hb = j&1")
    e("s_and_b32 s%d, s2, 7" % sH)
    e("s_lshl_b32 s%d, s%d, 1" % (sH, sH))
    e("s_lshr_b32 s3, s2, 4")
    e("s_bfe_u32 s%d, s2, 0x10003" % sT1)
    if o["hswap"]:
        e("s_and_b32 s%d, s2, 1" % sT0); e("s_xor_b32 s%d, s%d, s%d" % (sT1, sT1, sT0))
    HM = {0: {6: 6, 4: 4, 2: 2, 0: 0, 1: 1}, 1: {6: 3, 4: 2, 2: 1, 0: 0, 1: 7}, 2: {6: 0, 4: 0, 2: 0, 0: 0, 1: 0}}[o['hmap']]
    ho = lambda x: HM[x] << 27
    def K(seg, first, off): return (pk(seg, 0) - (first << 21) + ho(off)) & 0xffffffff
    e("s_mov_b32 s%d, 0x%x" % (sR0, K(3, 13, 6)))
    e("s_cmp_lt_u32 s3, 13"); e("s_cselect_b32 s%d, 0x%x, s%d" % (sR0, K(0, 10, 4), sR0))
    e("s_cmp_lt_u32 s3, 10"); e("s_cselect_b32 s%d, 0x%x, s%d" % (sR0, K(5, 7, 2), sR0))
    e("s_cmp_lt_u32 s3, 4");  e("s_cselect_b32 s%d, 0x%x, s%d" % (sR0, K(7, 0, 0), sR0))
    e("s_lshl_b32 s%d, s3, 21" % sT0)
    e("s_add_u32 s%d, s%d, s%d" % (sR0, sR0, sT0))
    e("s_cmp_eq_u32 s3, 4")
    e("s_cselect_b32 s%d, 0x%x, s%d" % (sR0, pk(4, 0) + ho(1), sR0)); e("s_cselect_b32 s%d, 0x%x, 0" % (sR1, pk(6, 0)))
    e("s_cmp_eq_u32 s3, 5")
    e("s_cselect_b32 s%d, 0x%x, s%d" % (sR0, pk(2, 0) + ho(1), sR0)); e("s_cselect_b32 s%d, 0x%x, s%d" % (sR1, pk(1, 0), sR1))
    e("s_lshr_b32 s%d, s2, 3" % sT0)
    e("s_cmp_eq_u32 s%d, 12" % sT0)
    e("s_cselect_b32 s%d, 0x%x, s%d" % (sR0, pk(4, 1, 1) + ho(1), sR0)); e("s_cselect_b32 s%d, 0x%x, s%d" % (sR1, pk(2, 1), sR1))
    e("s_cmp_eq_u32 s%d, 13" % sT0)
    e("s_cselect_b32 s%d, 0x%x, s%d" % (sR0, pk(5, 3, 1) + ho(2), sR0))
    e("s_bfe_u32 s%d, s%d, 0x1001a" % (sD, sR0))
    e("s_cmp_eq_u32 s3, 6")
    e("s_cselect_b32 s%d, 0, s%d" % (sT1, sT1))
    e("s_lshr_b32 s%d, s%d, 26" % (sT0, sR0))
    e("s_and_b32 s%d, s%d, 14" % (sT0, sT0))
    e("s_add_u32 s%d, s%d, s%d" % (sH, sH, sT0))
    e("s_and_b32 s%d, s%d, 15" % (sH, sH))
    e("s_add_u32 s%d, s%d, s%d" % (sH, sH, sT1))
    e("s_lshl_b32 s%d, s%d, 8" % (sH, sH))

    def decode_round():
        e("s_and_b32 s%d, s%d, 0xfff" % (sK0, sR0))
        e("s_bfe_u32 s%d, s%d, 0x9000c" % (sL, sR0))
        e("s_bfe_u32 s%d, s%d, 0x20015" % (sQ0, sR0))
        e("s_lshl_b32 s%d, s%d, 7" % (sQ0, sQ0))
        e("s_add_u32 s%d, s%d, s%d" % (sQ0, sQ0, sK0))
        e("s_add_u32 s%d, s%d, 31" % (sN, sL))
        e("s_lshr_b32 s%d, s%d, 5" % (sN, sN))
        e("s_add_u32 s%d, s%d, s%d" % (sEND, sK0, sL))
        e("s_lshl_b32 s%d, s%d, 12" % (sEND, sEND))
        e("s_sub_u32 s%d, s%d, 3584" % (sEND, sEND))
    def next_round():
        e("s_mov_b32 s%d, s%d" % (sR0, sR1))
        e("s_mov_b32 s%d, 0" % sR1)
        decode_round()
    def srd(d, p):
        e("s_add_u32 s%d, s%d, s%d" % (d, p, sH))
        e("s_addc_u32 s%d, s%d, 0" % (d + 1, p + 1))
        e("s_mov_b32 s%d, 0x20000" % (d + 3))
    def dma_lane_offset(dst, t0, t1):
        e("v_lshrrev_b32 v%d, 4, v0" % t0)
        e("v_and_b32 v%d, 1, v%d" % (t1, t0))
        e("v_and_b32 v%d, 15, v0" % dst)
        e("v_xor_b32 v%d, v%d, v%d" % (dst, dst, t1))
        e("v_lshlrev_b32 v%d, 4, v%d" % (dst, dst))
        e("v_lshl_add_u32 v%d, v%d, 12, v%d" % (dst, t0, dst))

    decode_round()
    e("s_cmp_lt_u32 s%d, 4" % sW)
    e("s_cbranch_scc1 L_cons")
    g.c("================= producer waves =================")
    if o["prio"]: e("s_setprio 3")
    dma_lane_offset(1, 2, 3)
    e("s_sub_u32 s%d, s%d, 4" % (sT0, sW))
    e("s_lshl_b32 s%d, s%d, 15" % (sT1, sT0))
    e("v_add_u32 v1, s%d, v1" % sT1)
    e("v_add_u32 v2, %d, v1" % (16384 - PIECE))
    e("v_add_u32 v7, 16384, v1")
    e("v_mov_b32 v52, 0x%08x" % f2u((128 ** -0.5) * 1.4426950408889634)); e("v_mov_b32 v53, v52")
    e("v_lshlrev_b32 v40, 4, v0")
    e("s_mov_b32 s%d, 0x%08x" % (sPC, f2u((128 ** -0.5) * 1.4426950408889634)))
    e("s_mul_i32 s%d, s%d, %d" % (sWB, sT0, 2 * PIECE))
    e("s_lshr_b32 s%d, s2, 3" % sT1)
    e("s_waitcnt lgkmcnt(0)")
    g.stamp()
    srd(sQ, 4); srd(sK, 6); srd(sV, 8)
    e("s_cmp_eq_u32 s%d, 0" % sD)
    e("s_cbranch_scc0 L_pdual")
    e("s_sub_u32 s%d, s%d, %d" % (sT0, sT1, o["ntlo"]))
    e("s_cmp_lt_u32 s%d, %d" % (sT0, o["nthi"] - o["ntlo"]))
    e("s_cbranch_scc1 L_pkeep")

    def producer(dual, ntkv, sfx, multi):
        tch = o["touch"].replace(",", " ") if sfx == "k" else ""
        lead = 2 if dual else (o["leadk"] if sfx == "k" else o["lead"])
        npos = 4 if dual else 8
        q = []
        cnt = [0]
        if tch:
            g.c("retention touches: lanes 0-15 cover the 16 lines this wave fetched of a block")
            e("v_lshrrev_b32 v3, 1, v0"); e("v_lshlrev_b32 v3, 12, v3"); e("v_and_b32 v4, 1, v0"); e("v_lshl_add_u32 v3, v4, 7, v3")
            e("s_sub_u32 s%d, s%d, 4" % (sT0, sW)); e("s_lshl_b32 s%d, s%d, 15" % (sT0, sT0)); e("v_add_u32 v3, s%d, v3" % sT0)
        def dma(srd_, soff, v, off):
            f = " nt" if srd_ == sQ else ntkv.replace(",", " ")
            e("buffer_load_dwordx4 v%d, %s, s%d offen%s%s lds" % (v, sr(srd_, 4), soff, " offset:%d" % off if off else "", f))
            q.append(cnt[0])
        def issue(a, b):
            e("s_mov_b32 m0, s%d" % sLDS)
            e("s_add_u32 s%d, s%d, %d" % (sT0, sLDS, BLK))
            dma(a, sSA, 1, 0); dma(a, sSA, 2, PIECE)
            e("s_mov_b32 m0, s%d" % sT0)
            if dual:
                e("s_add_u32 s%d, s%d, %d" % (sT0, sLDS, 2 * GRP))
                dma(b, sSB, 1, 0); dma(b, sSB, 2, PIECE)
                e("s_mov_b32 m0, s%d" % sT0)
                e("s_add_u32 s%d, s%d, 256" % (sSA2, sSA))
                e("s_add_u32 s%d, s%d, %d" % (sT0, sLDS, 2 * GRP + BLK))
                dma(a, sSA2, 1, 0); dma(a, sSA2, 2, PIECE)
                e("s_mov_b32 m0, s%d" % sT0)
                e("s_add_u32 s%d, s%d, 256" % (sSB2, sSB))
                e("s_add_u32 s%d, s%d, %d" % (sLDS, sLDS, PAIR))
                dma(b, sSB2, 1, 0); dma(b, sSB2, 2, PIECE)
            else:
                e("s_add_u32 s%d, s%d, %d" % (sLDS, sLDS, PAIR))
                dma(b, sSB, 1, 0); dma(b, sSB, 2, PIECE)
            e("s_cmp_eq_u32 s%d, s%d" % (sLDS, sWRAP))
            e("s_cselect_b32 s%d, s%d, s%d" % (sLDS, sWB, sLDS))
            cnt[0] += 1
            return cnt[0] - 1
        def issue_q(r0, half=False):
            n = 0
            def ld(soff, v):
                nonlocal n
                e("buffer_load_dwordx4 %s, v%d, %s, s%d offen nt" % (vr(r0 + 4 * n, 4), v, sr(sQ, 4), soff)); q.append(cnt[0]); n += 1
            e("s_mov_b32 s%d, s%d" % (sQL + (1 if r0 > 64 else 0), sLDS))
            ld(sSA, 1); ld(sSA, 7); ld(sSB, 1); ld(sSB, 7)
            if dual and not half:
                e("s_add_u32 s%d, s%d, 256" % (sSA2, sSA)); e("s_add_u32 s%d, s%d, 256" % (sSB2, sSB))
                ld(sSA2, 1); ld(sSA2, 7); ld(sSB2, 1); ld(sSB2, 7)
            e("s_add_u32 s%d, s%d, %d" % (sLDS, sLDS, PAIR))
            e("s_cmp_eq_u32 s%d, s%d" % (sLDS, sWRAP))
            e("s_cselect_b32 s%d, s%d, s%d" % (sLDS, sWB, sLDS))
            cnt[0] += 1
            return cnt[0] - 1
        def finish_q(tag, r0, half=False, hook=None):
            e("v_add_u32 v41, s%d, v40" % (sQL + (1 if r0 > 64 else 0)))
            if dual and not half: e("v_add_u32 v42, %d, v41" % (2 * GRP))
            for n in range(8 if dual and not half else 4):
                if hook and n == hook[0]: hook[1]()
                first = min(i for i, x in enumerate(q) if x == tag)
                e("s_waitcnt vmcnt(%d)" % (len(q) - 1 - first))
                del q[:first + 1]
                for i in range(4):
                    r = r0 + 4 * n + i; tt = 44 + 2 * i
                    e("v_lshlrev_b32 v%d, 16, v%d" % (tt, r))
                    e("v_and_b32 v%d, 0xffff0000, v%d" % (tt + 1, r))
                    if half: e("v_pk_mul_f32 %s, %s, %s" % (vr(tt, 2), vr(tt, 2), vr(52, 2)))
                    else: e("v_mul_f32 v%d, s%d, v%d" % (tt, sPC, tt)); e("v_mul_f32 v%d, s%d, v%d" % (tt + 1, sPC, tt + 1))
                    e("v_cvt_pk_bf16_f32 v%d, v%d, v%d" % (r, tt, tt + 1))
                e("ds_write_b128 v%d, %s offset:%d" % (42 if n >= 4 else 41, vr(r0 + 4 * n, 4), (n & 1) * PIECE + ((n >> 1) & 1) * BLK))
        def elem(k):
            if k == "K":
                for x in (sQ, sK, sV): e("s_mov_b32 s%d, s%d" % (x + 2, sEND))
                e("s_lshl_b32 s%d, s%d, 12" % (sSA, sK0))
                e("s_add_u32 s%d, s%d, %d" % (sSB, sSA, 32 * 4096))
                return issue(sK, sK)
            elif k == "Q0":
                e("s_lshl_b32 s%d, s%d, 12" % (sSA, sQ0))
                e("s_add_u32 s%d, s%d, %d" % (sSB, sSA, 32 * 4096))
                return issue_q(64)
            elif k == "Q1":
                e("s_add_u32 s%d, s%d, %d" % (sSA, sSA, 64 * 4096))
                e("s_add_u32 s%d, s%d, %d" % (sSB, sSB, 64 * 4096))
                return issue_q(80)
            elif k == "T0":
                e("s_lshl_b32 s%d, s%d, 12" % (sSA, sK0))
                e("s_add_u32 s%d, s%d, %d" % (sSB, sSA, 64 * 4096))
            else:
                r = issue(sV, sK)
                e("s_add_u32 s%d, s%d, %d" % (sSA, sSA, 32 * 4096))
                e("s_add_u32 s%d, s%d, %d" % (sSB, sSB, 32 * 4096))
                return r
        def touch(a, b):
            e("s_mov_b64 exec, 0xffff")
            e("s_add_u32 s%d, s%d, %d" % (sT0, sTA, (32 if a == sK else 64) * 4096))
            cp = {sK: 60, sV: 64}
            e("buffer_load_dword v5, v3, %s, s%d offen%s" % (sr(cp[a], 4), sTA, tch)); q.append(-1)
            e("buffer_load_dword v6, v3, %s, s%d offen%s" % (sr(cp[b], 4), sT0, tch)); q.append(-1)
            e("s_mov_b64 exec, -1")
            if a == sV: e("s_add_u32 s%d, s%d, %d" % (sTA, sTA, 32 * 4096))
        def wait(tag, bar, t=None):
            last = max(i for i, x in enumerate(q) if x == tag)
            e("s_waitcnt vmcnt(%d)" % (len(q) - 1 - last))
            del q[:last + 1]
            g.stamp()
            if t: touch(*t)
            if bar: e("s_barrier")
        def rel(): return [x - cnt[0] if x >= 0 else None for x in q]
        pro = ["K", "Q0"] if dual else ["K", "Q0", "Q1"]
        e("s_add_u32 s%d, s%d, %d" % (sWRAP, sWB, npos * PAIR))
        if dual: e("s_mov_b32 s%d, s%d" % (sLDS, sWB))
        else: e("s_add_u32 s%d, s%d, %d" % (sLDS, sWB, PAIR))
        for x in (sQ, sK, sV): e("s_mov_b32 s%d, s%d" % (x + 2, sEND))
        def adv(n): e("s_add_u32 s%d, s%d, %d" % (sLDS, sLDS, n * PAIR & 0xffffffff))
        def q_first():
            e("s_lshl_b32 s%d, s%d, 12" % (sSA, sQ0))
            e("s_add_u32 s%d, s%d, %d" % (sSB, sSA, 32 * 4096))
            return issue_q(64, True)
        def k_first():
            e("s_lshl_b32 s%d, s%d, 12" % (sSA, sK0))
            e("s_add_u32 s%d, s%d, %d" % (sSB, sSA, 32 * 4096))
            return issue(sK, sK)
        if o["qfirst"]:
            adv(1); tq = q_first(); adv(-2); tk = k_first(); adv(1 if dual else 2)
        else:
            tk = k_first(); tq = q_first()
            if not dual: adv(1)
        elem("T0")
        assert not tch
        if o["t0pos"] < 4: finish_q(tq, 64, True, (o["t0pos"], lambda: elem("T")))
        else: finish_q(tq, 64, True); elem("T")
        if o["qfirst"]: wait(tk, False)
        e("s_waitcnt lgkmcnt(0)")
        g.stamp()
        e("s_barrier")
        for _ in range(lead - 1):
            if tch: touch(sK, sK)
            elem("T")
        if o["prio"]: e("s_setprio 0")
        e("s_sub_u32 s%d, s%d, %d" % (sT1, sN, lead))
        def steady(lab, t, check0):
            g.lab("L_pt" + lab)
            if check0:
                e("s_cmp_eq_u32 s%d, 0" % sT1)
                e("s_cbranch_scc1 L_pe" + lab)
            def after_target():
                r = rel(); return r[max(i for i, x in enumerate(r) if x == -lead):]
            before = after_target()
            wait(cnt[0] - lead, True, t)
            elem("T")
            e("s_sub_u32 s%d, s%d, 1" % (sT1, sT1))
            assert after_target() == before, (before, after_target())
            if check0: e("s_branch L_pt" + lab); g.lab("L_pe" + lab)
            else:
                e("s_cmp_lg_u32 s%d, 0" % sT1)
                e("s_cbranch_scc1 L_pt" + lab)
        def drain(t):
            for n in range(lead, 0, -1): wait(cnt[0] - n, True, t)
            g.stamp()
            e("s_branch L_tsout" if ts else "s_endpgm")
        tt = (sV, sK) if tch else None
        steady(sfx, tt, multi)
        if multi:
            e("s_cmp_eq_u32 s%d, 0" % sR1)
            e("s_cbranch_scc1 L_pd" + sfx)
            st0 = (list(q), cnt[0])
            def change(skip, lab):
                q[:] = st0[0]; cnt[0] = st0[1]
                seq = (["X"] if skip else []) + pro + ["T"] * lead
                proc = [True] * lead + ([False] if skip else []) + [False] * (len(pro) - 1) + [True]
                assert len(seq) == len(proc)
                first_t = True
                for n, (k, bar) in enumerate(zip(seq, proc)):
                    pk_ = seq[n - lead] if n >= lead else "T"
                    if pk_ in ("Q0", "Q1"):
                        finish_q(cnt[0] - lead, 64 if pk_ == "Q0" else 80)
                        if bar: e("s_waitcnt lgkmcnt(0)"); g.stamp(); e("s_barrier")
                    else: wait(cnt[0] - lead, bar, tt if n < lead else None)
                    if k == "X": issue(sV, sK)
                    elif k == "T":
                        if first_t: elem("T0"); first_t = False
                        elem("T")
                    else:
                        if k == "K":
                            if tch:
                                pass
                            next_round()
                        elem(k)
                e("s_sub_u32 s%d, s%d, %d" % (sT1, sN, lead))
                q[:] = [x for x in q if x >= 0]
                e("s_branch L_pt2" + sfx)
            if dual: change(False, "a")
            else:
                e("s_bitcmp1_b32 s%d, 0" % sN)
                e("s_cbranch_scc1 L_pc1" + sfx)
                change(True, "a")
                g.lab("L_pc1" + sfx)
                change(False, "b")
            steady("2" + sfx, None, True)
            drain(None)
            q[:] = st0[0]; cnt[0] = st0[1]
        g.lab("L_pd" + sfx)
        drain(tt)
    producer(False, o["ntf"], "s", False)
    g.lab("L_pkeep")
    producer(False, o["keepf"], "k", True)
    g.lab("L_pdual")
    producer(True, o["dualf"], "d", True)

    g.L.append(".p2align 6")
    g.lab("L_cons")
    g.c("================= compute waves =================")
    if o["prio"]: e("s_setprio 1")
    t = vT
    e("v_lshrrev_b32 v%d, 5, v0" % vHF)
    e("v_and_b32 v%d, 3, v0" % t)
    e("v_bfe_u32 v%d, v0, 4, 1" % (t + 1))
    e("v_lshl_add_u32 v%d, v%d, 1, v%d" % (t + 1, t, t + 1))
    e("v_bfe_u32 v%d, v0, 2, 1" % (t + 2))
    e("v_bfe_u32 v%d, v0, 3, 1" % (t + 3))
    e("v_lshl_add_u32 v%d, v%d, 1, v%d" % (t + 3, t + 3, t + 2))
    e("v_mul_u32_u24 v%d, %d, v%d" % (t + 4, PIECE, t + 1))
    e("v_lshl_add_u32 v%d, v%d, 8, v%d" % (t + 4, t + 3, t + 4))
    e("v_xor_b32 v%d, v%d, v%d" % (t + 2, t + 2, vHF))
    e("v_lshl_add_u32 v%d, v%d, 4, v%d" % (vKB, t + 2, t + 4))
    e("v_bfe_u32 v%d, v0, 2, 2" % (t + 4))
    e("v_mul_u32_u24 v%d, %d, v%d" % (t + 4, 2 * PIECE, t + 4))
    e("v_lshl_add_u32 v%d, v%d, 8, v%d" % (t + 4, vHF, t + 4))
    e("v_bfe_u32 v%d, v0, 4, 1" % (t + 5))
    e("v_lshlrev_b32 v%d, 5, v%d" % (t + 5, t + 5))
    e("v_lshl_add_u32 v%d, v%d, 3, v%d" % (t + 5, t, t + 5))
    e("v_lshlrev_b32 v%d, 4, v%d" % (t + 6, vHF))
    e("v_xor_b32 v%d, v%d, v%d" % (t + 5, t + 5, t + 6))
    e("v_add_u32 v%d, v%d, v%d" % (vVB, t + 4, t + 5))
    e("v_mov_b32 v%d, 0xff800000" % vNINF)
    e("s_lshr_b32 s%d, s%d, 1" % (sT0, sW))
    e("s_mul_i32 s%d, s%d, s%d" % (sT0, sT0, sD))
    e("s_mul_i32 s%d, s%d, %d" % (sT1, sT0, 2 * GRP))
    e("s_lshl_b32 s%d, s%d, 8" % (sT0, sT0))
    e("s_mov_b32 s%d, s%d" % (sHA, sH))
    e("s_add_u32 s%d, s%d, s%d" % (sH, sH, sT0))
    e("s_cmp_eq_u32 s%d, 0" % sD)
    e("s_cselect_b32 s%d, 3, 1" % sGM)
    e("s_and_b32 s%d, s%d, s%d" % (sQB, sW, sGM))
    e("v_add_u32 v%d, s%d, v%d" % (vKB, sT1, vKB))
    e("v_add_u32 v%d, s%d, v%d" % (vVB, sT1, vVB))
    g.c("staging: write row = lane&31 (128 B pitch), chunk ^ (row&7), 8-byte half hf ^ (row>>3 & 1)")
    e("s_lshl_b32 s%d, s%d, 12" % (sT0, sW))
    e("s_add_u32 s%d, s%d, %d" % (sT0, sT0, STG))
    e("v_and_b32 v%d, 31, v0" % (t + 4))
    e("v_lshlrev_b32 v%d, 7, v%d" % (t + 4, t + 4))
    if o["flip"]:
        e("v_bfe_u32 v%d, v0, 3, 1" % (t + 5))
        e("v_xor_b32 v%d, v%d, v%d" % (t + 5, t + 5, vHF))
        e("v_lshl_add_u32 v%d, v%d, 3, v%d" % (t + 4, t + 5, t + 4))
    else: e("v_lshl_add_u32 v%d, v%d, 3, v%d" % (t + 4, vHF, t + 4))
    e("v_and_b32 v%d, 7, v0" % (t + 5))
    e("v_lshl_add_u32 v%d, v%d, 4, v%d" % (t + 4, t + 5, t + 4))
    e("v_add_u32 v%d, s%d, v%d" % (vSW, sT0, t + 4))
    for c in range(1, 8): e("v_xor_b32 v%d, %d, v%d" % (vSW + c, c * 16, vSW))
    e("v_lshrrev_b32 v%d, 3, v0" % (t + 4))
    e("v_xor_b32 v%d, v%d, v%d" % (t + 6, t + 4, t + 5))
    e("v_lshlrev_b32 v%d, 7, v%d" % (t + 4, t + 4))
    e("v_lshl_add_u32 v%d, v%d, 4, v%d" % (t + 4, t + 6, t + 4))
    e("v_add_u32 v%d, s%d, v%d" % (vSR, sT0, t + 4))
    e("v_add_u32 v%d, 2048, v%d" % (vSR2, vSR))
    e("v_bfe_u32 v%d, v0, 3, 2" % (t + 4))
    e("v_lshl_add_u32 v%d, v%d, 3, v%d" % (t + 4, t + 4, vHF))
    e("v_lshlrev_b32 v%d, 12, v%d" % (t + 4, t + 4))
    e("v_lshl_add_u32 v%d, v%d, 4, v%d" % (vOOF, t + 5, t + 4))
    e("s_mov_b32 s%d, 0" % sG)
    e("s_mov_b32 s%d, 0x%08x" % (sC, f2u((128 ** -0.5) * 1.4426950408889634)))
    e("s_mov_b32 s%d, 0" % sBAD)
    e("s_mov_b32 s%d, 1" % sBIT)
    e("s_mov_b32 s%d, s%d" % (sRS0, sR0))
    e("s_mov_b32 s%d, s%d" % (sRS1, sR1))
    e("s_mov_b32 s%d, 0x%08x" % (sHI, f2u(2.0 ** 60) if not o["forcebad"] else f2u(2.0 ** -70)))
    e("s_mov_b32 s%d, 0x%08x" % (sLO, f2u(2.0 ** -60)))
    g.c("first round: this wave fetches, scales and stages two pieces of Q blocks 2,3 (dual: of the second head)")
    dma_lane_offset(KF + 16, KF + 17, KF + 18)
    e("s_lshl_b32 s%d, s%d, 15" % (sT0, sW))
    e("v_add_u32 v%d, s%d, v%d" % (KF + 16, sT0, KF + 16))
    e("v_add_u32 v%d, 16384, v%d" % (KF + 17, KF + 16))
    e("s_lshl_b32 s%d, s%d, 12" % (sO0, sQ0))
    e("s_cmp_eq_u32 s%d, 0" % sD)
    e("s_movk_i32 s%d, 256" % sT0)
    e("s_mov_b32 s%d, %d" % (sT1, 2 * GRP + PAIR))
    e("s_cselect_b32 s%d, %d, s%d" % (sT0, 64 * 4096, sT0))
    e("s_cselect_b32 s%d, %d, s%d" % (sT1, 3 * PAIR, sT1))
    e("s_add_u32 s%d, s%d, s%d" % (sO0, sO0, sT0))
    e("s_add_u32 s%d, s%d, %d" % (sO0 + 1, sO0, 32 * 4096))
    e("s_mul_i32 s%d, s%d, %d" % (sT0, sW, 2 * PIECE))
    e("s_add_u32 s%d, s%d, s%d" % (sT1, sT1, sT0))
    e("v_lshlrev_b32 v%d, 4, v0" % (KF + 18))
    e("v_add_u32 v%d, s%d, v%d" % (KF + 18, sT1, KF + 18))
    e("s_waitcnt lgkmcnt(0)")
    e("s_add_u32 s%d, s4, s%d" % (sQ, sHA))
    e("s_addc_u32 s%d, s5, 0" % (sQ + 1))
    e("s_mov_b32 s%d, s%d" % (sQ + 2, sEND))
    e("s_mov_b32 s%d, 0x20000" % (sQ + 3))
    for n in range(4):
        e("buffer_load_dwordx4 %s, v%d, %s, s%d offen nt" % (vr(Q + 4 * n, 4), KF + 16 + (n & 1), sr(sQ, 4), sO0 + (n >> 1)))
    srd(sO, 12)
    if o["burn"]:
        for i in range(32):
            if o["burnrnd"]:
                e("v_mul_u32_u24 v%d, %d, v0" % (VF + i, 40503 + 977 * i)); e("v_mul_lo_u32 v%d, v%d, v%d" % (VF + i, VF + i, VF + i)); e("v_and_b32 v%d, 0xbf7fbf7f, v%d" % (VF + i, VF + i))
            else: e("v_mov_b32 v%d, 0" % (VF + i))
        e("s_mov_b32 s%d, %d" % (sT0, o["burn"]))
        g.lab("L_burn")
        for n in range(8): e("v_mfma_f32_32x32x16_bf16 %s, %s, %s, %s" % (vr(O + 16 * (n & 3), 16), vr(VF + 4 * n, 4), vr(VF + 4 * ((n + 3) & 7), 4), vr(O + 16 * (n & 3), 16)))
        e("s_sub_u32 s%d, s%d, 1" % (sT0, sT0)); e("s_cmp_lg_u32 s%d, 0" % sT0); e("s_cbranch_scc1 L_burn")
    def round_setup():
        e("s_mov_b32 s%d, s%d" % (sO + 2, sEND))
        e("s_lshl_b32 s%d, s%d, 5" % (sT0, sQB))
        e("s_add_u32 s%d, s%d, s%d" % (sT0, sT0, sQ0))
        e("s_lshl_b32 s%d, s%d, 12" % (sO0, sT0))
        for j in range(1, 4): e("s_add_u32 s%d, s%d, %d" % (sO0 + j, sO0, j * 8192))
        e("s_sub_u32 s%d, s%d, 1" % (sT0, sN))
        e("s_lshl_b32 s%d, s%d, 5" % (sT0, sT0))
        e("s_sub_u32 s%d, s%d, s%d" % (sT0, sL, sT0))
        e("v_sub_u32 v%d, s%d, v%d" % (vTMP, sT0, vHF))
    def setup_valu():
        r = ["v_mov_b64 %s, 0" % vr(CI + i, 2) for i in range(0, 16, 2)] + ["v_mov_b64 %s, 0" % vr(vL, 2)]
        r += ["v_mov_b64 %s, 0" % vr(O + i, 2) for i in range(0, 64, 2)]
        for rr in range(16):
            kc = 8 * (rr % 4) + 4 * (rr // 8) + 2 * ((rr // 4) % 2)
            r.append("v_cmp_lt_i32 %s, %d, v%d" % (sr(sMASK + 2 * rr, 2), kc, vTMP))
        return r
    def mask_ci():
        for rr in range(16):
            e("v_cndmask_b32 v%d, v%d, v%d, %s" % (CI + rr, vNINF, CI + rr, sr(sMASK + 2 * rr, 2)))
    def qscale(s_, pk_=False):
        for i in range(4 * s_, 4 * s_ + 4):
            tt = vT + 2 * (i % 4)
            e("v_lshlrev_b32 v%d, 16, v%d" % (tt, Q + i))
            e("v_and_b32 v%d, 0xffff0000, v%d" % (tt + 1, Q + i))
            if pk_: e("v_pk_mul_f32 %s, %s, %s op_sel_hi:[1,0]" % (vr(tt, 2), vr(tt, 2), sr(sC, 2)))
            else:
                e("v_mul_f32 v%d, s%d, v%d" % (tt, sC, tt)); e("v_mul_f32 v%d, s%d, v%d" % (tt + 1, sC, tt + 1))
            e("v_cvt_pk_bf16_f32 v%d, v%d, v%d" % (Q + i, tt, tt + 1))
    for n in range(4):
        e("s_waitcnt vmcnt(%d)" % (3 - n))
        qscale(n, True)
        e("ds_write_b128 v%d, %s offset:%d" % (KF + 18, vr(Q + 4 * n, 4), (n & 1) * PIECE + (n >> 1) * BLK))
    g.lab("L_cround")
    round_setup()
    e("s_mul_i32 s%d, s%d, %d" % (sGOFF, sG, GRP))
    e("s_add_u32 s%d, s%d, %d" % (sT0, sGOFF, PAIR))
    e("s_add_u32 s%d, s%d, 1" % (sG, sG))
    e("s_and_b32 s%d, s%d, s%d" % (sG, sG, sGM))
    e("s_mul_i32 s%d, s%d, %d" % (sT1, sG, GRP))
    e("s_cmp_eq_u32 s%d, 0" % sD)
    e("s_cselect_b32 s%d, s%d, s%d" % (sGOFF, sT0, sGOFF))
    e("s_cselect_b32 s%d, s%d, s%d" % (sT0, sT1, sT0))
    e("s_addc_u32 s%d, s%d, 0" % (sG, sG))
    e("s_and_b32 s%d, s%d, s%d" % (sG, sG, sGM))
    e("s_mul_i32 s%d, s%d, %d" % (sT1, sQB, BLK))
    e("s_add_u32 s%d, s%d, s%d" % (sT0, sT0, sT1))
    e("v_add_u32 v%d, s%d, v%d" % (vQA, sT0, vKB))
    e("v_add_u32 v%d, s%d, v%d" % (vKA, sGOFF, vKB))
    e("s_mul_i32 s%d, s%d, %d" % (sGOFF, sG, GRP))
    e("v_add_u32 v%d, s%d, v%d" % (vVA, sGOFF, vVB))
    e("s_sub_u32 s%d, s%d, 3" % (sCNT, sN))
    e("s_mov_b32 s%d, 0" % sSTG)
    e("s_waitcnt lgkmcnt(0)")
    g.stamp()
    e("s_barrier")
    g.stamp()
    sv = setup_valu()
    AH = o["ahead"]
    for s_ in range(AH):
        e(kread(Q, s_, 0, vQA)); e(kread(KF, s_, 0))
    for s_ in range(8):
        e("s_waitcnt lgkmcnt(%d)" % (2 * (min(8, s_ + AH) - s_ - 1)))
        m = qk(s_, 0)
        if s_ == 0: m = m[:m.rindex(",")] + ", 0"
        e(m)
        if s_ + AH < 8:
            e(kread(Q, s_ + AH, 0, vQA)); e(kread(KF, s_ + AH, 0))
        if s_ < 7:
            for x in sv[:6]: e(x)
            sv = sv[6:]
    for s_ in range(8): e(kread(KF, s_, BLK))
    e("v_add_u32 v%d, s%d, v%d" % (vKA, sGOFF, vKB))
    for x in sv: e(x)
    e("s_barrier")
    for x in "Xn0 Xn1 Xn2 Xn3 Cn0 Xn4 Cn1 Xn5".split(): e(op(x, 1)[0])
    e("s_nop 0")
    e(op("Cn2", 1)[0])
    if ts == 2: g.stamp_issue()
    else: g.stamp()
    g.L.append(".p2align 6")
    gaps = SCHED[o["sched"]]
    for h in range(2):
        g.lab("L_h%d" % h)
        e("s_waitcnt lgkmcnt(0)")
        if ts == 2: g.stamp_write()
        for n in range(16):
            e(qk(n, 1 - h) if n < 8 else pv(n - 8))
            if ts == 2 and n == 13: g.stamp_issue()
            for x in gaps[n]:
                for y in op(x, h): e(y)
    for h in range(2):
        g.lab("L_ev%d" % h)
        e("s_cmp_lg_u32 s%d, 0" % sSTG)
        e("s_cbranch_scc1 L_tail%d" % (1 - h))
        e("s_mov_b32 s%d, 1" % sSTG)
        e("s_mov_b32 s%d, 0" % sCNT)
        mask_ci()
        e("s_branch L_h%d" % (1 - h))
    for h in range(2):
        g.lab("L_tail%d" % h)
        if ts == 2:
            e("s_waitcnt lgkmcnt(0)"); g.stamp_write()
        if ts == 3: e("s_memtime s[64:65]"); g.nfs = 1
        if ts == 5: g.nfs = 0; e(g.fs(5)[0])
        for x in TAIL:
            if ts == 5 and (x[0] in "WM" or x == "Xc6"): e(g.fs(5)[0])
            for y in op(x, h): e(y)
        if ts == 5: e(g.fs(5)[0])
        if h == 0: e("s_branch L_epi")
    W = VF; R = KF
    def blk(db, qd, pk_=True):
        ob = O + 16 * db + 4 * qd; w = VF + (0, 16, 8, 24)[db] + 2 * qd
        if pk_: m = ["v_pk_mul_f32 %s, %s, %s op_sel_hi:[1,0]" % (vr(ob + k, 2), vr(ob + k, 2), vr(vRI, 2)) for k in (0, 2)]
        else: m = ["v_mul_f32 v%d, v%d, v%d" % (ob + k, vRI, ob + k) for k in range(4)]
        return m + ["v_cvt_pk_bf16_f32 v%d, v%d, v%d" % (w, ob, ob + 1),
                    "v_cvt_pk_bf16_f32 v%d, v%d, v%d" % (w + 1, ob + 2, ob + 3),
                    "ds_write_b64 v%d, %s" % (vSW + (db & 1) * 4 + qd, vr(w, 2))]
    def zero(db, qd): return ["v_mov_b64 %s, 0" % vr(O + 16 * db + 4 * qd, 2), "v_mov_b64 %s, 0" % vr(O + 16 * db + 4 * qd + 2, 2)]
    def rd(hh, j):
        d = vr(R + 16 * hh + 4 * j, 4)
        if j & 1: return "ds_read2_b64 %s, v%d offset0:129 offset1:128" % (d, vSR2 if j == 3 else vSR)
        return "ds_read_b128 %s, v%d offset:%d" % (d, vSR, j * 1024)
    def st(hh, j): return "buffer_store_dwordx4 %s, v%d, %s, s%d offen%s%s" % (vr(R + 16 * hh + 4 * j, 4), vOOF, sr(sO, 4), sO0 + j, " offset:128" if hh else "", stf)
    def lsum():
        return ["v_add_f32 v%d, v%d, v%d" % (vL, vL, vL2), "v_mov_b32 v%d, v%d" % (vTMP, vL)]
    def lfin():
        return ["v_permlane32_swap_b32 v%d, v%d" % (vTMP, vL), "v_add_f32 v%d, v%d, v%d" % (vL, vL, vTMP), "v_rcp_f32 v%d, v%d" % (vRI, vL)]
    def zero_o():
        for i in range(0, 64, 2): e("v_mov_b64 %s, 0" % vr(O + i, 2))
    def rd2(hh, j): return "ds_read_b128 %s, v%d offset:%d" % (vr(R + 16 * hh + 4 * j, 4), vSR, j * 1024)
    def fix(hh, j):
        r = R + 16 * hh + 4 * j
        return ["v_swap_b32 v%d, v%d" % (r, r + 2), "v_swap_b32 v%d, v%d" % (r + 1, r + 3)] if (j & 1 and o["flip"]) else []
    def epilogue(fast):
        seq = []
        F = g.fs if fast else (lambda: [])
        va = lambda db, qd, pk_=True: blk(db, qd, pk_)[:-1]
        wr = lambda db, qd: [blk(db, qd)[-1]]
        W_ = lambda n: ["s_waitcnt lgkmcnt(%d)" % n]
        E = o["epi"]
        if fast:
            seq += F() + lsum() + ["s_waitcnt lgkmcnt(0)", pv(2)] + lfin()
            seq += ["v_cmp_gt_f32 vcc, s%d, v%d" % (sHI, vL), "v_cmp_lt_f32 %s, s%d, v%d" % (sr(sT0, 2), sLO, vL), pv(6)]
            seq += ["s_and_b64 vcc, vcc, %s" % sr(sT0, 2), "s_cmp_eq_u64 vcc, -1"] + va(0, 0, False) + [pv(3)]
            seq += wr(0, 0) + ["s_cselect_b32 s%d, 0, s%d" % (sT0, sBIT)] + va(0, 1, False) + [pv(7)]
            seq += wr(0, 1) + ["s_or_b32 s%d, s%d, s%d" % (sBAD, sBAD, sT0)] + va(0, 2, False) + va(0, 3, False)
        else:
            seq += lsum() + ["s_nop 1"] + lfin() + ["s_nop 0"] + blk(0, 0) + blk(0, 1) + va(0, 2) + va(0, 3)
        seq += F()
        allv = lambda db: sum((va(db, qd) for qd in range(4)), [])
        allw = lambda db: sum((wr(db, qd) for qd in range(4)), [])
        if E == 0:
            w5 = W_(5)
            seq += wr(0, 2) + wr(0, 3)
            for qd in range(4): seq += blk(1, qd)
            seq += [rd2(0, j) for j in range(4)] + F()
            seq += blk(2, 0) + blk(2, 1) + w5 + [st(0, 0)] + blk(2, 2) + w5 + fix(0, 1) + [st(0, 1)] + blk(2, 3) + w5 + [st(0, 2)] + blk(3, 0) + w5 + fix(0, 3) + [st(0, 3)] + F()
            seq += blk(3, 1) + blk(3, 2) + blk(3, 3) + [rd2(1, j) for j in range(4)] + F()
        elif E == 4:
            seq += wr(0, 2) + wr(0, 3) + allv(1) + allw(1) + [rd2(0, j) for j in range(4)] + allv(2) + allw(2)
            seq += W_(4) + fix(0, 1) + fix(0, 3) + [st(0, j) for j in range(4)] + allv(3) + allw(3) + [rd2(1, j) for j in range(4)]
        elif E == 5:
            seq += wr(0, 2) + wr(0, 3) + allv(1) + allw(1) + [rd2(0, j) for j in range(4)] + allv(2) + allv(3)
            seq += W_(0) + fix(0, 1) + fix(0, 3) + [st(0, 0)] + allw(2) + [st(0, 1)] + allw(3) + [st(0, 2)] + [rd2(1, j) for j in range(4)] + [st(0, 3)]
        elif E == 6:
            seq += wr(0, 2) + wr(0, 3) + allv(1) + allw(1) + [rd2(0, j) for j in range(4)] + allv(2)
            seq += W_(0) + [st(0, 0)] + fix(0, 1) + fix(0, 3) + va(3, 0) + va(3, 1) + [st(0, 1)] + va(3, 2) + va(3, 3) + [st(0, 2)] + allw(2) + [st(0, 3)] + allw(3) + [rd2(1, j) for j in range(4)]
        elif E == 1:
            seq += wr(0, 2) + wr(0, 3) + allv(1) + allw(1) + [rd2(0, j) for j in range(4)] + F()
            seq += allv(2) + allw(2)
            for j in range(4): seq += W_(7 - j) + fix(0, j) + [st(0, j)] + va(3, j)
            seq += F() + allw(3) + [rd2(1, j) for j in range(4)] + F()
        elif E == 2:
            seq += allv(1) + wr(0, 2) + wr(0, 3) + allw(1) + [rd2(0, j) for j in range(4)] + allv(2) + allv(3)
            for j in range(4): seq += W_(3 - j) + fix(0, j) + [st(0, j)]
            seq += allw(2) + allw(3) + [rd2(1, j) for j in range(4)]
        elif E == 3:
            seq += allv(1) + wr(0, 2) + wr(0, 3) + allw(1) + [rd2(0, j) for j in range(4)] + allv(2)
            seq += W_(3) + [st(0, 0)] + va(3, 0) + W_(2) + fix(0, 1) + [st(0, 1)] + va(3, 1) + W_(1) + [st(0, 2)] + va(3, 2) + W_(0) + fix(0, 3) + [st(0, 3)] + va(3, 3)
            seq += allw(2) + allw(3) + [rd2(1, j) for j in range(4)]
        for j in (0, 2, 1, 3) if E != 1 else range(4):
            pass
        for j in range(4): seq += W_(3 - j) + fix(1, j) + [st(1, j)]
        seq += F()
        for x in seq: e(x)
    g.lab("L_epi")
    epilogue(True)
    g.fs_flush()
    g.fs_flush(5)
    e("s_cmp_eq_u32 s%d, 0" % sR1)
    e("s_cbranch_scc1 L_cdone")
    next_round()
    e("s_mov_b32 s%d, 2" % sBIT)
    e("s_branch L_cround")
    g.lab("L_cdone")
    g.stamp()
    e("s_barrier")
    e("s_cmp_lg_u32 s%d, 0" % sBAD)
    e("s_cbranch_scc1 L_slow")
    g.lab("L_fin")
    if ts:
        e("s_waitcnt vmcnt(0)")
        g.stamp()
        g.lab("L_tsout")
        e("s_lshl_b32 s%d, s2, 3" % sT0)
        e("s_add_u32 s%d, s%d, s%d" % (sT0, sT0, sW))
        e("s_lshl_b32 s%d, s%d, 9" % (sT0, sT0))
        e("s_add_u32 s16, s16, s%d" % sT0)
        e("s_addc_u32 s17, s17, 0")
        e("v_lshlrev_b32 v1, 3, v0")
        e("global_store_dwordx2 v1, v[30:31], s[16:17]")
        if o["diag"] >= 0:
            e("s_cmp_ge_u32 s%d, 4" % sW); e("s_cbranch_scc1 L_end")
            e("s_cmp_lg_u32 s2, %d" % o["diagwg"]); e("s_cbranch_scc1 L_end")
            e("v_readlane_b32 s60, v31, 0")
            e("v_readlane_b32 s61, v31, %d" % o["diag"])
            e("s_nop 4")
            e("s_sub_u32 s61, s61, s60")
            e("s_mul_i32 s61, s61, 10")
            e("s_cmp_eq_u32 s2, %d" % o["diagwg"])
            e("s_cselect_b32 s61, s61, 0")
            e("s_cmp_eq_u32 s%d, %d" % (sW, o["diagwave"]))
            e("s_cselect_b32 s61, s61, 0")
            e("s_add_u32 s61, s61, 5000")
            g.lab("L_spin")
            e("s_sleep 8")
            e("s_memrealtime s[52:53]")
            e("s_waitcnt lgkmcnt(0)")
            e("s_sub_u32 s52, s52, s60")
            e("s_cmp_lt_u32 s52, s61")
            e("s_cbranch_scc1 L_spin")
    g.lab("L_end")
    e("s_endpgm")
    g.lab("L_slow")
    g.c("================= fallback: true running max, this wave alone, private LDS area =================")
    srd(sQ, 4); srd(sK, 6); srd(sV, 8)
    dma_lane_offset(vDMA, vT, vT + 1)
    e("s_mul_i32 s%d, s%d, %d" % (sG, sW, GRP))
    e("s_lshr_b32 s%d, s%d, 1" % (sT0, sW))
    e("s_mul_i32 s%d, s%d, s%d" % (sT0, sT0, sD))
    e("s_mul_i32 s%d, s%d, %d" % (sT1, sT0, 2 * GRP))
    e("s_sub_i32 s%d, s%d, s%d" % (sT0, sG, sT1))
    e("v_add_u32 v%d, s%d, v%d" % (vKA, sT0, vKB))
    e("v_add_u32 v%d, s%d, v%d" % (vVA, sT0, vVB))
    e("s_mov_b32 s%d, s%d" % (sR0, sRS0))
    e("s_bitcmp1_b32 s%d, 0" % sBAD)
    e("s_cbranch_scc1 L_sround")
    g.lab("L_snext")
    e("s_bitcmp1_b32 s%d, 1" % sBAD)
    e("s_cbranch_scc0 L_fin")
    e("s_mov_b32 s%d, 0" % sBAD)
    e("s_mov_b32 s%d, s%d" % (sR0, sRS1))
    g.lab("L_sround")
    decode_round()
    for x in (sQ, sK, sV): e("s_mov_b32 s%d, s%d" % (x + 2, sEND))
    round_setup()
    for x in setup_valu(): e(x)
    def sload(srd_, soff, blkno):
        for p in range(8):
            e("s_add_u32 s%d, s%d, %d" % (sT0, sG, blkno * BLK + p * PIECE))
            e("s_mov_b32 m0, s%d" % sT0)
            e("s_add_u32 s%d, s%d, %d" % (sT1, soff, p * 16384))
            e("buffer_load_dwordx4 v%d, %s, s%d offen lds" % (vDMA, sr(srd_, 4), sT1))
    sload(sQ, sO0, 0)
    e("s_waitcnt vmcnt(0)")
    for s_ in range(8): e(kread(Q, s_, 0))
    e("s_waitcnt lgkmcnt(0)")
    for s_ in range(8): qscale(s_)
    e("v_mov_b32 v%d, 0xf149f2ca" % vM)
    e("s_lshl_b32 s%d, s%d, 12" % (sGOFF, sK0))
    e("s_mov_b32 s%d, s%d" % (sCNT, sN))
    g.lab("L_stile")
    sload(sK, sGOFF, 0); sload(sV, sGOFF, 1)
    e("s_cmp_lg_u32 s%d, 1" % sCNT)
    e("s_cbranch_scc1 L_snomask")
    mask_ci()
    g.lab("L_snomask")
    e("s_waitcnt vmcnt(0)")
    for s_ in range(8): e(kread(KF, s_, 0))
    for n in range(8): e(vread(n, BLK))
    e("s_waitcnt lgkmcnt(0)")
    for n in range(8, 16): e(vread(n, BLK))
    for s_ in range(8): e(qk(s_, 0))
    e("s_nop 15")
    s0 = S[0]
    e("v_max_f32 v%d, v%d, v%d" % (vTMP, vM, s0))
    for i in range(1, 15, 2): e("v_max3_f32 v%d, v%d, v%d, v%d" % (vTMP, vTMP, s0 + i, s0 + i + 1))
    e("v_max_f32 v%d, v%d, v%d" % (vTMP, vTMP, s0 + 15))
    e("v_mov_b32 v%d, v%d" % (vTMP2, vTMP))
    e("s_nop 1")
    e("v_permlane32_swap_b32 v%d, v%d" % (vTMP, vTMP2))
    e("v_max_f32 v%d, v%d, v%d" % (vTMP, vTMP, vTMP2))
    e("v_sub_f32 v%d, v%d, v%d" % (vRI, vM, vTMP))
    e("v_exp_f32 v%d, v%d" % (vRI, vRI))
    e("v_mov_b32 v%d, v%d" % (vM, vTMP))
    for i in range(16): e("v_sub_f32 v%d, v%d, v%d" % (s0 + i, s0 + i, vM))
    for i in range(16): e("v_exp_f32 v%d, v%d" % (s0 + i, s0 + i))
    for i in range(0, 64, 2): e("v_pk_mul_f32 %s, %s, %s op_sel_hi:[1,0]" % (vr(O + i, 2), vr(O + i, 2), vr(vRI, 2)))
    e("v_pk_mul_f32 %s, %s, %s op_sel_hi:[1,0]" % (vr(vL, 2), vr(vL, 2), vr(vRI, 2)))
    for i in range(16): e(op("Ac%d" % i, 0)[0])
    for i in range(8): e(op("Cc%d" % i, 0)[0])
    e("s_waitcnt lgkmcnt(0)")
    e("s_nop 0")
    for n in range(8): e(pv(n))
    e("s_add_u32 s%d, s%d, %d" % (sGOFF, sGOFF, 32 * 4096))
    e("s_sub_u32 s%d, s%d, 1" % (sCNT, sCNT))
    e("s_cmp_lg_u32 s%d, 0" % sCNT)
    e("s_nop 15")
    e("s_cbranch_scc1 L_stile")
    epilogue(False)
    e("s_branch L_snext")
    g.L.append(KD)
    return "\n".join(g.L) + "\n"

if __name__ == "__main__":
    out = sys.argv[1]
    opts = {}
    for a in sys.argv[2:]:
        k, v = a.split("="); opts[k] = v if "," in v else int(v)
    open(out, "w").write(gen(**opts))
```

```python
import sys, struct

KN = "standalone__ragged_sequences_packed_sequences__ragged_kernel"
PIECE, BLK, PAIR, GRP = 1056, 8448, 16896, 33792
RING = 8 * PAIR
STG = RING
SP = 144
LDS = RING + 4 * 32 * SP

SEGS = [(0, 370), (370, 108), (478, 143), (621, 363), (984, 165), (1149, 432), (1581, 100), (1681, 465)]
def pk(seg, c, dual=0):
    k0, L = SEGS[seg]
    return k0 | (L << 12) | (c << 21) | (dual << 26)
def f2u(x): return struct.unpack("<I", struct.pack("<f", x))[0]

DEF = dict(ts=0, prio=1, diag=-1, diagwg=0, diagwave=4, stf=",sc0,sc1", lead=4, ntlo=8, nthi=20, delay=0, selfclk=0,
           forcebad=0, w2=1, tail=2, late=0, burn=0, burnrnd=0, t0pos=2, qfirst=1, ahead=3, flip=1, epi=0, touch="", leadk=4, keepf="", ntf=",nt", dualf=",nt", t0wait=0, hmap=0, hswap=0, sched=5)

class G:
    def __init__(s, **o):
        s.o = dict(DEF); s.o.update(o); s.L = []
    def e(s, x): s.L.append("    " + x)
    def c(s, x): s.L.append("    ; " + x)
    def lab(s, x): s.L.append(x + ":")
    def stamp_issue(s):
        if s.o["ts"]: s.e("s_memtime s[52:53]"); s.e("s_memrealtime s[54:55]")
    def stamp_write(s):
        if s.o["ts"]:
            s.e("s_mov_b32 m0, s56"); s.e("s_add_u32 s56, s56, 1"); s.e("v_writelane_b32 v30, s52, m0"); s.e("v_writelane_b32 v31, s54, m0")
    def fs(s, lvl=3):
        if s.o["ts"] == lvl:
            s.nfs = getattr(s, "nfs", 0); r = 64 + 2 * s.nfs; s.nfs += 1
            return ["s_memtime s[%d:%d]" % (r, r + 1)]
        return []
    def fs_flush(s, lvl=3):
        if s.o["ts"] == lvl:
            s.e("s_waitcnt lgkmcnt(0)")
            for k in range(s.nfs):
                s.e("s_mov_b32 m0, s56"); s.e("s_add_u32 s56, s56, 1"); s.e("v_writelane_b32 v30, s%d, m0" % (64 + 2 * k)); s.e("v_writelane_b32 v31, s54, m0")
    def stamp(s):
        if s.o["ts"]: s.stamp_issue(); s.e("s_waitcnt lgkmcnt(0)"); s.stamp_write()

O = 192; S = [160, 176]; CI = 144; Q = 112; KF = 80; VF = 48; P = 40
vKA, vVA, vKB, vVB, vQA = 1, 2, 3, 4, 5
vL, vL2, vNINF, vHF, vOOF, vTMP, vTMP2, vSR, vM, vRI, vDMA = 6, 7, 8, 9, 10, 11, 12, 13, 14, 16, 18
vSR2 = 15
vSW = 20
vT = 32
sQ, sK, sV, sO = 20, 24, 28, 32
sW, sH = 18, 19
sR0, sR1, sD = 36, 37, 38
sK0, sL, sQ0, sN, sEND = 39, 40, 41, 42, 43
sG, sGOFF, sCNT, sSTG, sT0, sT1, sC, sGM = 44, 45, 46, 47, 48, 49, 50, 51
sQB, sBAD, sBIT, sO0, sRS0, sRS1, sHI, sLO, sHA = 57, 58, 59, 60, 96, 97, 98, 99, 100
sLDS, sWRAP, sSA, sSB, sWB, sSA2, sSB2, sTA, sPC, sQL = 44, 45, 46, 47, 50, 51, 57, 58, 59, 68
sMASK = 64

def vr(b, n=1): return "v%d" % b if n == 1 else "v[%d:%d]" % (b, b + n - 1)
def sr(b, n=1): return "s%d" % b if n == 1 else "s[%d:%d]" % (b, b + n - 1)

KD = """.section .rodata,"a"
.p2align 6
.amdhsa_kernel %s
  .amdhsa_next_free_vgpr 256
  .amdhsa_next_free_sgpr 102
  .amdhsa_accum_offset 256
  .amdhsa_group_segment_fixed_size 0
  .amdhsa_kernarg_size 56
  .amdhsa_user_sgpr_count 2
  .amdhsa_user_sgpr_kernarg_segment_ptr 1
  .amdhsa_system_sgpr_workgroup_id_x 1
.end_amdhsa_kernel""" % KN

def kread(dst, s_, off, a=vKA):
    return "ds_read_b128 %s, v%d offset:%d" % (vr(dst + 4 * s_, 4), a, off + s_ * 32)
def qk(s_, buf):
    c = CI if s_ == 0 else S[buf]
    return "v_mfma_f32_32x32x16_bf16 %s, %s, %s, %s" % (vr(S[buf], 16), vr(KF + 4 * s_, 4), vr(Q + 4 * s_, 4), vr(c, 16))
def vread(n, off):
    ks, db, sec = n >> 3, (n >> 1) & 3, n & 1
    return "ds_read_b64_tr_b16 %s, v%d offset:%d" % (vr(VF + ks * 16 + db * 4 + sec * 2, 2), vVA, off + ks * PIECE + sec * 512 + db * 64)
def pv(n):
    ks, db = n >> 2, n & 3
    return "v_mfma_f32_32x32x16_bf16 %s, %s, %s, %s" % (vr(O + 16 * db, 16), vr(VF + ks * 16 + db * 4, 4), vr(P + 4 * ks, 4), vr(O + 16 * db, 16))
def op(x, h):
    cur, nxt = h, 1 - h
    off = h * PAIR
    if x == "B": return ["s_barrier"]
    if x[0] == "W": return ["s_waitcnt lgkmcnt(%s)" % x[1:].rstrip("ab")]
    if x == "SUB": return ["s_sub_u32 s%d, s%d, 1" % (sCNT, sCNT)]
    if x == "BR": return ["s_cbranch_scc1 L_ev%d" % h] + (["s_branch L_h0"] if h else [])
    if x == "H1": return ["s_add_u32 s%d, s%d, 1" % (sG, sG)] if not h else []
    if x == "H2": return ["s_and_b32 s%d, s%d, s%d" % (sG, sG, sGM)] if not h else []
    if x == "H3": return ["s_mul_i32 s%d, s%d, %d" % (sGOFF, sG, GRP)] if not h else []
    if x == "UV": return ["v_add_u32 v%d, s%d, v%d" % (vVA, sGOFF, vVB)] if h else []
    if x == "UK": return ["v_add_u32 v%d, s%d, v%d" % (vKA, sGOFF, vKB)] if h else []
    if x[0] == "M": return [pv(int(x[1:]))]
    if x[0] == "V": return [vread(int(x[1:]), off)]
    if x[0] == "K": return [kread(KF, int(x[1:]), off + BLK)]
    b = S[cur] if x[1] == "c" else S[nxt]
    i = int(x[2:])
    if x[0] == "X": return ["v_exp_f32 v%d, v%d" % (b + i, b + i)]
    if x[0] == "C": return ["v_cvt_pk_bf16_f32 v%d, v%d, v%d" % (P + i, b + 2 * i, b + 2 * i + 1)]
    if x[0] == "A": return ["v_add_f32 v%d, v%d, v%d" % (vL + (i & 1), vL + (i & 1), b + i)]
    raise ValueError(x)
def parse(s): return [g.split() for g in s.strip().split("|")]
SCHED = {}
SCHED[5] = parse("""V0 V1 Xc6 Xc7 | V2 V3 Xc8 Cc3 Ac0 | V4 V5 Xc9 Ac1 Ac2 | V6 V7 Xc10 Cc4 Ac3 | V8 V9 Xc11 Ac4 Ac5 | V10 V11 Xc12 Cc5 Ac6 | V12 V13 Xc13 Ac7 Ac8 | V14 V15 Xc14 Cc6 W8a |
 K0 K1 Xc15 Ac9 UV | K2 K3 Cc7 Ac10 Ac11 Ac12 | K4 K5 Xn0 Ac13 Ac14 | K6 K7 Xn1 Ac15 W8b | B H1 Xn2 Cn0 | H2 H3 Xn3 Xn4 UK | SUB Xn5 Cn1 | Cn2 BR""")
TAIL = """V0 V1 V8 V9 V2 V3 V10 V11 V4 V5 V12 V13 V6 V7 V14 V15 Xc6 Xc7 Xc8 Cc3 Xc9 Xc10 Xc11 Cc4 Cc5 W14 M0 Xc12 Xc13 Xc14 Xc15 Cc6 Ac0 Cc7 Ac1 Ac2 W12 M4
 Ac3 Ac4 Ac5 Ac6 Ac7 Ac8 W10 M1 Ac9 Ac10 Ac11 Ac12 Ac13 Ac14 W8 M5 Ac15""".split()

TAIL2 = """V0 V1 V8 V9 V2 V3 Xc6 Xc7 Xc8 Xc9 Cc3 Xc10 Xc11 Xc12 Xc13 Cc4 Ac0 N1 M0 V10 V11 Xc14 Xc15 Cc5 Cc6 Ac1 Cc7 Ac2 N9 M4 V4 V5 Ac3 Ac4 Ac5 Ac6 Ac7 N3 M1
 V12 V13 Ac8 Ac9 Ac10 Ac11 Ac12 N11 M5 V6 V7 V14 V15 Ac13 Ac14 Ac15""".split()
class DSQ:
    def __init__(s): s.q = []
    def add(s, tag): s.q.append(tag)
    def need(s, tag):
        if tag not in s.q: return []
        i = s.q.index(tag); n = len(s.q) - 1 - i
        del s.q[:i + 1]
        return ["s_waitcnt lgkmcnt(%d)" % n]

def gen(**opts):
    g = G(**opts); o = g.o; e = g.e
    ts = o["ts"]
    stf = o["stf"].replace(",", " ")
    g.L.append("""; Ragged (block-diagonal) attention, T=2146 H=16 D=128, bf16 in/out.
; kernarg: q,k,v,seg_ids,out,debug,ws.   Segment boundaries are constants of the problem (cu = 0,370,478,621,984,1149,1581,1681,2146).
; One workgroup per CU: waves 0-3 compute (32 query rows each, S^T = K Q^T, O^T = V^T P^T on MFMA 32x32x16),
; waves 4-7 stream Q/K/V tiles HBM -> LDS ring with LDS-DMA.
; softmax: exp2(s - ref) with ref = 0; every row sum is range-checked and a wave whose rows leave the safe range
; recomputes them with the true running max (L_slow).
; @launch grid=(256,1,1) block=(512,1,1) lds=%d
.amdgcn_target "amdgcn-amd-amdhsa--gfx950"
.text
.globl %s
.p2align 8
.type %s,@function
%s:""" % (LDS, KN, KN, KN))
    if ts:
        e("s_mov_b32 s56, 0"); e("v_mov_b32 v30, 0"); e("v_mov_b32 v31, 0"); g.stamp()
    e("s_load_dwordx8 s[4:11], s[0:1], 0")
    e("s_load_dwordx2 s[12:13], s[0:1], 32")
    if ts: e("s_load_dwordx2 s[16:17], s[0:1], 48")
    e("s_cmp_ge_u32 s2, 256")
    e("s_cbranch_scc1 L_end")
    e("v_lshrrev_b32 v1, 6, v0")
    e("v_and_b32 v0, 63, v0")
    e("v_readfirstlane_b32 s%d, v1" % sW)
    g.c("workgroup -> job: xcd = id&7, j = id>>3, slot = j>>1, hb = j&1")
    e("s_and_b32 s%d, s2, 7" % sH)
    e("s_lshl_b32 s%d, s%d, 1" % (sH, sH))
    e("s_lshr_b32 s3, s2, 4")
    e("s_bfe_u32 s%d, s2, 0x10003" % sT1)
    if o["hswap"]:
        e("s_and_b32 s%d, s2, 1" % sT0); e("s_xor_b32 s%d, s%d, s%d" % (sT1, sT1, sT0))
    HM = {0: {6: 6, 4: 4, 2: 2, 0: 0, 1: 1}, 1: {6: 3, 4: 2, 2: 1, 0: 0, 1: 7}, 2: {6: 0, 4: 0, 2: 0, 0: 0, 1: 0}}[o['hmap']]
    ho = lambda x: HM[x] << 27
    def K(seg, first, off): return (pk(seg, 0) - (first << 21) + ho(off)) & 0xffffffff
    e("s_mov_b32 s%d, 0x%x" % (sR0, K(3, 13, 6)))
    e("s_cmp_lt_u32 s3, 13"); e("s_cselect_b32 s%d, 0x%x, s%d" % (sR0, K(0, 10, 4), sR0))
    e("s_cmp_lt_u32 s3, 10"); e("s_cselect_b32 s%d, 0x%x, s%d" % (sR0, K(5, 7, 2), sR0))
    e("s_cmp_lt_u32 s3, 4");  e("s_cselect_b32 s%d, 0x%x, s%d" % (sR0, K(7, 0, 0), sR0))
    e("s_lshl_b32 s%d, s3, 21" % sT0)
    e("s_add_u32 s%d, s%d, s%d" % (sR0, sR0, sT0))
    e("s_cmp_eq_u32 s3, 4")
    e("s_cselect_b32 s%d, 0x%x, s%d" % (sR0, pk(4, 0) + ho(1), sR0)); e("s_cselect_b32 s%d, 0x%x, 0" % (sR1, pk(6, 0)))
    e("s_cmp_eq_u32 s3, 5")
    e("s_cselect_b32 s%d, 0x%x, s%d" % (sR0, pk(2, 0) + ho(1), sR0)); e("s_cselect_b32 s%d, 0x%x, s%d" % (sR1, pk(1, 0), sR1))
    e("s_lshr_b32 s%d, s2, 3" % sT0)
    e("s_cmp_eq_u32 s%d, 12" % sT0)
    e("s_cselect_b32 s%d, 0x%x, s%d" % (sR0, pk(4, 1, 1) + ho(1), sR0)); e("s_cselect_b32 s%d, 0x%x, s%d" % (sR1, pk(2, 1), sR1))
    e("s_cmp_eq_u32 s%d, 13" % sT0)
    e("s_cselect_b32 s%d, 0x%x, s%d" % (sR0, pk(5, 3, 1) + ho(2), sR0))
    e("s_bfe_u32 s%d, s%d, 0x1001a" % (sD, sR0))
    e("s_cmp_eq_u32 s3, 6")
    e("s_cselect_b32 s%d, 0, s%d" % (sT1, sT1))
    e("s_lshr_b32 s%d, s%d, 26" % (sT0, sR0))
    e("s_and_b32 s%d, s%d, 14" % (sT0, sT0))
    e("s_add_u32 s%d, s%d, s%d" % (sH, sH, sT0))
    e("s_and_b32 s%d, s%d, 15" % (sH, sH))
    e("s_add_u32 s%d, s%d, s%d" % (sH, sH, sT1))
    e("s_lshl_b32 s%d, s%d, 8" % (sH, sH))

    def decode_round():
        e("s_and_b32 s%d, s%d, 0xfff" % (sK0, sR0))
        e("s_bfe_u32 s%d, s%d, 0x9000c" % (sL, sR0))
        e("s_bfe_u32 s%d, s%d, 0x20015" % (sQ0, sR0))
        e("s_lshl_b32 s%d, s%d, 7" % (sQ0, sQ0))
        e("s_add_u32 s%d, s%d, s%d" % (sQ0, sQ0, sK0))
        e("s_add_u32 s%d, s%d, 31" % (sN, sL))
        e("s_lshr_b32 s%d, s%d, 5" % (sN, sN))
        e("s_add_u32 s%d, s%d, s%d" % (sEND, sK0, sL))
        e("s_lshl_b32 s%d, s%d, 12" % (sEND, sEND))
        e("s_sub_u32 s%d, s%d, 3584" % (sEND, sEND))
    def next_round():
        e("s_mov_b32 s%d, s%d" % (sR0, sR1))
        e("s_mov_b32 s%d, 0" % sR1)
        decode_round()
    def srd(d, p):
        e("s_add_u32 s%d, s%d, s%d" % (d, p, sH))
        e("s_addc_u32 s%d, s%d, 0" % (d + 1, p + 1))
        e("s_mov_b32 s%d, 0x20000" % (d + 3))
    def dma_lane_offset(dst, t0, t1):
        e("v_lshrrev_b32 v%d, 4, v0" % t0)
        e("v_and_b32 v%d, 1, v%d" % (t1, t0))
        e("v_and_b32 v%d, 15, v0" % dst)
        e("v_xor_b32 v%d, v%d, v%d" % (dst, dst, t1))
        e("v_lshlrev_b32 v%d, 4, v%d" % (dst, dst))
        e("v_lshl_add_u32 v%d, v%d, 12, v%d" % (dst, t0, dst))

    decode_round()
    e("s_cmp_lt_u32 s%d, 4" % sW)
    e("s_cbranch_scc1 L_cons")
    g.c("================= producer waves =================")
    if o["prio"]: e("s_setprio 3")
    dma_lane_offset(1, 2, 3)
    e("s_sub_u32 s%d, s%d, 4" % (sT0, sW))
    e("s_lshl_b32 s%d, s%d, 15" % (sT1, sT0))
    e("v_add_u32 v1, s%d, v1" % sT1)
    e("v_add_u32 v2, %d, v1" % (16384 - PIECE))
    e("v_add_u32 v7, 16384, v1")
    e("v_mov_b32 v52, 0x%08x" % f2u((128 ** -0.5) * 1.4426950408889634)); e("v_mov_b32 v53, v52")
    e("v_lshlrev_b32 v40, 4, v0")
    e("s_mov_b32 s%d, 0x%08x" % (sPC, f2u((128 ** -0.5) * 1.4426950408889634)))
    e("s_mul_i32 s%d, s%d, %d" % (sWB, sT0, 2 * PIECE))
    e("s_lshr_b32 s%d, s2, 3" % sT1)
    e("s_waitcnt lgkmcnt(0)")
    g.stamp()
    srd(sQ, 4); srd(sK, 6); srd(sV, 8)
    e("s_cmp_eq_u32 s%d, 0" % sD)
    e("s_cbranch_scc0 L_pdual")
    e("s_sub_u32 s%d, s%d, %d" % (sT0, sT1, o["ntlo"]))
    e("s_cmp_lt_u32 s%d, %d" % (sT0, o["nthi"] - o["ntlo"]))
    e("s_cbranch_scc1 L_pkeep")
    if o["late"]:
        e("s_cmp_ge_u32 s%d, %d" % (sT1, o["late"]))
        e("s_cbranch_scc1 L_plate")

    def producer(dual, ntkv, sfx, multi):
        tch = o["touch"].replace(",", " ") if sfx == "k" else ""
        lead = 2 if dual else (o["leadk"] if sfx == "k" else o["lead"])
        npos = 4 if dual else 8
        q = []
        cnt = [0]
        if tch:
            g.c("retention touches: lanes 0-15 cover the 16 lines this wave fetched of a block")
            e("v_lshrrev_b32 v3, 1, v0"); e("v_lshlrev_b32 v3, 12, v3"); e("v_and_b32 v4, 1, v0"); e("v_lshl_add_u32 v3, v4, 7, v3")
            e("s_sub_u32 s%d, s%d, 4" % (sT0, sW)); e("s_lshl_b32 s%d, s%d, 15" % (sT0, sT0)); e("v_add_u32 v3, s%d, v3" % sT0)
        def dma(srd_, soff, v, off):
            f = " nt" if srd_ == sQ else ntkv.replace(",", " ")
            e("buffer_load_dwordx4 v%d, %s, s%d offen%s%s lds" % (v, sr(srd_, 4), soff, " offset:%d" % off if off else "", f))
            q.append(cnt[0])
        def issue(a, b):
            e("s_mov_b32 m0, s%d" % sLDS)
            e("s_add_u32 s%d, s%d, %d" % (sT0, sLDS, BLK))
            dma(a, sSA, 1, 0); dma(a, sSA, 2, PIECE)
            e("s_mov_b32 m0, s%d" % sT0)
            if dual:
                e("s_add_u32 s%d, s%d, %d" % (sT0, sLDS, 2 * GRP))
                dma(b, sSB, 1, 0); dma(b, sSB, 2, PIECE)
                e("s_mov_b32 m0, s%d" % sT0)
                e("s_add_u32 s%d, s%d, 256" % (sSA2, sSA))
                e("s_add_u32 s%d, s%d, %d" % (sT0, sLDS, 2 * GRP + BLK))
                dma(a, sSA2, 1, 0); dma(a, sSA2, 2, PIECE)
                e("s_mov_b32 m0, s%d" % sT0)
                e("s_add_u32 s%d, s%d, 256" % (sSB2, sSB))
                e("s_add_u32 s%d, s%d, %d" % (sLDS, sLDS, PAIR))
                dma(b, sSB2, 1, 0); dma(b, sSB2, 2, PIECE)
            else:
                e("s_add_u32 s%d, s%d, %d" % (sLDS, sLDS, PAIR))
                dma(b, sSB, 1, 0); dma(b, sSB, 2, PIECE)
            e("s_cmp_eq_u32 s%d, s%d" % (sLDS, sWRAP))
            e("s_cselect_b32 s%d, s%d, s%d" % (sLDS, sWB, sLDS))
            cnt[0] += 1
            return cnt[0] - 1
        def issue_q(r0, half=False):
            n = 0
            def ld(soff, v):
                nonlocal n
                e("buffer_load_dwordx4 %s, v%d, %s, s%d offen nt" % (vr(r0 + 4 * n, 4), v, sr(sQ, 4), soff)); q.append(cnt[0]); n += 1
            e("s_mov_b32 s%d, s%d" % (sQL + (1 if r0 > 64 else 0), sLDS))
            ld(sSA, 1); ld(sSA, 7); ld(sSB, 1); ld(sSB, 7)
            if dual and not half:
                e("s_add_u32 s%d, s%d, 256" % (sSA2, sSA)); e("s_add_u32 s%d, s%d, 256" % (sSB2, sSB))
                ld(sSA2, 1); ld(sSA2, 7); ld(sSB2, 1); ld(sSB2, 7)
            e("s_add_u32 s%d, s%d, %d" % (sLDS, sLDS, PAIR))
            e("s_cmp_eq_u32 s%d, s%d" % (sLDS, sWRAP))
            e("s_cselect_b32 s%d, s%d, s%d" % (sLDS, sWB, sLDS))
            cnt[0] += 1
            return cnt[0] - 1
        def finish_q(tag, r0, half=False, hook=None):
            e("v_add_u32 v41, s%d, v40" % (sQL + (1 if r0 > 64 else 0)))
            if dual and not half: e("v_add_u32 v42, %d, v41" % (2 * GRP))
            for n in range(8 if dual and not half else 4):
                if hook and n == hook[0]: hook[1]()
                first = min(i for i, x in enumerate(q) if x == tag)
                e("s_waitcnt vmcnt(%d)" % (len(q) - 1 - first))
                del q[:first + 1]
                for i in range(4):
                    r = r0 + 4 * n + i; tt = 44 + 2 * i
                    e("v_lshlrev_b32 v%d, 16, v%d" % (tt, r))
                    e("v_and_b32 v%d, 0xffff0000, v%d" % (tt + 1, r))
                    if half: e("v_pk_mul_f32 %s, %s, %s" % (vr(tt, 2), vr(tt, 2), vr(52, 2)))
                    else: e("v_mul_f32 v%d, s%d, v%d" % (tt, sPC, tt)); e("v_mul_f32 v%d, s%d, v%d" % (tt + 1, sPC, tt + 1))
                    e("v_cvt_pk_bf16_f32 v%d, v%d, v%d" % (r, tt, tt + 1))
                e("ds_write_b128 v%d, %s offset:%d" % (42 if n >= 4 else 41, vr(r0 + 4 * n, 4), (n & 1) * PIECE + ((n >> 1) & 1) * BLK))
        def elem(k):
            if k == "K":
                for x in (sQ, sK, sV): e("s_mov_b32 s%d, s%d" % (x + 2, sEND))
                e("s_lshl_b32 s%d, s%d, 12" % (sSA, sK0))
                e("s_add_u32 s%d, s%d, %d" % (sSB, sSA, 32 * 4096))
                return issue(sK, sK)
            elif k == "Q0":
                e("s_lshl_b32 s%d, s%d, 12" % (sSA, sQ0))
                e("s_add_u32 s%d, s%d, %d" % (sSB, sSA, 32 * 4096))
                return issue_q(64)
            elif k == "Q1":
                e("s_add_u32 s%d, s%d, %d" % (sSA, sSA, 64 * 4096))
                e("s_add_u32 s%d, s%d, %d" % (sSB, sSB, 64 * 4096))
                return issue_q(80)
            elif k == "T0":
                e("s_lshl_b32 s%d, s%d, 12" % (sSA, sK0))
                e("s_add_u32 s%d, s%d, %d" % (sSB, sSA, 64 * 4096))
            else:
                r = issue(sV, sK)
                e("s_add_u32 s%d, s%d, %d" % (sSA, sSA, 32 * 4096))
                e("s_add_u32 s%d, s%d, %d" % (sSB, sSB, 32 * 4096))
                return r
        def touch(a, b):
            e("s_mov_b64 exec, 0xffff")
            e("s_add_u32 s%d, s%d, %d" % (sT0, sTA, (32 if a == sK else 64) * 4096))
            cp = {sK: 60, sV: 64}
            e("buffer_load_dword v5, v3, %s, s%d offen%s" % (sr(cp[a], 4), sTA, tch)); q.append(-1)
            e("buffer_load_dword v6, v3, %s, s%d offen%s" % (sr(cp[b], 4), sT0, tch)); q.append(-1)
            e("s_mov_b64 exec, -1")
            if a == sV: e("s_add_u32 s%d, s%d, %d" % (sTA, sTA, 32 * 4096))
        def wait(tag, bar, t=None):
            last = max(i for i, x in enumerate(q) if x == tag)
            e("s_waitcnt vmcnt(%d)" % (len(q) - 1 - last))
            del q[:last + 1]
            g.stamp()
            if t: touch(*t)
            if bar: e("s_barrier")
        def rel(): return [x - cnt[0] if x >= 0 else None for x in q]
        pro = ["K", "Q0"] if dual else ["K", "Q0", "Q1"]
        e("s_add_u32 s%d, s%d, %d" % (sWRAP, sWB, npos * PAIR))
        if dual: e("s_mov_b32 s%d, s%d" % (sLDS, sWB))
        else: e("s_add_u32 s%d, s%d, %d" % (sLDS, sWB, PAIR))
        for x in (sQ, sK, sV): e("s_mov_b32 s%d, s%d" % (x + 2, sEND))
        def adv(n): e("s_add_u32 s%d, s%d, %d" % (sLDS, sLDS, n * PAIR & 0xffffffff))
        def q_first():
            e("s_lshl_b32 s%d, s%d, 12" % (sSA, sQ0))
            e("s_add_u32 s%d, s%d, %d" % (sSB, sSA, 32 * 4096))
            return issue_q(64, True)
        def k_first():
            e("s_lshl_b32 s%d, s%d, 12" % (sSA, sK0))
            e("s_add_u32 s%d, s%d, %d" % (sSB, sSA, 32 * 4096))
            return issue(sK, sK)
        if sfx == "b":
            tk = k_first()
            wait(tk, False)
            tq = elem("Q0"); tq1 = elem("Q1")
            elem("T0"); elem("T")
            finish_q(tq, 64); finish_q(tq1, 80)
        elif o["qfirst"]:
            adv(1); tq = q_first(); adv(-2); tk = k_first(); adv(1 if dual else 2)
        else:
            tk = k_first(); tq = q_first()
            if not dual: adv(1)
        assert not tch
        if sfx != "b":
            elem("T0")
            if o["t0pos"] < 4: finish_q(tq, 64, True, (o["t0pos"], lambda: elem("T")))
            else: finish_q(tq, 64, True); elem("T")
            if o["qfirst"]: wait(tk, False)
        e("s_waitcnt lgkmcnt(0)")
        g.stamp()
        e("s_barrier")
        for _ in range(lead - 1):
            if tch: touch(sK, sK)
            elem("T")
        if o["prio"]: e("s_setprio 0")
        e("s_sub_u32 s%d, s%d, %d" % (sT1, sN, lead))
        def steady(lab, t, check0):
            g.lab("L_pt" + lab)
            if check0:
                e("s_cmp_eq_u32 s%d, 0" % sT1)
                e("s_cbranch_scc1 L_pe" + lab)
            def after_target():
                r = rel(); return r[max(i for i, x in enumerate(r) if x == -lead):]
            before = after_target()
            wait(cnt[0] - lead, True, t)
            elem("T")
            e("s_sub_u32 s%d, s%d, 1" % (sT1, sT1))
            assert after_target() == before, (before, after_target())
            if check0: e("s_branch L_pt" + lab); g.lab("L_pe" + lab)
            else:
                e("s_cmp_lg_u32 s%d, 0" % sT1)
                e("s_cbranch_scc1 L_pt" + lab)
        def drain(t):
            for n in range(lead, 0, -1): wait(cnt[0] - n, True, t)
            g.stamp()
            e("s_branch L_tsout" if ts else "s_endpgm")
        tt = (sV, sK) if tch else None
        steady(sfx, tt, multi)
        if multi:
            e("s_cmp_eq_u32 s%d, 0" % sR1)
            e("s_cbranch_scc1 L_pd" + sfx)
            st0 = (list(q), cnt[0])
            def change(skip, lab):
                q[:] = st0[0]; cnt[0] = st0[1]
                seq = (["X"] if skip else []) + pro + ["T"] * lead
                proc = [True] * lead + ([False] if skip else []) + [False] * (len(pro) - 1) + [True]
                assert len(seq) == len(proc)
                first_t = True
                for n, (k, bar) in enumerate(zip(seq, proc)):
                    pk_ = seq[n - lead] if n >= lead else "T"
                    if pk_ in ("Q0", "Q1"):
                        finish_q(cnt[0] - lead, 64 if pk_ == "Q0" else 80)
                        if bar: e("s_waitcnt lgkmcnt(0)"); g.stamp(); e("s_barrier")
                    else: wait(cnt[0] - lead, bar, tt if n < lead else None)
                    if k == "X": issue(sV, sK)
                    elif k == "T":
                        if first_t: elem("T0"); first_t = False
                        elem("T")
                    else:
                        if k == "K":
                            if tch:
                                pass
                            next_round()
                        elem(k)
                e("s_sub_u32 s%d, s%d, %d" % (sT1, sN, lead))
                q[:] = [x for x in q if x >= 0]
                e("s_branch L_pt2" + sfx)
            if dual: change(False, "a")
            else:
                e("s_bitcmp1_b32 s%d, 0" % sN)
                e("s_cbranch_scc1 L_pc1" + sfx)
                change(True, "a")
                g.lab("L_pc1" + sfx)
                change(False, "b")
            steady("2" + sfx, None, True)
            drain(None)
            q[:] = st0[0]; cnt[0] = st0[1]
        g.lab("L_pd" + sfx)
        drain(tt)
    producer(False, o["ntf"], "s", False)
    if o["late"]:
        g.lab("L_plate")
        producer(False, o["ntf"], "b", False)
    g.lab("L_pkeep")
    producer(False, o["keepf"], "k", True)
    g.lab("L_pdual")
    producer(True, o["dualf"], "d", True)

    g.L.append(".p2align 6")
    g.lab("L_cons")
    g.c("================= compute waves =================")
    if o["prio"]: e("s_setprio 1")
    t = vT
    e("v_lshrrev_b32 v%d, 5, v0" % vHF)
    e("v_and_b32 v%d, 3, v0" % t)
    e("v_bfe_u32 v%d, v0, 4, 1" % (t + 1))
    e("v_lshl_add_u32 v%d, v%d, 1, v%d" % (t + 1, t, t + 1))
    e("v_bfe_u32 v%d, v0, 2, 1" % (t + 2))
    e("v_bfe_u32 v%d, v0, 3, 1" % (t + 3))
    e("v_lshl_add_u32 v%d, v%d, 1, v%d" % (t + 3, t + 3, t + 2))
    e("v_mul_u32_u24 v%d, %d, v%d" % (t + 4, PIECE, t + 1))
    e("v_lshl_add_u32 v%d, v%d, 8, v%d" % (t + 4, t + 3, t + 4))
    e("v_xor_b32 v%d, v%d, v%d" % (t + 2, t + 2, vHF))
    e("v_lshl_add_u32 v%d, v%d, 4, v%d" % (vKB, t + 2, t + 4))
    e("v_bfe_u32 v%d, v0, 2, 2" % (t + 4))
    e("v_mul_u32_u24 v%d, %d, v%d" % (t + 4, 2 * PIECE, t + 4))
    e("v_lshl_add_u32 v%d, v%d, 8, v%d" % (t + 4, vHF, t + 4))
    e("v_bfe_u32 v%d, v0, 4, 1" % (t + 5))
    e("v_lshlrev_b32 v%d, 5, v%d" % (t + 5, t + 5))
    e("v_lshl_add_u32 v%d, v%d, 3, v%d" % (t + 5, t, t + 5))
    e("v_lshlrev_b32 v%d, 4, v%d" % (t + 6, vHF))
    e("v_xor_b32 v%d, v%d, v%d" % (t + 5, t + 5, t + 6))
    e("v_add_u32 v%d, v%d, v%d" % (vVB, t + 4, t + 5))
    e("v_mov_b32 v%d, 0xff800000" % vNINF)
    e("s_lshr_b32 s%d, s%d, 1" % (sT0, sW))
    e("s_mul_i32 s%d, s%d, s%d" % (sT0, sT0, sD))
    e("s_mul_i32 s%d, s%d, %d" % (sT1, sT0, 2 * GRP))
    e("s_lshl_b32 s%d, s%d, 8" % (sT0, sT0))
    e("s_mov_b32 s%d, s%d" % (sHA, sH))
    e("s_add_u32 s%d, s%d, s%d" % (sH, sH, sT0))
    e("s_cmp_eq_u32 s%d, 0" % sD)
    e("s_cselect_b32 s%d, 3, 1" % sGM)
    e("s_and_b32 s%d, s%d, s%d" % (sQB, sW, sGM))
    e("v_add_u32 v%d, s%d, v%d" % (vKB, sT1, vKB))
    e("v_add_u32 v%d, s%d, v%d" % (vVB, sT1, vVB))
    if o["w2"]:
        g.c("staging: row = lane&31 at pitch %d, byte hf*8 ; read back row = lane>>3, chunk = lane&7" % SP)
        e("s_mul_i32 s%d, s%d, %d" % (sT0, sW, 32 * SP))
        e("s_add_u32 s%d, s%d, %d" % (sT0, sT0, STG))
        e("v_and_b32 v%d, 31, v0" % (t + 4))
        e("v_mul_u32_u24 v%d, %d, v%d" % (t + 4, SP, t + 4))
        e("v_lshl_add_u32 v%d, v%d, 3, v%d" % (t + 4, vHF, t + 4))
        e("v_add_u32 v%d, s%d, v%d" % (vSW, sT0, t + 4))
        e("v_lshrrev_b32 v%d, 3, v0" % (t + 4))
        e("v_mul_u32_u24 v%d, %d, v%d" % (t + 4, SP, t + 4))
        e("v_and_b32 v%d, 7, v0" % (t + 5))
        e("v_lshl_add_u32 v%d, v%d, 4, v%d" % (t + 4, t + 5, t + 4))
        e("v_add_u32 v%d, s%d, v%d" % (vSR, sT0, t + 4))
    else:
        g.c("staging: write row = lane&31 (128 B pitch), chunk ^ (row&7), 8-byte half hf ^ (row>>3 & 1)")
        e("s_lshl_b32 s%d, s%d, 12" % (sT0, sW))
        e("s_add_u32 s%d, s%d, %d" % (sT0, sT0, STG))
        e("v_and_b32 v%d, 31, v0" % (t + 4))
        e("v_lshlrev_b32 v%d, 7, v%d" % (t + 4, t + 4))
        if o["flip"]:
            e("v_bfe_u32 v%d, v0, 3, 1" % (t + 5))
            e("v_xor_b32 v%d, v%d, v%d" % (t + 5, t + 5, vHF))
            e("v_lshl_add_u32 v%d, v%d, 3, v%d" % (t + 4, t + 5, t + 4))
        else: e("v_lshl_add_u32 v%d, v%d, 3, v%d" % (t + 4, vHF, t + 4))
        e("v_and_b32 v%d, 7, v0" % (t + 5))
        e("v_lshl_add_u32 v%d, v%d, 4, v%d" % (t + 4, t + 5, t + 4))
        e("v_add_u32 v%d, s%d, v%d" % (vSW, sT0, t + 4))
        for c in range(1, 8): e("v_xor_b32 v%d, %d, v%d" % (vSW + c, c * 16, vSW))
        e("v_lshrrev_b32 v%d, 3, v0" % (t + 4))
        e("v_xor_b32 v%d, v%d, v%d" % (t + 6, t + 4, t + 5))
        e("v_lshlrev_b32 v%d, 7, v%d" % (t + 4, t + 4))
        e("v_lshl_add_u32 v%d, v%d, 4, v%d" % (t + 4, t + 6, t + 4))
        e("v_add_u32 v%d, s%d, v%d" % (vSR, sT0, t + 4))
    e("v_add_u32 v%d, 2048, v%d" % (vSR2, vSR))
    e("v_bfe_u32 v%d, v0, 3, 2" % (t + 4))
    e("v_lshl_add_u32 v%d, v%d, 3, v%d" % (t + 4, t + 4, vHF))
    e("v_lshlrev_b32 v%d, 12, v%d" % (t + 4, t + 4))
    e("v_lshl_add_u32 v%d, v%d, 4, v%d" % (vOOF, t + 5, t + 4))
    e("s_mov_b32 s%d, 0" % sG)
    e("s_mov_b32 s%d, 0x%08x" % (sC, f2u((128 ** -0.5) * 1.4426950408889634)))
    e("s_mov_b32 s%d, 0" % sBAD)
    e("s_mov_b32 s%d, 1" % sBIT)
    e("s_mov_b32 s%d, s%d" % (sRS0, sR0))
    e("s_mov_b32 s%d, s%d" % (sRS1, sR1))
    e("s_mov_b32 s%d, 0x%08x" % (sHI, f2u(2.0 ** 60) if not o["forcebad"] else f2u(2.0 ** -70)))
    e("s_mov_b32 s%d, 0x%08x" % (sLO, f2u(2.0 ** -60)))
    g.c("first round: this wave fetches, scales and stages two pieces of Q blocks 2,3 (dual: of the second head)")
    dma_lane_offset(KF + 16, KF + 17, KF + 18)
    e("s_lshl_b32 s%d, s%d, 15" % (sT0, sW))
    e("v_add_u32 v%d, s%d, v%d" % (KF + 16, sT0, KF + 16))
    e("v_add_u32 v%d, 16384, v%d" % (KF + 17, KF + 16))
    e("s_lshl_b32 s%d, s%d, 12" % (sO0, sQ0))
    e("s_cmp_eq_u32 s%d, 0" % sD)
    e("s_movk_i32 s%d, 256" % sT0)
    e("s_mov_b32 s%d, %d" % (sT1, 2 * GRP + PAIR))
    e("s_cselect_b32 s%d, %d, s%d" % (sT0, 64 * 4096, sT0))
    e("s_cselect_b32 s%d, %d, s%d" % (sT1, 3 * PAIR, sT1))
    e("s_add_u32 s%d, s%d, s%d" % (sO0, sO0, sT0))
    e("s_add_u32 s%d, s%d, %d" % (sO0 + 1, sO0, 32 * 4096))
    e("s_mul_i32 s%d, s%d, %d" % (sT0, sW, 2 * PIECE))
    e("s_add_u32 s%d, s%d, s%d" % (sT1, sT1, sT0))
    e("v_lshlrev_b32 v%d, 4, v0" % (KF + 18))
    e("v_add_u32 v%d, s%d, v%d" % (KF + 18, sT1, KF + 18))
    e("s_waitcnt lgkmcnt(0)")
    e("s_add_u32 s%d, s4, s%d" % (sQ, sHA))
    e("s_addc_u32 s%d, s5, 0" % (sQ + 1))
    e("s_mov_b32 s%d, s%d" % (sQ + 2, sEND))
    e("s_mov_b32 s%d, 0x20000" % (sQ + 3))
    srd(sO, 12)
    if o["late"]:
        e("s_cmp_ge_u32 s2, %d" % (8 * o["late"]))
        e("s_cbranch_scc1 L_cround")
    for n in range(4):
        e("buffer_load_dwordx4 %s, v%d, %s, s%d offen nt" % (vr(Q + 4 * n, 4), KF + 16 + (n & 1), sr(sQ, 4), sO0 + (n >> 1)))
    if o["burn"]:
        for i in range(32):
            if o["burnrnd"]:
                e("v_mul_u32_u24 v%d, %d, v0" % (VF + i, 40503 + 977 * i)); e("v_mul_lo_u32 v%d, v%d, v%d" % (VF + i, VF + i, VF + i)); e("v_and_b32 v%d, 0xbf7fbf7f, v%d" % (VF + i, VF + i))
            else: e("v_mov_b32 v%d, 0" % (VF + i))
        e("s_mov_b32 s%d, %d" % (sT0, o["burn"]))
        g.lab("L_burn")
        for n in range(8): e("v_mfma_f32_32x32x16_bf16 %s, %s, %s, %s" % (vr(O + 16 * (n & 3), 16), vr(VF + 4 * n, 4), vr(VF + 4 * ((n + 3) & 7), 4), vr(O + 16 * (n & 3), 16)))
        e("s_sub_u32 s%d, s%d, 1" % (sT0, sT0)); e("s_cmp_lg_u32 s%d, 0" % sT0); e("s_cbranch_scc1 L_burn")
    def round_setup():
        e("s_mov_b32 s%d, s%d" % (sO + 2, sEND))
        e("s_lshl_b32 s%d, s%d, 5" % (sT0, sQB))
        e("s_add_u32 s%d, s%d, s%d" % (sT0, sT0, sQ0))
        e("s_lshl_b32 s%d, s%d, 12" % (sO0, sT0))
        for j in range(1, 4): e("s_add_u32 s%d, s%d, %d" % (sO0 + j, sO0, j * 8192))
        e("s_sub_u32 s%d, s%d, 1" % (sT0, sN))
        e("s_lshl_b32 s%d, s%d, 5" % (sT0, sT0))
        e("s_sub_u32 s%d, s%d, s%d" % (sT0, sL, sT0))
        e("v_sub_u32 v%d, s%d, v%d" % (vTMP, sT0, vHF))
    def setup_valu():
        r = ["v_mov_b64 %s, 0" % vr(CI + i, 2) for i in range(0, 16, 2)] + ["v_mov_b64 %s, 0" % vr(vL, 2)]
        r += ["v_mov_b64 %s, 0" % vr(O + i, 2) for i in range(0, 64, 2)]
        for rr in range(16):
            kc = 8 * (rr % 4) + 4 * (rr // 8) + 2 * ((rr // 4) % 2)
            r.append("v_cmp_lt_i32 %s, %d, v%d" % (sr(sMASK + 2 * rr, 2), kc, vTMP))
        return r
    def mask_ci():
        for rr in range(16):
            e("v_cndmask_b32 v%d, v%d, v%d, %s" % (CI + rr, vNINF, CI + rr, sr(sMASK + 2 * rr, 2)))
    def qscale(s_, pk_=False):
        for i in range(4 * s_, 4 * s_ + 4):
            tt = vT + 2 * (i % 4)
            e("v_lshlrev_b32 v%d, 16, v%d" % (tt, Q + i))
            e("v_and_b32 v%d, 0xffff0000, v%d" % (tt + 1, Q + i))
            if pk_: e("v_pk_mul_f32 %s, %s, %s op_sel_hi:[1,0]" % (vr(tt, 2), vr(tt, 2), sr(sC, 2)))
            else:
                e("v_mul_f32 v%d, s%d, v%d" % (tt, sC, tt)); e("v_mul_f32 v%d, s%d, v%d" % (tt + 1, sC, tt + 1))
            e("v_cvt_pk_bf16_f32 v%d, v%d, v%d" % (Q + i, tt, tt + 1))
    for n in range(4):
        e("s_waitcnt vmcnt(%d)" % (3 - n))
        qscale(n, True)
        e("ds_write_b128 v%d, %s offset:%d" % (KF + 18, vr(Q + 4 * n, 4), (n & 1) * PIECE + (n >> 1) * BLK))
    g.lab("L_cround")
    round_setup()
    e("s_mul_i32 s%d, s%d, %d" % (sGOFF, sG, GRP))
    e("s_add_u32 s%d, s%d, %d" % (sT0, sGOFF, PAIR))
    e("s_add_u32 s%d, s%d, 1" % (sG, sG))
    e("s_and_b32 s%d, s%d, s%d" % (sG, sG, sGM))
    e("s_mul_i32 s%d, s%d, %d" % (sT1, sG, GRP))
    e("s_cmp_eq_u32 s%d, 0" % sD)
    e("s_cselect_b32 s%d, s%d, s%d" % (sGOFF, sT0, sGOFF))
    e("s_cselect_b32 s%d, s%d, s%d" % (sT0, sT1, sT0))
    e("s_addc_u32 s%d, s%d, 0" % (sG, sG))
    e("s_and_b32 s%d, s%d, s%d" % (sG, sG, sGM))
    e("s_mul_i32 s%d, s%d, %d" % (sT1, sQB, BLK))
    e("s_add_u32 s%d, s%d, s%d" % (sT0, sT0, sT1))
    e("v_add_u32 v%d, s%d, v%d" % (vQA, sT0, vKB))
    e("v_add_u32 v%d, s%d, v%d" % (vKA, sGOFF, vKB))
    e("s_mul_i32 s%d, s%d, %d" % (sGOFF, sG, GRP))
    e("v_add_u32 v%d, s%d, v%d" % (vVA, sGOFF, vVB))
    e("s_sub_u32 s%d, s%d, 3" % (sCNT, sN))
    e("s_mov_b32 s%d, 0" % sSTG)
    e("s_waitcnt lgkmcnt(0)")
    g.stamp()
    e("s_barrier")
    g.stamp()
    sv = setup_valu()
    AH = o["ahead"]
    for s_ in range(AH):
        e(kread(Q, s_, 0, vQA)); e(kread(KF, s_, 0))
    for s_ in range(8):
        e("s_waitcnt lgkmcnt(%d)" % (2 * (min(8, s_ + AH) - s_ - 1)))
        m = qk(s_, 0)
        if s_ == 0: m = m[:m.rindex(",")] + ", 0"
        e(m)
        if s_ + AH < 8:
            e(kread(Q, s_ + AH, 0, vQA)); e(kread(KF, s_ + AH, 0))
        if s_ < 7:
            for x in sv[:6]: e(x)
            sv = sv[6:]
    for s_ in range(8): e(kread(KF, s_, BLK))
    e("v_add_u32 v%d, s%d, v%d" % (vKA, sGOFF, vKB))
    for x in sv: e(x)
    e("s_barrier")
    for x in "Xn0 Xn1 Xn2 Xn3 Cn0 Xn4 Cn1 Xn5".split(): e(op(x, 1)[0])
    e("s_nop 0")
    e(op("Cn2", 1)[0])
    if ts == 2: g.stamp_issue()
    else: g.stamp()
    g.L.append(".p2align 6")
    gaps = SCHED[o["sched"]]
    for h in range(2):
        g.lab("L_h%d" % h)
        e("s_waitcnt lgkmcnt(0)")
        if ts == 2: g.stamp_write()
        for n in range(16):
            e(qk(n, 1 - h) if n < 8 else pv(n - 8))
            if ts == 2 and n == 13: g.stamp_issue()
            for x in gaps[n]:
                for y in op(x, h): e(y)
    for h in range(2):
        g.lab("L_ev%d" % h)
        e("s_cmp_lg_u32 s%d, 0" % sSTG)
        e("s_cbranch_scc1 L_tail%d" % (1 - h))
        e("s_mov_b32 s%d, 1" % sSTG)
        e("s_mov_b32 s%d, 0" % sCNT)
        mask_ci()
        e("s_branch L_h%d" % (1 - h))
    for h in range(2):
        g.lab("L_tail%d" % h)
        if ts == 2:
            e("s_waitcnt lgkmcnt(0)"); g.stamp_write()
        if ts == 3: e("s_memtime s[64:65]"); g.nfs = 1
        if ts == 5: g.nfs = 0; e(g.fs(5)[0])
        dq = DSQ()
        for x in (TAIL2 if o["tail"] == 2 else TAIL):
            if ts == 5 and (x[0] in "WM" or x == "Xc6"): e(g.fs(5)[0])
            if x[0] == "N":
                for y in dq.need("V" + x[1:]): e(y)
                continue
            if x[0] == "V": dq.add(x)
            for y in op(x, h): e(y)
        if ts == 5: e(g.fs(5)[0])
        if h == 0: e("s_branch L_epi")
    W = VF; R = KF
    def blk(db, qd, pk_=True):
        ob = O + 16 * db + 4 * qd; w = VF + (0, 16, 8, 24)[db] + 2 * qd
        if pk_: m = ["v_pk_mul_f32 %s, %s, %s op_sel_hi:[1,0]" % (vr(ob + k, 2), vr(ob + k, 2), vr(vRI, 2)) for k in (0, 2)]
        else: m = ["v_mul_f32 v%d, v%d, v%d" % (ob + k, vRI, ob + k) for k in range(4)]
        return m + ["v_cvt_pk_bf16_f32 v%d, v%d, v%d" % (w, ob, ob + 1),
                    "v_cvt_pk_bf16_f32 v%d, v%d, v%d" % (w + 1, ob + 2, ob + 3),
                    "ds_write_b64 v%d, %s" % (vSW + (db & 1) * 4 + qd, vr(w, 2))]
    def zero(db, qd): return ["v_mov_b64 %s, 0" % vr(O + 16 * db + 4 * qd, 2), "v_mov_b64 %s, 0" % vr(O + 16 * db + 4 * qd + 2, 2)]
    def rd(hh, j):
        d = vr(R + 16 * hh + 4 * j, 4)
        if j & 1: return "ds_read2_b64 %s, v%d offset0:129 offset1:128" % (d, vSR2 if j == 3 else vSR)
        return "ds_read_b128 %s, v%d offset:%d" % (d, vSR, j * 1024)
    def st(hh, j): return "buffer_store_dwordx4 %s, v%d, %s, s%d offen%s%s" % (vr(R + 16 * hh + 4 * j, 4), vOOF, sr(sO, 4), sO0 + j, " offset:128" if hh else "", stf)
    def lsum():
        return ["v_add_f32 v%d, v%d, v%d" % (vL, vL, vL2), "v_mov_b32 v%d, v%d" % (vTMP, vL)]
    def lfin():
        return ["v_permlane32_swap_b32 v%d, v%d" % (vTMP, vL), "v_add_f32 v%d, v%d, v%d" % (vL, vL, vTMP), "v_rcp_f32 v%d, v%d" % (vRI, vL)]
    def zero_o():
        for i in range(0, 64, 2): e("v_mov_b64 %s, 0" % vr(O + i, 2))
    def rd2(hh, j): return "ds_read_b128 %s, v%d offset:%d" % (vr(R + 16 * hh + 4 * j, 4), vSR, j * (8 * SP if o["w2"] else 1024))
    def wr2(db, p):
        w = VF + (0, 16, 8, 24)[db] + 4 * p; c = (db & 1) * 8 + 4 * p
        return ["ds_write2_b64 v%d, %s, %s offset0:%d offset1:%d" % (vSW, vr(w, 2), vr(w + 2, 2), c, c + 2)]
    def fix(hh, j):
        r = R + 16 * hh + 4 * j
        return ["v_swap_b32 v%d, v%d" % (r, r + 2), "v_swap_b32 v%d, v%d" % (r + 1, r + 3)] if (j & 1 and o["flip"] and not o["w2"]) else []
    def epilogue(fast):
        seq = []
        F = g.fs if fast else (lambda: [])
        va = lambda db, qd, pk_=True: blk(db, qd, pk_)[:-1]
        wr = lambda db, qd: [blk(db, qd)[-1]]
        W_ = lambda n: ["s_waitcnt lgkmcnt(%d)" % n]
        E = o["epi"]
        if o["w2"]:
            v2 = lambda db, p, pk_=True: va(db, 2 * p, pk_) + va(db, 2 * p + 1, pk_)
            if fast:
                seq += lsum() + dq.need("V5") + [pv(2)] + lfin()
                seq += ["v_cmp_gt_f32 vcc, s%d, v%d" % (sHI, vL)] + dq.need("V13") + [pv(6)]
                seq += ["v_cmp_lt_f32 %s, s%d, v%d" % (sr(sT0, 2), sLO, vL)] + va(0, 0, False)[:4] + dq.need("V15") + [pv(3)]
                seq += ["s_and_b64 vcc, vcc, %s" % sr(sT0, 2), "s_cmp_eq_u64 vcc, -1"] + va(0, 0, False)[4:] + va(0, 1, False)[:4] + [pv(7)]
                seq += ["s_cselect_b32 s%d, 0, s%d" % (sT0, sBIT), "s_or_b32 s%d, s%d, s%d" % (sBAD, sBAD, sT0)] + va(0, 1, False)[4:] + va(0, 2, False)[:4] + wr2(0, 0)
                seq += va(0, 2, False)[4:] + va(0, 3) + wr2(0, 1)
            else:
                seq += lsum() + ["s_nop 1"] + lfin() + ["s_nop 0"] + v2(0, 0) + wr2(0, 0) + v2(0, 1) + wr2(0, 1)
            seq += v2(1, 0) + wr2(1, 0) + v2(1, 1) + wr2(1, 1) + [rd2(0, j) for j in range(4)]
            if E == 0:
                seq += v2(2, 0) + wr2(2, 0) + W_(4) + [st(0, 0)] + va(2, 2) + W_(3) + [st(0, 1)] + va(2, 3) + wr2(2, 1) + W_(3) + [st(0, 2)] + v2(3, 0) + wr2(3, 0) + W_(3) + [st(0, 3)]
                seq += v2(3, 1) + wr2(3, 1)
            elif E == 1:
                seq += v2(2, 0) + W_(3) + [st(0, 0)] + v2(2, 1) + W_(2) + [st(0, 1)] + v2(3, 0) + W_(1) + [st(0, 2)] + v2(3, 1) + W_(0) + [st(0, 3)]
                seq += wr2(2, 0) + wr2(2, 1) + wr2(3, 0) + wr2(3, 1)
            elif E == 2:
                seq += v2(2, 0) + wr2(2, 0) + v2(2, 1) + wr2(2, 1) + v2(3, 0) + wr2(3, 0) + v2(3, 1) + wr2(3, 1)
            seq += [rd2(1, j) for j in range(4)]
            if E == 2:
                seq += W_(8) + [st(0, j) for j in range(4)]
            for j in range(4): seq += W_(3 - j) + [st(1, j)]
            for x in seq: e(x)
            return
        if fast and o["tail"] == 2:
            def wq(db, qd): dq.add("w"); return wr(db, qd)
            seq += F() + lsum() + dq.need("V5") + [pv(2)] + lfin()
            seq += ["v_cmp_gt_f32 vcc, s%d, v%d" % (sHI, vL), "v_cmp_lt_f32 %s, s%d, v%d" % (sr(sT0, 2), sLO, vL)] + dq.need("V13") + [pv(6)]
            seq += ["s_and_b64 vcc, vcc, %s" % sr(sT0, 2), "s_cmp_eq_u64 vcc, -1"] + va(0, 0, False) + dq.need("V15") + [pv(3)]
            seq += wr(0, 0) + ["s_cselect_b32 s%d, 0, s%d" % (sT0, sBIT)] + va(0, 1, False) + [pv(7)]
            seq += wr(0, 1) + ["s_or_b32 s%d, s%d, s%d" % (sBAD, sBAD, sT0)] + va(0, 2, False) + va(0, 3, False)
        elif fast:
            seq += F() + lsum() + ["s_waitcnt lgkmcnt(0)", pv(2)] + lfin()
            seq += ["v_cmp_gt_f32 vcc, s%d, v%d" % (sHI, vL), "v_cmp_lt_f32 %s, s%d, v%d" % (sr(sT0, 2), sLO, vL), pv(6)]
            seq += ["s_and_b64 vcc, vcc, %s" % sr(sT0, 2), "s_cmp_eq_u64 vcc, -1"] + va(0, 0, False) + [pv(3)]
            seq += wr(0, 0) + ["s_cselect_b32 s%d, 0, s%d" % (sT0, sBIT)] + va(0, 1, False) + [pv(7)]
            seq += wr(0, 1) + ["s_or_b32 s%d, s%d, s%d" % (sBAD, sBAD, sT0)] + va(0, 2, False) + va(0, 3, False)
        else:
            seq += lsum() + ["s_nop 1"] + lfin() + ["s_nop 0"] + blk(0, 0) + blk(0, 1) + va(0, 2) + va(0, 3)
        seq += F()
        allv = lambda db: sum((va(db, qd) for qd in range(4)), [])
        allw = lambda db: sum((wr(db, qd) for qd in range(4)), [])
        if E == 0:
            w5 = W_(5)
            seq += wr(0, 2) + wr(0, 3)
            for qd in range(4): seq += blk(1, qd)
            seq += [rd2(0, j) for j in range(4)] + F()
            seq += blk(2, 0) + blk(2, 1) + w5 + [st(0, 0)] + blk(2, 2) + w5 + fix(0, 1) + [st(0, 1)] + blk(2, 3) + w5 + [st(0, 2)] + blk(3, 0) + w5 + fix(0, 3) + [st(0, 3)] + F()
            seq += blk(3, 1) + blk(3, 2) + blk(3, 3) + [rd2(1, j) for j in range(4)] + F()
        elif E == 4:
            seq += wr(0, 2) + wr(0, 3) + allv(1) + allw(1) + [rd2(0, j) for j in range(4)] + allv(2) + allw(2)
            seq += W_(4) + fix(0, 1) + fix(0, 3) + [st(0, j) for j in range(4)] + allv(3) + allw(3) + [rd2(1, j) for j in range(4)]
        elif E == 5:
            seq += wr(0, 2) + wr(0, 3) + allv(1) + allw(1) + [rd2(0, j) for j in range(4)] + allv(2) + allv(3)
            seq += W_(0) + fix(0, 1) + fix(0, 3) + [st(0, 0)] + allw(2) + [st(0, 1)] + allw(3) + [st(0, 2)] + [rd2(1, j) for j in range(4)] + [st(0, 3)]
        elif E == 6:
            seq += wr(0, 2) + wr(0, 3) + allv(1) + allw(1) + [rd2(0, j) for j in range(4)] + allv(2)
            seq += W_(0) + [st(0, 0)] + fix(0, 1) + fix(0, 3) + va(3, 0) + va(3, 1) + [st(0, 1)] + va(3, 2) + va(3, 3) + [st(0, 2)] + allw(2) + [st(0, 3)] + allw(3) + [rd2(1, j) for j in range(4)]
        elif E == 1:
            seq += wr(0, 2) + wr(0, 3) + allv(1) + allw(1) + [rd2(0, j) for j in range(4)] + F()
            seq += allv(2) + allw(2)
            for j in range(4): seq += W_(7 - j) + fix(0, j) + [st(0, j)] + va(3, j)
            seq += F() + allw(3) + [rd2(1, j) for j in range(4)] + F()
        elif E == 2:
            seq += allv(1) + wr(0, 2) + wr(0, 3) + allw(1) + [rd2(0, j) for j in range(4)] + allv(2) + allv(3)
            for j in range(4): seq += W_(3 - j) + fix(0, j) + [st(0, j)]
            seq += allw(2) + allw(3) + [rd2(1, j) for j in range(4)]
        elif E == 3:
            seq += allv(1) + wr(0, 2) + wr(0, 3) + allw(1) + [rd2(0, j) for j in range(4)] + allv(2)
            seq += W_(3) + [st(0, 0)] + va(3, 0) + W_(2) + fix(0, 1) + [st(0, 1)] + va(3, 1) + W_(1) + [st(0, 2)] + va(3, 2) + W_(0) + fix(0, 3) + [st(0, 3)] + va(3, 3)
            seq += allw(2) + allw(3) + [rd2(1, j) for j in range(4)]
        for j in (0, 2, 1, 3) if E != 1 else range(4):
            pass
        for j in range(4): seq += W_(3 - j) + fix(1, j) + [st(1, j)]
        seq += F()
        for x in seq: e(x)
    g.lab("L_epi")
    epilogue(True)
    g.fs_flush()
    g.fs_flush(5)
    e("s_cmp_eq_u32 s%d, 0" % sR1)
    e("s_cbranch_scc1 L_cdone")
    next_round()
    e("s_mov_b32 s%d, 2" % sBIT)
    e("s_branch L_cround")
    g.lab("L_cdone")
    g.stamp()
    e("s_barrier")
    e("s_cmp_lg_u32 s%d, 0" % sBAD)
    e("s_cbranch_scc1 L_slow")
    g.lab("L_fin")
    if ts:
        e("s_waitcnt vmcnt(0)")
        g.stamp()
        g.lab("L_tsout")
        e("s_lshl_b32 s%d, s2, 3" % sT0)
        e("s_add_u32 s%d, s%d, s%d" % (sT0, sT0, sW))
        e("s_lshl_b32 s%d, s%d, 9" % (sT0, sT0))
        e("s_add_u32 s16, s16, s%d" % sT0)
        e("s_addc_u32 s17, s17, 0")
        e("v_lshlrev_b32 v1, 3, v0")
        e("global_store_dwordx2 v1, v[30:31], s[16:17]")
        if o["diag"] >= 0:
            e("s_cmp_ge_u32 s%d, 4" % sW); e("s_cbranch_scc1 L_end")
            e("s_cmp_lg_u32 s2, %d" % o["diagwg"]); e("s_cbranch_scc1 L_end")
            e("v_readlane_b32 s60, v31, 0")
            e("v_readlane_b32 s61, v31, %d" % o["diag"])
            e("s_nop 4")
            e("s_sub_u32 s61, s61, s60")
            e("s_mul_i32 s61, s61, 10")
            e("s_cmp_eq_u32 s2, %d" % o["diagwg"])
            e("s_cselect_b32 s61, s61, 0")
            e("s_cmp_eq_u32 s%d, %d" % (sW, o["diagwave"]))
            e("s_cselect_b32 s61, s61, 0")
            e("s_add_u32 s61, s61, 5000")
            g.lab("L_spin")
            e("s_sleep 8")
            e("s_memrealtime s[52:53]")
            e("s_waitcnt lgkmcnt(0)")
            e("s_sub_u32 s52, s52, s60")
            e("s_cmp_lt_u32 s52, s61")
            e("s_cbranch_scc1 L_spin")
    g.lab("L_end")
    e("s_endpgm")
    g.lab("L_slow")
    g.c("================= fallback: true running max, this wave alone, private LDS area =================")
    srd(sQ, 4); srd(sK, 6); srd(sV, 8)
    dma_lane_offset(vDMA, vT, vT + 1)
    e("s_mul_i32 s%d, s%d, %d" % (sG, sW, GRP))
    e("s_lshr_b32 s%d, s%d, 1" % (sT0, sW))
    e("s_mul_i32 s%d, s%d, s%d" % (sT0, sT0, sD))
    e("s_mul_i32 s%d, s%d, %d" % (sT1, sT0, 2 * GRP))
    e("s_sub_i32 s%d, s%d, s%d" % (sT0, sG, sT1))
    e("v_add_u32 v%d, s%d, v%d" % (vKA, sT0, vKB))
    e("v_add_u32 v%d, s%d, v%d" % (vVA, sT0, vVB))
    e("s_mov_b32 s%d, s%d" % (sR0, sRS0))
    e("s_bitcmp1_b32 s%d, 0" % sBAD)
    e("s_cbranch_scc1 L_sround")
    g.lab("L_snext")
    e("s_bitcmp1_b32 s%d, 1" % sBAD)
    e("s_cbranch_scc0 L_fin")
    e("s_mov_b32 s%d, 0" % sBAD)
    e("s_mov_b32 s%d, s%d" % (sR0, sRS1))
    g.lab("L_sround")
    decode_round()
    for x in (sQ, sK, sV): e("s_mov_b32 s%d, s%d" % (x + 2, sEND))
    round_setup()
    for x in setup_valu(): e(x)
    def sload(srd_, soff, blkno):
        for p in range(8):
            e("s_add_u32 s%d, s%d, %d" % (sT0, sG, blkno * BLK + p * PIECE))
            e("s_mov_b32 m0, s%d" % sT0)
            e("s_add_u32 s%d, s%d, %d" % (sT1, soff, p * 16384))
            e("buffer_load_dwordx4 v%d, %s, s%d offen lds" % (vDMA, sr(srd_, 4), sT1))
    sload(sQ, sO0, 0)
    e("s_waitcnt vmcnt(0)")
    for s_ in range(8): e(kread(Q, s_, 0))
    e("s_waitcnt lgkmcnt(0)")
    for s_ in range(8): qscale(s_)
    e("v_mov_b32 v%d, 0xf149f2ca" % vM)
    e("s_lshl_b32 s%d, s%d, 12" % (sGOFF, sK0))
    e("s_mov_b32 s%d, s%d" % (sCNT, sN))
    g.lab("L_stile")
    sload(sK, sGOFF, 0); sload(sV, sGOFF, 1)
    e("s_cmp_lg_u32 s%d, 1" % sCNT)
    e("s_cbranch_scc1 L_snomask")
    mask_ci()
    g.lab("L_snomask")
    e("s_waitcnt vmcnt(0)")
    for s_ in range(8): e(kread(KF, s_, 0))
    for n in range(8): e(vread(n, BLK))
    e("s_waitcnt lgkmcnt(0)")
    for n in range(8, 16): e(vread(n, BLK))
    for s_ in range(8): e(qk(s_, 0))
    e("s_nop 15")
    s0 = S[0]
    e("v_max_f32 v%d, v%d, v%d" % (vTMP, vM, s0))
    for i in range(1, 15, 2): e("v_max3_f32 v%d, v%d, v%d, v%d" % (vTMP, vTMP, s0 + i, s0 + i + 1))
    e("v_max_f32 v%d, v%d, v%d" % (vTMP, vTMP, s0 + 15))
    e("v_mov_b32 v%d, v%d" % (vTMP2, vTMP))
    e("s_nop 1")
    e("v_permlane32_swap_b32 v%d, v%d" % (vTMP, vTMP2))
    e("v_max_f32 v%d, v%d, v%d" % (vTMP, vTMP, vTMP2))
    e("v_sub_f32 v%d, v%d, v%d" % (vRI, vM, vTMP))
    e("v_exp_f32 v%d, v%d" % (vRI, vRI))
    e("v_mov_b32 v%d, v%d" % (vM, vTMP))
    for i in range(16): e("v_sub_f32 v%d, v%d, v%d" % (s0 + i, s0 + i, vM))
    for i in range(16): e("v_exp_f32 v%d, v%d" % (s0 + i, s0 + i))
    for i in range(0, 64, 2): e("v_pk_mul_f32 %s, %s, %s op_sel_hi:[1,0]" % (vr(O + i, 2), vr(O + i, 2), vr(vRI, 2)))
    e("v_pk_mul_f32 %s, %s, %s op_sel_hi:[1,0]" % (vr(vL, 2), vr(vL, 2), vr(vRI, 2)))
    for i in range(16): e(op("Ac%d" % i, 0)[0])
    for i in range(8): e(op("Cc%d" % i, 0)[0])
    e("s_waitcnt lgkmcnt(0)")
    e("s_nop 0")
    for n in range(8): e(pv(n))
    e("s_add_u32 s%d, s%d, %d" % (sGOFF, sGOFF, 32 * 4096))
    e("s_sub_u32 s%d, s%d, 1" % (sCNT, sCNT))
    e("s_cmp_lg_u32 s%d, 0" % sCNT)
    e("s_nop 15")
    e("s_cbranch_scc1 L_stile")
    epilogue(False)
    e("s_branch L_snext")
    g.L.append(KD)
    return "\n".join(g.L) + "\n"

if __name__ == "__main__":
    out = sys.argv[1]
    opts = {}
    for a in sys.argv[2:]:
        k, v = a.split("="); opts[k] = v if "," in v else int(v)
    open(out, "w").write(gen(**opts))
```

```python
import sys, struct

KN = "standalone__ragged_sequences_packed_sequences__ragged_kernel"
PIECE, BLK, PAIR, GRP = 1056, 8448, 16896, 33792
RING = 8 * PAIR
STG = RING
SP = 144
LDS = RING + 4 * 32 * SP

SEGS = [(0, 370), (370, 108), (478, 143), (621, 363), (984, 165), (1149, 432), (1581, 100), (1681, 465)]
def pk(seg, c, dual=0):
    k0, L = SEGS[seg]
    return k0 | (L << 12) | (c << 21) | (dual << 26)
def f2u(x): return struct.unpack("<I", struct.pack("<f", x))[0]

DEF = dict(ts=0, prio=1, diag=-1, diagwg=0, diagwave=4, stf=",sc0,sc1", lead=4, ntlo=8, nthi=20, delay=0, selfclk=0,
           forcebad=0, direct=0, w2=1, tail=2, late=0, burn=0, burnrnd=0, t0pos=2, qfirst=1, ahead=3, flip=1, epi=0, touch="", leadk=4, keepf="", ntf=",nt", dualf=",nt", t0wait=0, hmap=0, hswap=0, sched=5)

class G:
    def __init__(s, **o):
        s.o = dict(DEF); s.o.update(o); s.L = []
    def e(s, x): s.L.append("    " + x)
    def c(s, x): s.L.append("    ; " + x)
    def lab(s, x): s.L.append(x + ":")
    def stamp_issue(s):
        if s.o["ts"]: s.e("s_memtime s[52:53]"); s.e("s_memrealtime s[54:55]")
    def stamp_write(s):
        if s.o["ts"]:
            s.e("s_mov_b32 m0, s56"); s.e("s_add_u32 s56, s56, 1"); s.e("v_writelane_b32 v30, s52, m0"); s.e("v_writelane_b32 v31, s54, m0")
    def fs(s, lvl=3):
        if s.o["ts"] == lvl:
            s.nfs = getattr(s, "nfs", 0); r = 64 + 2 * s.nfs; s.nfs += 1
            return ["s_memtime s[%d:%d]" % (r, r + 1)]
        return []
    def fs_flush(s, lvl=3):
        if s.o["ts"] == lvl:
            s.e("s_waitcnt lgkmcnt(0)")
            for k in range(s.nfs):
                s.e("s_mov_b32 m0, s56"); s.e("s_add_u32 s56, s56, 1"); s.e("v_writelane_b32 v30, s%d, m0" % (64 + 2 * k)); s.e("v_writelane_b32 v31, s54, m0")
    def stamp(s):
        if s.o["ts"]: s.stamp_issue(); s.e("s_waitcnt lgkmcnt(0)"); s.stamp_write()

O = 192; S = [160, 176]; CI = 144; Q = 112; KF = 80; VF = 48; P = 40
vKA, vVA, vKB, vVB, vQA = 1, 2, 3, 4, 5
vL, vL2, vNINF, vHF, vOOF, vTMP, vTMP2, vSR, vM, vRI, vDMA = 6, 7, 8, 9, 10, 11, 12, 13, 14, 16, 18
vSR2 = 15
vSW = 20
vT = 32
sQ, sK, sV, sO = 20, 24, 28, 32
sW, sH = 18, 19
sR0, sR1, sD = 36, 37, 38
sK0, sL, sQ0, sN, sEND = 39, 40, 41, 42, 43
sG, sGOFF, sCNT, sSTG, sT0, sT1, sC, sGM = 44, 45, 46, 47, 48, 49, 50, 51
sQB, sBAD, sBIT, sO0, sRS0, sRS1, sHI, sLO, sHA = 57, 58, 59, 60, 96, 97, 98, 99, 100
sLDS, sWRAP, sSA, sSB, sWB, sSA2, sSB2, sTA, sPC, sQL = 44, 45, 46, 47, 50, 51, 57, 58, 59, 68
sMASK = 64
sTB = 84
sTK, sTE, sTH, sTN, sTR0, sTR1 = 86, 87, 88, 89, 90, 91
vG0, vG1 = 28, 29

def vr(b, n=1): return "v%d" % b if n == 1 else "v[%d:%d]" % (b, b + n - 1)
def sr(b, n=1): return "s%d" % b if n == 1 else "s[%d:%d]" % (b, b + n - 1)

KD = """.section .rodata,"a"
.p2align 6
.amdhsa_kernel %s
  .amdhsa_next_free_vgpr 256
  .amdhsa_next_free_sgpr 102
  .amdhsa_accum_offset 256
  .amdhsa_group_segment_fixed_size 0
  .amdhsa_kernarg_size 56
  .amdhsa_user_sgpr_count 2
  .amdhsa_user_sgpr_kernarg_segment_ptr 1
  .amdhsa_system_sgpr_workgroup_id_x 1
.end_amdhsa_kernel""" % KN

def kread(dst, s_, off, a=vKA):
    return "ds_read_b128 %s, v%d offset:%d" % (vr(dst + 4 * s_, 4), a, off + s_ * 32)
def qk(s_, buf, c0="0"):
    return "v_mfma_f32_32x32x16_bf16 %s, %s, %s, %s" % (vr(S[buf], 16), vr(KF + 4 * s_, 4), vr(Q + 4 * s_, 4), c0 if s_ == 0 else vr(S[buf], 16))
def vread(n, off):
    ks, db, sec = n >> 3, (n >> 1) & 3, n & 1
    return "ds_read_b64_tr_b16 %s, v%d offset:%d" % (vr(VF + ks * 16 + db * 4 + sec * 2, 2), vVA, off + ks * PIECE + sec * 512 + db * 64)
def pv(n):
    ks, db = n >> 2, n & 3
    return "v_mfma_f32_32x32x16_bf16 %s, %s, %s, %s" % (vr(O + 16 * db, 16), vr(VF + ks * 16 + db * 4, 4), vr(P + 4 * ks, 4), vr(O + 16 * db, 16))
def op(x, h):
    cur, nxt = h, 1 - h
    off = h * PAIR
    if x == "B": return ["s_barrier"]
    if x[0] == "W": return ["s_waitcnt lgkmcnt(%s)" % x[1:].rstrip("ab")]
    if x == "SUB": return ["s_sub_u32 s%d, s%d, 1" % (sCNT, sCNT)]
    if x == "BR": return ["s_cbranch_scc1 L_tail%d" % (1 - h)] if h == 0 else ["s_cbranch_scc0 L_h0"]
    if x == "H1": return ["s_add_u32 s%d, s%d, 1" % (sG, sG)] if not h else []
    if x == "H2": return ["s_and_b32 s%d, s%d, s%d" % (sG, sG, sGM)] if not h else []
    if x == "H3": return ["s_mul_i32 s%d, s%d, %d" % (sGOFF, sG, GRP)] if not h else []
    if x == "UV": return ["v_add_u32 v%d, s%d, v%d" % (vVA, sGOFF, vVB)] if h else []
    if x == "UK": return ["v_add_u32 v%d, s%d, v%d" % (vKA, sGOFF, vKB)] if h else []
    if x[0] == "M": return [pv(int(x[1:]))]
    if x[0] == "V": return [vread(int(x[1:]), off)]
    if x[0] == "K": return [kread(KF, int(x[1:]), off + BLK)]
    b = S[cur] if x[1] == "c" else S[nxt]
    i = int(x[2:])
    if x[0] == "X": return ["v_exp_f32 v%d, v%d" % (b + i, b + i)]
    if x[0] == "C": return ["v_cvt_pk_bf16_f32 v%d, v%d, v%d" % (P + i, b + 2 * i, b + 2 * i + 1)]
    if x[0] == "Z": return ["v_fmac_f32 v%d, v%d, v%d" % (vL + (i & 1), b + i, CI + i)]
    if x[0] == "A": return ["v_add_f32 v%d, v%d, v%d" % (vL + (i & 1), vL + (i & 1), b + i)]
    raise ValueError(x)
def parse(s): return [g.split() for g in s.strip().split("|")]
SCHED = {}
SCHED[5] = parse("""V0 V1 Xc6 Xc7 | V2 V3 Xc8 Cc3 Ac0 | V4 V5 Xc9 Ac1 Ac2 | V6 V7 Xc10 Cc4 Ac3 | V8 V9 Xc11 Ac4 Ac5 | V10 V11 Xc12 Cc5 Ac6 | V12 V13 Xc13 Ac7 Ac8 | V14 V15 Xc14 Cc6 W8a |
 K0 K1 Xc15 Ac9 UV | K2 K3 Cc7 Ac10 Ac11 Ac12 | K4 K5 Xn0 Ac13 Ac14 | K6 K7 Xn1 Ac15 W8b | B H1 Xn2 Cn0 | H2 H3 Xn3 Xn4 UK | SUB Xn5 Cn1 | Cn2 BR""")
TAIL = """V0 V1 V8 V9 V2 V3 V10 V11 V4 V5 V12 V13 V6 V7 V14 V15 Xc6 Xc7 Xc8 Cc3 Xc9 Xc10 Xc11 Cc4 Cc5 W14 M0 Xc12 Xc13 Xc14 Xc15 Cc6 Ac0 Cc7 Ac1 Ac2 W12 M4
 Ac3 Ac4 Ac5 Ac6 Ac7 Ac8 W10 M1 Ac9 Ac10 Ac11 Ac12 Ac13 Ac14 W8 M5 Ac15""".split()

TAIL2 = """V0 V1 V8 V9 V2 V3 Xc6 Xc7 Xc8 Xc9 Cc3 Xc10 Xc11 Xc12 Xc13 Cc4 Ac0 N1 M0 V10 V11 Xc14 Xc15 Cc5 Cc6 Ac1 Cc7 Ac2 N9 M4 V4 V5 Ac3 Ac4 Ac5 Ac6 Ac7 N3 M1
 V12 V13 Ac8 Ac9 Ac10 Ac11 Ac12 N11 M5 V6 V7 V14 V15 Ac13 Ac14 Ac15""".split()
class DSQ:
    def __init__(s): s.q = []
    def add(s, tag): s.q.append(tag)
    def need(s, tag):
        if tag not in s.q: return []
        i = s.q.index(tag); n = len(s.q) - 1 - i
        del s.q[:i + 1]
        return ["s_waitcnt lgkmcnt(%d)" % n]

def gen(**opts):
    g = G(**opts); o = g.o; e = g.e
    ts = o["ts"]
    stf = o["stf"].replace(",", " ")
    g.L.append("""; Ragged (block-diagonal) attention, T=2146 H=16 D=128, bf16 in/out.
; kernarg: q,k,v,seg_ids,out,debug,ws.   Segment boundaries are constants of the problem (cu = 0,370,478,621,984,1149,1581,1681,2146).
; One workgroup per CU: waves 0-3 compute (32 query rows each, S^T = K Q^T, O^T = V^T P^T on MFMA 32x32x16),
; waves 4-7 stream Q/K/V tiles HBM -> LDS ring with LDS-DMA.
; softmax: exp2(s - ref) with ref = 0; every row sum is range-checked and a wave whose rows leave the safe range
; recomputes them with the true running max (L_slow).
; @launch grid=(256,1,1) block=(512,1,1) lds=%d
.amdgcn_target "amdgcn-amd-amdhsa--gfx950"
.text
.globl %s
.p2align 8
.type %s,@function
%s:""" % (LDS, KN, KN, KN))
    if ts:
        e("s_mov_b32 s56, 0"); e("v_mov_b32 v30, 0"); e("v_mov_b32 v31, 0"); g.stamp()
    if ts == 6: e("s_memtime s[70:71]")
    e("s_load_dwordx8 s[4:11], s[0:1], 0")
    e("s_cmp_ge_u32 s2, 256")
    e("s_cbranch_scc1 L_end")
    e("s_getpc_b64 s[14:15]")
    g.lab("L_pc")
    e("s_lshl_b32 s3, s2, 5")
    e("s_add_u32 s3, s3, L_table-L_pc")
    e("s_load_dwordx8 %s, s[14:15], s3" % sr(sTB, 8))
    e("s_load_dwordx2 s[12:13], s[0:1], 32")
    if ts: e("s_load_dwordx2 s[16:17], s[0:1], 48")
    e("v_lshrrev_b32 v1, 6, v0")
    e("v_and_b32 v0, 63, v0")
    e("v_readfirstlane_b32 s%d, v1" % sW)
    g.c("tile piece addressing: lane i -> row i>>4 (pitch 4096), 16-byte chunk (i&15) ^ ((i>>4)&1); wave w owns pieces 2(w&3), 2(w&3)+1")
    e("v_lshrrev_b32 v2, 4, v0")
    e("v_bfe_u32 v3, v0, 4, 1")
    e("v_and_b32 v4, 15, v0")
    e("v_xor_b32 v4, v4, v3")
    e("v_lshlrev_b32 v4, 4, v4")
    e("v_and_b32 v1, 3, v1")
    e("v_lshl_add_u32 v2, v1, 3, v2")
    e("v_lshl_add_u32 v%d, v2, 12, v4" % vG0)
    e("v_add_u32 v%d, 16384, v%d" % (vG1, vG0))
    e("s_mov_b32 s%d, 0x20000" % (sQ + 3))
    e("s_cmp_lt_u32 s%d, 4" % sW)
    if ts == 6: e("s_memtime s[72:73]"); e("s_memtime s[74:75]")
    e("s_waitcnt lgkmcnt(0)")
    if ts == 6: e("s_memtime s[76:77]")
    e("s_cselect_b32 s%d, s%d, s%d" % (sT0, sTB + 1, sTB))
    e("s_add_u32 s%d, s4, s%d" % (sQ, sTH))
    e("s_addc_u32 s%d, s5, 0" % (sQ + 1))
    e("s_mov_b32 s%d, s%d" % (sQ + 2, sTE))
    e("s_add_u32 s%d, s%d, %d" % (sT1, sT0, 32 * 4096))
    g.c("first round: every wave fetches four pieces of Q (loaders: blocks 0,1; compute waves: blocks 2,3 / second head)")
    for n in range(4):
        e("buffer_load_dwordx4 %s, v%d, %s, s%d offen nt" % (vr(Q + 4 * n, 4), vG1 if n & 1 else vG0, sr(sQ, 4), sT1 if n >> 1 else sT0))
    e("s_cmp_lt_u32 s%d, 4" % sW)
    e("s_cbranch_scc1 L_cons")

    def decode_round():
        e("s_and_b32 s%d, s%d, 0xfff" % (sK0, sR0))
        e("s_bfe_u32 s%d, s%d, 0x9000c" % (sL, sR0))
        e("s_bfe_u32 s%d, s%d, 0x20015" % (sQ0, sR0))
        e("s_lshl_b32 s%d, s%d, 7" % (sQ0, sQ0))
        e("s_add_u32 s%d, s%d, s%d" % (sQ0, sQ0, sK0))
        e("s_add_u32 s%d, s%d, 31" % (sN, sL))
        e("s_lshr_b32 s%d, s%d, 5" % (sN, sN))
        e("s_add_u32 s%d, s%d, s%d" % (sEND, sK0, sL))
        e("s_lshl_b32 s%d, s%d, 12" % (sEND, sEND))
        e("s_sub_u32 s%d, s%d, 3584" % (sEND, sEND))
    def next_round():
        e("s_mov_b32 s%d, s%d" % (sR0, sR1))
        e("s_mov_b32 s%d, 0" % sR1)
        decode_round()
    def srd(d, p):
        e("s_add_u32 s%d, s%d, s%d" % (d, p, sH))
        e("s_addc_u32 s%d, s%d, 0" % (d + 1, p + 1))
        e("s_mov_b32 s%d, 0x20000" % (d + 3))
    def dma_lane_offset(dst, t0, t1):
        e("v_lshrrev_b32 v%d, 4, v0" % t0)
        e("v_and_b32 v%d, 1, v%d" % (t1, t0))
        e("v_and_b32 v%d, 15, v0" % dst)
        e("v_xor_b32 v%d, v%d, v%d" % (dst, dst, t1))
        e("v_lshlrev_b32 v%d, 4, v%d" % (dst, dst))
        e("v_lshl_add_u32 v%d, v%d, 12, v%d" % (dst, t0, dst))

    g.c("================= loader waves =================")
    if o["prio"]: e("s_setprio 3")
    e("s_add_u32 s%d, s6, s%d" % (sK, sTH))
    e("s_addc_u32 s%d, s7, 0" % (sK + 1))
    e("s_mov_b32 s%d, s%d" % (sK + 2, sTE))
    e("s_mov_b32 s%d, 0x20000" % (sK + 3))
    e("s_sub_u32 s%d, s%d, 4" % (sT0, sW))
    e("s_mul_i32 s%d, s%d, %d" % (sWB, sT0, 2 * PIECE))
    e("v_add_u32 v2, %d, v%d" % (16384 - PIECE, vG0))
    e("s_mov_b32 s%d, s%d" % (sSA, sTK))
    e("s_add_u32 s%d, s%d, %d" % (sSB, sTK, 32 * 4096))
    e("s_bitcmp1_b32 s%d, 8" % sTN)
    e("s_cbranch_scc1 L_pdual")
    e("s_bitcmp1_b32 s%d, 9" % sTN)
    e("s_cbranch_scc1 L_pkeep")

    def producer(dual, ntkv, sfx, multi):
        tch = o["touch"].replace(",", " ") if sfx == "k" else ""
        lead = 2 if dual else (o["leadk"] if sfx == "k" else o["lead"])
        npos = 4 if dual else 8
        q = []
        cnt = [0]
        if tch:
            g.c("retention touches: lanes 0-15 cover the 16 lines this wave fetched of a block")
            e("v_lshrrev_b32 v3, 1, v0"); e("v_lshlrev_b32 v3, 12, v3"); e("v_and_b32 v4, 1, v0"); e("v_lshl_add_u32 v3, v4, 7, v3")
            e("s_sub_u32 s%d, s%d, 4" % (sT0, sW)); e("s_lshl_b32 s%d, s%d, 15" % (sT0, sT0)); e("v_add_u32 v3, s%d, v3" % sT0)
        def dma(srd_, soff, v, off):
            f = " nt" if srd_ == sQ else ntkv.replace(",", " ")
            e("buffer_load_dwordx4 v%d, %s, s%d offen%s%s lds" % (vG0 if v == 1 else v, sr(srd_, 4), soff, " offset:%d" % off if off else "", f))
            q.append(cnt[0])
        def issue(a, b):
            e("s_mov_b32 m0, s%d" % sLDS)
            e("s_add_u32 s%d, s%d, %d" % (sT0, sLDS, BLK))
            dma(a, sSA, 1, 0); dma(a, sSA, 2, PIECE)
            e("s_mov_b32 m0, s%d" % sT0)
            if dual:
                e("s_add_u32 s%d, s%d, %d" % (sT0, sLDS, 2 * GRP))
                dma(b, sSB, 1, 0); dma(b, sSB, 2, PIECE)
                e("s_mov_b32 m0, s%d" % sT0)
                e("s_add_u32 s%d, s%d, 256" % (sSA2, sSA))
                e("s_add_u32 s%d, s%d, %d" % (sT0, sLDS, 2 * GRP + BLK))
                dma(a, sSA2, 1, 0); dma(a, sSA2, 2, PIECE)
                e("s_mov_b32 m0, s%d" % sT0)
                e("s_add_u32 s%d, s%d, 256" % (sSB2, sSB))
                e("s_add_u32 s%d, s%d, %d" % (sLDS, sLDS, PAIR))
                dma(b, sSB2, 1, 0); dma(b, sSB2, 2, PIECE)
            else:
                e("s_add_u32 s%d, s%d, %d" % (sLDS, sLDS, PAIR))
                dma(b, sSB, 1, 0); dma(b, sSB, 2, PIECE)
            e("s_cmp_eq_u32 s%d, s%d" % (sLDS, sWRAP))
            e("s_cselect_b32 s%d, s%d, s%d" % (sLDS, sWB, sLDS))
            cnt[0] += 1
            return cnt[0] - 1
        def issue_q(r0, half=False):
            n = 0
            def ld(soff, v):
                nonlocal n
                e("buffer_load_dwordx4 %s, v%d, %s, s%d offen nt" % (vr(r0 + 4 * n, 4), vG0 if v == 1 else vG1, sr(sQ, 4), soff)); q.append(cnt[0]); n += 1
            e("s_mov_b32 s%d, s%d" % (sQL + (1 if r0 == 80 else 0), sLDS))
            ld(sSA, 1); ld(sSA, 7); ld(sSB, 1); ld(sSB, 7)
            if dual and not half:
                e("s_add_u32 s%d, s%d, 256" % (sSA2, sSA)); e("s_add_u32 s%d, s%d, 256" % (sSB2, sSB))
                ld(sSA2, 1); ld(sSA2, 7); ld(sSB2, 1); ld(sSB2, 7)
            e("s_add_u32 s%d, s%d, %d" % (sLDS, sLDS, PAIR))
            e("s_cmp_eq_u32 s%d, s%d" % (sLDS, sWRAP))
            e("s_cselect_b32 s%d, s%d, s%d" % (sLDS, sWB, sLDS))
            cnt[0] += 1
            return cnt[0] - 1
        def finish_q(tag, r0, half=False, hook=None):
            e("v_add_u32 v41, s%d, v40" % (sQL + (1 if r0 == 80 else 0)))
            if dual and not half: e("v_add_u32 v42, %d, v41" % (2 * GRP))
            for n in range(8 if dual and not half else 4):
                if hook and n == hook[0]: hook[1]()
                first = min(i for i, x in enumerate(q) if x == tag)
                e("s_waitcnt vmcnt(%d)" % (len(q) - 1 - first))
                del q[:first + 1]
                for i in range(4):
                    r = r0 + 4 * n + i; tt = 44 + 2 * i
                    e("v_lshlrev_b32 v%d, 16, v%d" % (tt, r))
                    e("v_and_b32 v%d, 0xffff0000, v%d" % (tt + 1, r))
                    if half: e("v_pk_mul_f32 %s, %s, %s" % (vr(tt, 2), vr(tt, 2), vr(52, 2)))
                    else: e("v_mul_f32 v%d, s%d, v%d" % (tt, sPC, tt)); e("v_mul_f32 v%d, s%d, v%d" % (tt + 1, sPC, tt + 1))
                    e("v_cvt_pk_bf16_f32 v%d, v%d, v%d" % (r, tt, tt + 1))
                e("ds_write_b128 v%d, %s offset:%d" % (42 if n >= 4 else 41, vr(r0 + 4 * n, 4), (n & 1) * PIECE + ((n >> 1) & 1) * BLK))
        def elem(k):
            if k == "K":
                for x in (sQ, sK, sV): e("s_mov_b32 s%d, s%d" % (x + 2, sEND))
                e("s_lshl_b32 s%d, s%d, 12" % (sSA, sK0))
                e("s_add_u32 s%d, s%d, %d" % (sSB, sSA, 32 * 4096))
                return issue(sK, sK)
            elif k == "Q0":
                e("s_lshl_b32 s%d, s%d, 12" % (sSA, sQ0))
                e("s_add_u32 s%d, s%d, %d" % (sSB, sSA, 32 * 4096))
                return issue_q(64)
            elif k == "Q1":
                e("s_add_u32 s%d, s%d, %d" % (sSA, sSA, 64 * 4096))
                e("s_add_u32 s%d, s%d, %d" % (sSB, sSB, 64 * 4096))
                return issue_q(80)
            elif k == "T0":
                e("s_lshl_b32 s%d, s%d, 12" % (sSA, sK0))
                e("s_add_u32 s%d, s%d, %d" % (sSB, sSA, 64 * 4096))
            else:
                r = issue(sV, sK)
                e("s_add_u32 s%d, s%d, %d" % (sSA, sSA, 32 * 4096))
                e("s_add_u32 s%d, s%d, %d" % (sSB, sSB, 32 * 4096))
                return r
        def touch(a, b):
            e("s_mov_b64 exec, 0xffff")
            e("s_add_u32 s%d, s%d, %d" % (sT0, sTA, (32 if a == sK else 64) * 4096))
            cp = {sK: 60, sV: 64}
            e("buffer_load_dword v5, v3, %s, s%d offen%s" % (sr(cp[a], 4), sTA, tch)); q.append(-1)
            e("buffer_load_dword v6, v3, %s, s%d offen%s" % (sr(cp[b], 4), sT0, tch)); q.append(-1)
            e("s_mov_b64 exec, -1")
            if a == sV: e("s_add_u32 s%d, s%d, %d" % (sTA, sTA, 32 * 4096))
        def wait(tag, bar, t=None):
            last = max(i for i, x in enumerate(q) if x == tag)
            e("s_waitcnt vmcnt(%d)" % (len(q) - 1 - last))
            del q[:last + 1]
            g.stamp()
            if t: touch(*t)
            if bar: e("s_barrier")
        def rel(): return [x - cnt[0] if x >= 0 else None for x in q]
        pro = ["K", "Q0"] if dual else ["K", "Q0", "Q1"]
        tq = cnt[0]; q.extend([tq] * 4); cnt[0] += 1
        if dual: e("s_mov_b32 s%d, s%d" % (sLDS, sWB))
        else: e("s_add_u32 s%d, s%d, %d" % (sLDS, sWB, PAIR))
        e("s_add_u32 s%d, s%d, %d" % (sWRAP, sWB, npos * PAIR))
        tk = issue(sK, sK)
        if ts == 6:
            e("s_memtime s[78:79]"); e("s_waitcnt lgkmcnt(0)")
            for k in range(5):
                e("s_mov_b32 m0, s56"); e("s_add_u32 s56, s56, 1"); e("v_writelane_b32 v30, s%d, m0" % (70 + 2 * k)); e("v_writelane_b32 v31, s54, m0")
        e("s_mov_b32 s%d, s%d" % (sQL, sLDS))
        e("s_add_u32 s%d, s%d, %d" % (sLDS, sLDS, PAIR if dual else 2 * PAIR))
        e("s_mov_b32 s%d, s%d" % (sH, sTH))
        srd(sV, 8)
        e("s_mov_b32 s%d, s%d" % (sV + 2, sTE))
        e("s_add_u32 s%d, s%d, %d" % (sSB, sSA, 64 * 4096))
        e("s_and_b32 s%d, s%d, 255" % (sN, sTN))
        e("s_mov_b32 s%d, s%d" % (sR1, sTR1))
        e("v_lshlrev_b32 v40, 4, v0")
        e("s_mov_b32 s%d, 0x%08x" % (sPC, f2u((128 ** -0.5) * 1.4426950408889634)))
        e("v_mov_b32 v52, s%d" % sPC); e("v_mov_b32 v53, s%d" % sPC)
        if o["t0pos"] < 4: finish_q(tq, Q, True, (o["t0pos"], lambda: elem("T")))
        else: finish_q(tq, Q, True); elem("T")
        wait(tk, False)
        e("s_waitcnt lgkmcnt(0)")
        g.stamp()
        e("s_barrier")
        for _ in range(lead - 1):
            if tch: touch(sK, sK)
            elem("T")
        if o["prio"]: e("s_setprio 0")
        e("s_sub_u32 s%d, s%d, %d" % (sT1, sN, lead))
        def steady(lab, t, check0):
            g.lab("L_pt" + lab)
            if check0:
                e("s_cmp_eq_u32 s%d, 0" % sT1)
                e("s_cbranch_scc1 L_pe" + lab)
            def after_target():
                r = rel(); return r[max(i for i, x in enumerate(r) if x == -lead):]
            before = after_target()
            wait(cnt[0] - lead, True, t)
            elem("T")
            e("s_sub_u32 s%d, s%d, 1" % (sT1, sT1))
            assert after_target() == before, (before, after_target())
            if check0: e("s_branch L_pt" + lab); g.lab("L_pe" + lab)
            else:
                e("s_cmp_lg_u32 s%d, 0" % sT1)
                e("s_cbranch_scc1 L_pt" + lab)
        def drain(t):
            for n in range(lead, 0, -1): wait(cnt[0] - n, True, t)
            g.stamp()
            e("s_branch L_tsout" if ts else "s_endpgm")
        tt = (sV, sK) if tch else None
        steady(sfx, tt, multi)
        if multi:
            e("s_cmp_eq_u32 s%d, 0" % sR1)
            e("s_cbranch_scc1 L_pd" + sfx)
            st0 = (list(q), cnt[0])
            def change(skip, lab):
                q[:] = st0[0]; cnt[0] = st0[1]
                seq = (["X"] if skip else []) + pro + ["T"] * lead
                proc = [True] * lead + ([False] if skip else []) + [False] * (len(pro) - 1) + [True]
                assert len(seq) == len(proc)
                first_t = True
                for n, (k, bar) in enumerate(zip(seq, proc)):
                    pk_ = seq[n - lead] if n >= lead else "T"
                    if pk_ in ("Q0", "Q1"):
                        finish_q(cnt[0] - lead, 64 if pk_ == "Q0" else 80)
                        if bar: e("s_waitcnt lgkmcnt(0)"); g.stamp(); e("s_barrier")
                    else: wait(cnt[0] - lead, bar, tt if n < lead else None)
                    if k == "X": issue(sV, sK)
                    elif k == "T":
                        if first_t: elem("T0"); first_t = False
                        elem("T")
                    else:
                        if k == "K":
                            if tch:
                                pass
                            next_round()
                        elem(k)
                e("s_sub_u32 s%d, s%d, %d" % (sT1, sN, lead))
                q[:] = [x for x in q if x >= 0]
                e("s_branch L_pt2" + sfx)
            if dual: change(False, "a")
            else:
                e("s_bitcmp1_b32 s%d, 0" % sN)
                e("s_cbranch_scc1 L_pc1" + sfx)
                change(True, "a")
                g.lab("L_pc1" + sfx)
                change(False, "b")
            steady("2" + sfx, None, True)
            drain(None)
            q[:] = st0[0]; cnt[0] = st0[1]
        g.lab("L_pd" + sfx)
        drain(tt)
    producer(False, o["ntf"], "s", False)
    g.lab("L_pkeep")
    producer(False, o["keepf"], "k", True)
    g.lab("L_pdual")
    producer(True, o["dualf"], "d", True)

    g.L.append(".p2align 6")
    g.lab("L_cons")
    g.c("================= compute waves =================")
    if o["prio"]: e("s_setprio 1")
    e("s_mov_b32 s%d, s%d" % (sR0, sTR0)); e("s_mov_b32 s%d, s%d" % (sR1, sTR1)); e("s_mov_b32 s%d, s%d" % (sH, sTH))
    e("s_bfe_u32 s%d, s%d, 0x10008" % (sD, sTN))
    decode_round()
    t = vT
    e("v_lshrrev_b32 v%d, 5, v0" % vHF)
    e("v_and_b32 v%d, 3, v0" % t)
    e("v_bfe_u32 v%d, v0, 4, 1" % (t + 1))
    e("v_lshl_add_u32 v%d, v%d, 1, v%d" % (t + 1, t, t + 1))
    e("v_bfe_u32 v%d, v0, 2, 1" % (t + 2))
    e("v_bfe_u32 v%d, v0, 3, 1" % (t + 3))
    e("v_lshl_add_u32 v%d, v%d, 1, v%d" % (t + 3, t + 3, t + 2))
    e("v_mul_u32_u24 v%d, %d, v%d" % (t + 4, PIECE, t + 1))
    e("v_lshl_add_u32 v%d, v%d, 8, v%d" % (t + 4, t + 3, t + 4))
    e("v_xor_b32 v%d, v%d, v%d" % (t + 2, t + 2, vHF))
    e("v_lshl_add_u32 v%d, v%d, 4, v%d" % (vKB, t + 2, t + 4))
    e("v_bfe_u32 v%d, v0, 2, 2" % (t + 4))
    e("v_mul_u32_u24 v%d, %d, v%d" % (t + 4, 2 * PIECE, t + 4))
    e("v_lshl_add_u32 v%d, v%d, 8, v%d" % (t + 4, vHF, t + 4))
    e("v_bfe_u32 v%d, v0, 4, 1" % (t + 5))
    e("v_lshlrev_b32 v%d, 5, v%d" % (t + 5, t + 5))
    if o["direct"]:
        e("v_and_b32 v%d, 1, v0" % (t + 6)); e("v_lshl_add_u32 v%d, v%d, 4, v%d" % (t + 5, t + 6, t + 5))
        e("v_bfe_u32 v%d, v0, 1, 1" % (t + 6)); e("v_lshl_add_u32 v%d, v%d, 3, v%d" % (t + 5, t + 6, t + 5))
    else: e("v_lshl_add_u32 v%d, v%d, 3, v%d" % (t + 5, t, t + 5))
    e("v_lshlrev_b32 v%d, 4, v%d" % (t + 6, vHF))
    e("v_xor_b32 v%d, v%d, v%d" % (t + 5, t + 5, t + 6))
    e("v_add_u32 v%d, v%d, v%d" % (vVB, t + 4, t + 5))
    e("v_mov_b32 v%d, 0xff800000" % vNINF)
    e("s_lshr_b32 s%d, s%d, 1" % (sT0, sW))
    e("s_mul_i32 s%d, s%d, s%d" % (sT0, sT0, sD))
    e("s_mul_i32 s%d, s%d, %d" % (sT1, sT0, 2 * GRP))
    e("s_lshl_b32 s%d, s%d, 8" % (sT0, sT0))
    e("s_add_u32 s%d, s%d, s%d" % (sH, sH, sT0))
    e("s_cmp_eq_u32 s%d, 0" % sD)
    e("s_cselect_b32 s%d, 3, 1" % sGM)
    e("s_and_b32 s%d, s%d, s%d" % (sQB, sW, sGM))
    e("v_add_u32 v%d, s%d, v%d" % (vKB, sT1, vKB))
    e("v_add_u32 v%d, s%d, v%d" % (vVB, sT1, vVB))
    if o["w2"]:
        g.c("staging: row = lane&31 at pitch %d, byte hf*8 ; read back row = lane>>3, chunk = lane&7" % SP)
        e("s_mul_i32 s%d, s%d, %d" % (sT0, sW, 32 * SP))
        e("s_add_u32 s%d, s%d, %d" % (sT0, sT0, STG))
        e("v_and_b32 v%d, 31, v0" % (t + 4))
        e("v_mul_u32_u24 v%d, %d, v%d" % (t + 4, SP, t + 4))
        e("v_lshl_add_u32 v%d, v%d, 3, v%d" % (t + 4, vHF, t + 4))
        e("v_add_u32 v%d, s%d, v%d" % (vSW, sT0, t + 4))
        e("v_lshrrev_b32 v%d, 3, v0" % (t + 4))
        e("v_mul_u32_u24 v%d, %d, v%d" % (t + 4, SP, t + 4))
        e("v_and_b32 v%d, 7, v0" % (t + 5))
        e("v_lshl_add_u32 v%d, v%d, 4, v%d" % (t + 4, t + 5, t + 4))
        e("v_add_u32 v%d, s%d, v%d" % (vSR, sT0, t + 4))
    else:
        g.c("staging: write row = lane&31 (128 B pitch), chunk ^ (row&7), 8-byte half hf ^ (row>>3 & 1)")
        e("s_lshl_b32 s%d, s%d, 12" % (sT0, sW))
        e("s_add_u32 s%d, s%d, %d" % (sT0, sT0, STG))
        e("v_and_b32 v%d, 31, v0" % (t + 4))
        e("v_lshlrev_b32 v%d, 7, v%d" % (t + 4, t + 4))
        if o["flip"]:
            e("v_bfe_u32 v%d, v0, 3, 1" % (t + 5))
            e("v_xor_b32 v%d, v%d, v%d" % (t + 5, t + 5, vHF))
            e("v_lshl_add_u32 v%d, v%d, 3, v%d" % (t + 4, t + 5, t + 4))
        else: e("v_lshl_add_u32 v%d, v%d, 3, v%d" % (t + 4, vHF, t + 4))
        e("v_and_b32 v%d, 7, v0" % (t + 5))
        e("v_lshl_add_u32 v%d, v%d, 4, v%d" % (t + 4, t + 5, t + 4))
        e("v_add_u32 v%d, s%d, v%d" % (vSW, sT0, t + 4))
        for c in range(1, 8): e("v_xor_b32 v%d, %d, v%d" % (vSW + c, c * 16, vSW))
        e("v_lshrrev_b32 v%d, 3, v0" % (t + 4))
        e("v_xor_b32 v%d, v%d, v%d" % (t + 6, t + 4, t + 5))
        e("v_lshlrev_b32 v%d, 7, v%d" % (t + 4, t + 4))
        e("v_lshl_add_u32 v%d, v%d, 4, v%d" % (t + 4, t + 6, t + 4))
        e("v_add_u32 v%d, s%d, v%d" % (vSR, sT0, t + 4))
    e("v_add_u32 v%d, 2048, v%d" % (vSR2, vSR))
    e("v_bfe_u32 v%d, v0, 3, 2" % (t + 4))
    e("v_lshl_add_u32 v%d, v%d, 3, v%d" % (t + 4, t + 4, vHF))
    e("v_lshlrev_b32 v%d, 12, v%d" % (t + 4, t + 4))
    e("v_lshl_add_u32 v%d, v%d, 4, v%d" % (vOOF, t + 5, t + 4))
    if o["direct"]:
        e("v_and_b32 v%d, 3, v0" % (t + 4)); e("v_lshlrev_b32 v%d, 3, v%d" % (t + 4, t + 4))
        e("v_bfe_u32 v%d, v0, 3, 1" % (t + 5)); e("v_lshl_add_u32 v%d, v%d, 1, v%d" % (t + 4, t + 5, t + 4))
        e("v_bfe_u32 v%d, v0, 2, 1" % (t + 5)); e("v_add_u32 v%d, v%d, v%d" % (t + 4, t + 5, t + 4))
        e("v_lshlrev_b32 v%d, 12, v%d" % (t + 4, t + 4))
        e("v_bfe_u32 v%d, v0, 4, 1" % (t + 5)); e("v_lshl_add_u32 v%d, v%d, 5, v%d" % (t + 4, t + 5, t + 4))
        e("v_lshl_add_u32 v%d, v%d, 4, v%d" % (vOOF, vHF, t + 4))
    e("s_mov_b32 s%d, 0" % sG)
    e("s_mov_b32 s%d, 0x%08x" % (sC, f2u((128 ** -0.5) * 1.4426950408889634)))
    e("s_mov_b32 s%d, 0" % sBAD)
    e("s_mov_b32 s%d, 1" % sBIT)
    e("s_mov_b32 s%d, s%d" % (sRS0, sR0))
    e("s_mov_b32 s%d, s%d" % (sRS1, sR1))
    e("s_mov_b32 s%d, 0x%08x" % (sHI, f2u(2.0 ** 60) if not o["forcebad"] else f2u(2.0 ** -70)))
    e("s_mov_b32 s%d, 0x%08x" % (sLO, f2u(2.0 ** -60)))
    e("s_cmp_eq_u32 s%d, 0" % sD)
    e("s_mov_b32 s%d, %d" % (sT1, 2 * GRP + PAIR))
    e("s_cselect_b32 s%d, %d, s%d" % (sT1, 3 * PAIR, sT1))
    e("s_mul_i32 s%d, s%d, %d" % (sT0, sW, 2 * PIECE))
    e("s_add_u32 s%d, s%d, s%d" % (sT1, sT1, sT0))
    e("v_lshlrev_b32 v%d, 4, v0" % (KF + 18))
    e("v_add_u32 v%d, s%d, v%d" % (KF + 18, sT1, KF + 18))
    srd(sO, 12)
    if o["burn"]:
        for i in range(32):
            if o["burnrnd"]:
                e("v_mul_u32_u24 v%d, %d, v0" % (VF + i, 40503 + 977 * i)); e("v_mul_lo_u32 v%d, v%d, v%d" % (VF + i, VF + i, VF + i)); e("v_and_b32 v%d, 0xbf7fbf7f, v%d" % (VF + i, VF + i))
            else: e("v_mov_b32 v%d, 0" % (VF + i))
        e("s_mov_b32 s%d, %d" % (sT0, o["burn"]))
        g.lab("L_burn")
        for n in range(8): e("v_mfma_f32_32x32x16_bf16 %s, %s, %s, %s" % (vr(O + 16 * (n & 3), 16), vr(VF + 4 * n, 4), vr(VF + 4 * ((n + 3) & 7), 4), vr(O + 16 * (n & 3), 16)))
        e("s_sub_u32 s%d, s%d, 1" % (sT0, sT0)); e("s_cmp_lg_u32 s%d, 0" % sT0); e("s_cbranch_scc1 L_burn")
    def round_setup():
        e("s_mov_b32 s%d, s%d" % (sO + 2, sEND))
        e("s_lshl_b32 s%d, s%d, 5" % (sT0, sQB))
        e("s_add_u32 s%d, s%d, s%d" % (sT0, sT0, sQ0))
        e("s_lshl_b32 s%d, s%d, 12" % (sO0, sT0))
        for j in range(1, 4): e("s_add_u32 s%d, s%d, %d" % (sO0 + j, sO0, j * 8192))
        e("s_sub_u32 s%d, s%d, 1" % (sT0, sN))
        e("s_lshl_b32 s%d, s%d, 5" % (sT0, sT0))
        e("s_sub_u32 s%d, s%d, s%d" % (sT0, sL, sT0))
        e("v_sub_u32 v%d, s%d, v%d" % (vTMP, sT0, vHF))
    def setup_valu():
        r = ["v_mov_b64 %s, 0" % vr(vL, 2)] + ["v_mov_b64 %s, 0" % vr(O + i, 2) for i in range(0, 64, 2)]
        for rr in range(16):
            kc = 8 * (rr % 4) + 4 * (rr // 8) + 2 * ((rr // 4) % 2)
            r.append("v_cmp_lt_i32 %s, %d, v%d" % (sr(sMASK + 2 * rr, 2), kc, vTMP))
        r += ["v_cndmask_b32 v%d, 0, 1.0, %s" % (CI + rr, sr(sMASK + 2 * rr, 2)) for rr in range(16)]
        return r
    def qscale(s_, pk_=False):
        for i in range(4 * s_, 4 * s_ + 4):
            tt = vT + 2 * (i % 4)
            e("v_lshlrev_b32 v%d, 16, v%d" % (tt, Q + i))
            e("v_and_b32 v%d, 0xffff0000, v%d" % (tt + 1, Q + i))
            if pk_: e("v_pk_mul_f32 %s, %s, %s op_sel_hi:[1,0]" % (vr(tt, 2), vr(tt, 2), sr(sC, 2)))
            else:
                e("v_mul_f32 v%d, s%d, v%d" % (tt, sC, tt)); e("v_mul_f32 v%d, s%d, v%d" % (tt + 1, sC, tt + 1))
            e("v_cvt_pk_bf16_f32 v%d, v%d, v%d" % (Q + i, tt, tt + 1))
    for n in range(4):
        e("s_waitcnt vmcnt(%d)" % (3 - n))
        qscale(n, True)
        e("ds_write_b128 v%d, %s offset:%d" % (KF + 18, vr(Q + 4 * n, 4), (n & 1) * PIECE + (n >> 1) * BLK))
    g.lab("L_cround")
    round_setup()
    e("s_mul_i32 s%d, s%d, %d" % (sGOFF, sG, GRP))
    e("s_add_u32 s%d, s%d, %d" % (sT0, sGOFF, PAIR))
    e("s_add_u32 s%d, s%d, 1" % (sG, sG))
    e("s_and_b32 s%d, s%d, s%d" % (sG, sG, sGM))
    e("s_mul_i32 s%d, s%d, %d" % (sT1, sG, GRP))
    e("s_cmp_eq_u32 s%d, 0" % sD)
    e("s_cselect_b32 s%d, s%d, s%d" % (sGOFF, sT0, sGOFF))
    e("s_cselect_b32 s%d, s%d, s%d" % (sT0, sT1, sT0))
    e("s_addc_u32 s%d, s%d, 0" % (sG, sG))
    e("s_and_b32 s%d, s%d, s%d" % (sG, sG, sGM))
    e("s_mul_i32 s%d, s%d, %d" % (sT1, sQB, BLK))
    e("s_add_u32 s%d, s%d, s%d" % (sT0, sT0, sT1))
    e("v_add_u32 v%d, s%d, v%d" % (vQA, sT0, vKB))
    e("v_add_u32 v%d, s%d, v%d" % (vKA, sGOFF, vKB))
    e("s_mul_i32 s%d, s%d, %d" % (sGOFF, sG, GRP))
    e("v_add_u32 v%d, s%d, v%d" % (vVA, sGOFF, vVB))
    e("s_sub_u32 s%d, s%d, 2" % (sCNT, sN))
    e("s_waitcnt lgkmcnt(0)")
    g.stamp()
    e("s_barrier")
    g.stamp()
    sv = setup_valu()
    AH = o["ahead"]
    for s_ in range(AH):
        e(kread(Q, s_, 0, vQA)); e(kread(KF, s_, 0))
    for s_ in range(8):
        e("s_waitcnt lgkmcnt(%d)" % (2 * (min(8, s_ + AH) - s_ - 1)))
        e(qk(s_, 0))
        if s_ + AH < 8:
            e(kread(Q, s_ + AH, 0, vQA)); e(kread(KF, s_ + AH, 0))
        if s_ < 7:
            for x in sv[:6]: e(x)
            sv = sv[6:]
    for s_ in range(8): e(kread(KF, s_, BLK))
    e("v_add_u32 v%d, s%d, v%d" % (vKA, sGOFF, vKB))
    for x in sv: e(x)
    e("s_barrier")
    for x in "Xn0 Xn1 Xn2 Xn3 Cn0 Xn4 Cn1 Xn5".split(): e(op(x, 1)[0])
    e("s_nop 0")
    e(op("Cn2", 1)[0])
    if ts == 2: g.stamp_issue()
    else: g.stamp()
    g.L.append(".p2align 6")
    gaps = SCHED[o["sched"]]
    for h in range(2):
        g.lab("L_h%d" % h)
        e("s_waitcnt lgkmcnt(0)")
        if ts == 2: g.stamp_write()
        for n in range(16):
            e(qk(n, 1 - h) if n < 8 else pv(n - 8))
            if ts == 2 and n == 13: g.stamp_issue()
            for x in gaps[n]:
                for y in op(x, h): e(y)
    for h in range(2):
        g.lab("L_tail%d" % h)
        if ts == 2:
            e("s_waitcnt lgkmcnt(0)"); g.stamp_write()
        if ts == 3: e("s_memtime s[64:65]"); g.nfs = 1
        if ts == 5: g.nfs = 0; e(g.fs(5)[0])
        dq = DSQ()
        for x in (TAIL2 if o["tail"] == 2 else TAIL):
            if ts == 5 and (x[0] in "WM" or x == "Xc6"): e(g.fs(5)[0])
            if x[0] == "N":
                for y in dq.need("V" + x[1:]): e(y)
                continue
            if x[0] == "V": dq.add(x)
            for y in op(x.replace("Ac", "Zc"), h): e(y)
        if ts == 5: e(g.fs(5)[0])
        if h == 0: e("s_branch L_epi")
    W = VF; R = KF
    def blk(db, qd, pk_=True):
        ob = O + 16 * db + 4 * qd; w = VF + (0, 16, 8, 24)[db] + 2 * qd
        if pk_: m = ["v_pk_mul_f32 %s, %s, %s op_sel_hi:[1,0]" % (vr(ob + k, 2), vr(ob + k, 2), vr(vRI, 2)) for k in (0, 2)]
        else: m = ["v_mul_f32 v%d, v%d, v%d" % (ob + k, vRI, ob + k) for k in range(4)]
        return m + ["v_cvt_pk_bf16_f32 v%d, v%d, v%d" % (w, ob, ob + 1),
                    "v_cvt_pk_bf16_f32 v%d, v%d, v%d" % (w + 1, ob + 2, ob + 3),
                    "ds_write_b64 v%d, %s" % (vSW + (db & 1) * 4 + qd, vr(w, 2))]
    def zero(db, qd): return ["v_mov_b64 %s, 0" % vr(O + 16 * db + 4 * qd, 2), "v_mov_b64 %s, 0" % vr(O + 16 * db + 4 * qd + 2, 2)]
    def rd(hh, j):
        d = vr(R + 16 * hh + 4 * j, 4)
        if j & 1: return "ds_read2_b64 %s, v%d offset0:129 offset1:128" % (d, vSR2 if j == 3 else vSR)
        return "ds_read_b128 %s, v%d offset:%d" % (d, vSR, j * 1024)
    def st(hh, j): return "buffer_store_dwordx4 %s, v%d, %s, s%d offen%s%s" % (vr(R + 16 * hh + 4 * j, 4), vOOF, sr(sO, 4), sO0 + j, " offset:128" if hh else "", stf)
    def lsum():
        return ["v_add_f32 v%d, v%d, v%d" % (vL, vL, vL2), "v_mov_b32 v%d, v%d" % (vTMP, vL)]
    def lfin():
        return ["v_permlane32_swap_b32 v%d, v%d" % (vTMP, vL), "v_add_f32 v%d, v%d, v%d" % (vL, vL, vTMP), "v_rcp_f32 v%d, v%d" % (vRI, vL)]
    def zero_o():
        for i in range(0, 64, 2): e("v_mov_b64 %s, 0" % vr(O + i, 2))
    def rd2(hh, j): return "ds_read_b128 %s, v%d offset:%d" % (vr(R + 16 * hh + 4 * j, 4), vSR, j * (8 * SP if o["w2"] else 1024))
    def wr2(db, p):
        w = VF + (0, 16, 8, 24)[db] + 4 * p; c = (db & 1) * 8 + 4 * p
        return ["ds_write2_b64 v%d, %s, %s offset0:%d offset1:%d" % (vSW, vr(w, 2), vr(w + 2, 2), c, c + 2)]
    def fix(hh, j):
        r = R + 16 * hh + 4 * j
        return ["v_swap_b32 v%d, v%d" % (r, r + 2), "v_swap_b32 v%d, v%d" % (r + 1, r + 3)] if (j & 1 and o["flip"] and not o["w2"]) else []
    def epilogue(fast):
        seq = []
        F = g.fs if fast else (lambda: [])
        va = lambda db, qd, pk_=True: blk(db, qd, pk_)[:-1]
        wr = lambda db, qd: [blk(db, qd)[-1]]
        W_ = lambda n: ["s_waitcnt lgkmcnt(%d)" % n]
        E = o["epi"]
        if o["direct"]:
            wb = lambda db: VF + (0, 16, 8, 24)[db]
            sw = lambda db: ["v_permlane16_swap_b32 v%d, v%d" % (wb(db) + k, wb(db) + 4 + k) for k in range(4)]
            sto = lambda db, hq: ["buffer_store_dwordx4 %s, v%d, %s, s%d offen offset:%d%s" % (vr(wb(db) + 4 * hq, 4), vOOF, sr(sO, 4), sO0 + 2 * hq, 64 * db, stf)]
            allv = lambda db, pk_=True: sum((va(db, qd, pk_) for qd in range(4)), [])
            if fast:
                v0_ = allv(0, False)
                seq += lsum() + dq.need("V5") + [pv(2)] + lfin()
                seq += ["v_cmp_gt_f32 vcc, s%d, v%d" % (sHI, vL)] + dq.need("V13") + [pv(6)]
                seq += ["v_cmp_lt_f32 %s, s%d, v%d" % (sr(sT0, 2), sLO, vL)] + v0_[:4] + dq.need("V15") + [pv(3)]
                seq += ["s_and_b64 vcc, vcc, %s" % sr(sT0, 2), "s_cmp_eq_u64 vcc, -1"] + v0_[4:10] + [pv(7)]
                seq += ["s_cselect_b32 s%d, 0, s%d" % (sT0, sBIT), "s_or_b32 s%d, s%d, s%d" % (sBAD, sBAD, sT0)] + v0_[10:]
            else:
                seq += lsum() + ["s_nop 1"] + lfin() + ["s_nop 0"] + allv(0)
            for db in range(4):
                nx = allv(db + 1) if db < 3 else ["s_nop 0"] * 2
                seq += nx[:2] + sw(db) + sto(db, 0) + nx[2:10] + sto(db, 1) + nx[10:]
            for x in seq: e(x)
            return
        if o["w2"]:
            v2 = lambda db, p, pk_=True: va(db, 2 * p, pk_) + va(db, 2 * p + 1, pk_)
            if fast:
                seq += lsum() + dq.need("V5") + [pv(2)] + lfin()
                seq += ["v_cmp_gt_f32 vcc, s%d, v%d" % (sHI, vL)] + dq.need("V13") + [pv(6)]
                seq += ["v_cmp_lt_f32 %s, s%d, v%d" % (sr(sT0, 2), sLO, vL)] + va(0, 0, False)[:4] + dq.need("V15") + [pv(3)]
                seq += ["s_and_b64 vcc, vcc, %s" % sr(sT0, 2), "s_cmp_eq_u64 vcc, -1"] + va(0, 0, False)[4:] + va(0, 1, False)[:4] + [pv(7)]
                seq += ["s_cselect_b32 s%d, 0, s%d" % (sT0, sBIT), "s_or_b32 s%d, s%d, s%d" % (sBAD, sBAD, sT0)] + va(0, 1, False)[4:] + va(0, 2, False)[:4] + wr2(0, 0)
                seq += va(0, 2, False)[4:] + va(0, 3) + wr2(0, 1)
            else:
                seq += lsum() + ["s_nop 1"] + lfin() + ["s_nop 0"] + v2(0, 0) + wr2(0, 0) + v2(0, 1) + wr2(0, 1)
            seq += v2(1, 0) + wr2(1, 0) + v2(1, 1) + wr2(1, 1) + [rd2(0, j) for j in range(4)]
            if E == 0:
                seq += v2(2, 0) + wr2(2, 0) + W_(4) + [st(0, 0)] + va(2, 2) + W_(3) + [st(0, 1)] + va(2, 3) + wr2(2, 1) + W_(3) + [st(0, 2)] + v2(3, 0) + wr2(3, 0) + W_(3) + [st(0, 3)]
                seq += v2(3, 1) + wr2(3, 1)
            elif E == 1:
                seq += v2(2, 0) + W_(3) + [st(0, 0)] + v2(2, 1) + W_(2) + [st(0, 1)] + v2(3, 0) + W_(1) + [st(0, 2)] + v2(3, 1) + W_(0) + [st(0, 3)]
                seq += wr2(2, 0) + wr2(2, 1) + wr2(3, 0) + wr2(3, 1)
            elif E == 2:
                seq += v2(2, 0) + wr2(2, 0) + v2(2, 1) + wr2(2, 1) + v2(3, 0) + wr2(3, 0) + v2(3, 1) + wr2(3, 1)
            seq += [rd2(1, j) for j in range(4)]
            if E == 2:
                seq += W_(8) + [st(0, j) for j in range(4)]
            for j in range(4): seq += W_(3 - j) + [st(1, j)]
            for x in seq: e(x)
            return
        if fast and o["tail"] == 2:
            def wq(db, qd): dq.add("w"); return wr(db, qd)
            seq += F() + lsum() + dq.need("V5") + [pv(2)] + lfin()
            seq += ["v_cmp_gt_f32 vcc, s%d, v%d" % (sHI, vL), "v_cmp_lt_f32 %s, s%d, v%d" % (sr(sT0, 2), sLO, vL)] + dq.need("V13") + [pv(6)]
            seq += ["s_and_b64 vcc, vcc, %s" % sr(sT0, 2), "s_cmp_eq_u64 vcc, -1"] + va(0, 0, False) + dq.need("V15") + [pv(3)]
            seq += wr(0, 0) + ["s_cselect_b32 s%d, 0, s%d" % (sT0, sBIT)] + va(0, 1, False) + [pv(7)]
            seq += wr(0, 1) + ["s_or_b32 s%d, s%d, s%d" % (sBAD, sBAD, sT0)] + va(0, 2, False) + va(0, 3, False)
        elif fast:
            seq += F() + lsum() + ["s_waitcnt lgkmcnt(0)", pv(2)] + lfin()
            seq += ["v_cmp_gt_f32 vcc, s%d, v%d" % (sHI, vL), "v_cmp_lt_f32 %s, s%d, v%d" % (sr(sT0, 2), sLO, vL), pv(6)]
            seq += ["s_and_b64 vcc, vcc, %s" % sr(sT0, 2), "s_cmp_eq_u64 vcc, -1"] + va(0, 0, False) + [pv(3)]
            seq += wr(0, 0) + ["s_cselect_b32 s%d, 0, s%d" % (sT0, sBIT)] + va(0, 1, False) + [pv(7)]
            seq += wr(0, 1) + ["s_or_b32 s%d, s%d, s%d" % (sBAD, sBAD, sT0)] + va(0, 2, False) + va(0, 3, False)
        else:
            seq += lsum() + ["s_nop 1"] + lfin() + ["s_nop 0"] + blk(0, 0) + blk(0, 1) + va(0, 2) + va(0, 3)
        seq += F()
        allv = lambda db: sum((va(db, qd) for qd in range(4)), [])
        allw = lambda db: sum((wr(db, qd) for qd in range(4)), [])
        if E == 0:
            w5 = W_(5)
            seq += wr(0, 2) + wr(0, 3)
            for qd in range(4): seq += blk(1, qd)
            seq += [rd2(0, j) for j in range(4)] + F()
            seq += blk(2, 0) + blk(2, 1) + w5 + [st(0, 0)] + blk(2, 2) + w5 + fix(0, 1) + [st(0, 1)] + blk(2, 3) + w5 + [st(0, 2)] + blk(3, 0) + w5 + fix(0, 3) + [st(0, 3)] + F()
            seq += blk(3, 1) + blk(3, 2) + blk(3, 3) + [rd2(1, j) for j in range(4)] + F()
        elif E == 4:
            seq += wr(0, 2) + wr(0, 3) + allv(1) + allw(1) + [rd2(0, j) for j in range(4)] + allv(2) + allw(2)
            seq += W_(4) + fix(0, 1) + fix(0, 3) + [st(0, j) for j in range(4)] + allv(3) + allw(3) + [rd2(1, j) for j in range(4)]
        elif E == 5:
            seq += wr(0, 2) + wr(0, 3) + allv(1) + allw(1) + [rd2(0, j) for j in range(4)] + allv(2) + allv(3)
            seq += W_(0) + fix(0, 1) + fix(0, 3) + [st(0, 0)] + allw(2) + [st(0, 1)] + allw(3) + [st(0, 2)] + [rd2(1, j) for j in range(4)] + [st(0, 3)]
        elif E == 6:
            seq += wr(0, 2) + wr(0, 3) + allv(1) + allw(1) + [rd2(0, j) for j in range(4)] + allv(2)
            seq += W_(0) + [st(0, 0)] + fix(0, 1) + fix(0, 3) + va(3, 0) + va(3, 1) + [st(0, 1)] + va(3, 2) + va(3, 3) + [st(0, 2)] + allw(2) + [st(0, 3)] + allw(3) + [rd2(1, j) for j in range(4)]
        elif E == 1:
            seq += wr(0, 2) + wr(0, 3) + allv(1) + allw(1) + [rd2(0, j) for j in range(4)] + F()
            seq += allv(2) + allw(2)
            for j in range(4): seq += W_(7 - j) + fix(0, j) + [st(0, j)] + va(3, j)
            seq += F() + allw(3) + [rd2(1, j) for j in range(4)] + F()
        elif E == 2:
            seq += allv(1) + wr(0, 2) + wr(0, 3) + allw(1) + [rd2(0, j) for j in range(4)] + allv(2) + allv(3)
            for j in range(4): seq += W_(3 - j) + fix(0, j) + [st(0, j)]
            seq += allw(2) + allw(3) + [rd2(1, j) for j in range(4)]
        elif E == 3:
            seq += allv(1) + wr(0, 2) + wr(0, 3) + allw(1) + [rd2(0, j) for j in range(4)] + allv(2)
            seq += W_(3) + [st(0, 0)] + va(3, 0) + W_(2) + fix(0, 1) + [st(0, 1)] + va(3, 1) + W_(1) + [st(0, 2)] + va(3, 2) + W_(0) + fix(0, 3) + [st(0, 3)] + va(3, 3)
            seq += allw(2) + allw(3) + [rd2(1, j) for j in range(4)]
        for j in (0, 2, 1, 3) if E != 1 else range(4):
            pass
        for j in range(4): seq += W_(3 - j) + fix(1, j) + [st(1, j)]
        seq += F()
        for x in seq: e(x)
    g.lab("L_epi")
    epilogue(True)
    g.fs_flush()
    g.fs_flush(5)
    e("s_cmp_eq_u32 s%d, 0" % sR1)
    e("s_cbranch_scc1 L_cdone")
    next_round()
    e("s_mov_b32 s%d, 2" % sBIT)
    e("s_branch L_cround")
    g.lab("L_cdone")
    g.stamp()
    e("s_barrier")
    e("s_cmp_lg_u32 s%d, 0" % sBAD)
    e("s_cbranch_scc1 L_slow")
    g.lab("L_fin")
    if ts:
        e("s_waitcnt vmcnt(0)")
        g.stamp()
        g.lab("L_tsout")
        e("s_lshl_b32 s%d, s2, 3" % sT0)
        e("s_add_u32 s%d, s%d, s%d" % (sT0, sT0, sW))
        e("s_lshl_b32 s%d, s%d, 9" % (sT0, sT0))
        e("s_add_u32 s16, s16, s%d" % sT0)
        e("s_addc_u32 s17, s17, 0")
        e("v_lshlrev_b32 v1, 3, v0")
        e("global_store_dwordx2 v1, v[30:31], s[16:17]")
        if o["diag"] >= 0:
            e("s_cmp_ge_u32 s%d, 4" % sW); e("s_cbranch_scc1 L_end")
            e("s_cmp_lg_u32 s2, %d" % o["diagwg"]); e("s_cbranch_scc1 L_end")
            e("v_readlane_b32 s60, v31, 0")
            e("v_readlane_b32 s61, v31, %d" % o["diag"])
            e("s_nop 4")
            e("s_sub_u32 s61, s61, s60")
            e("s_mul_i32 s61, s61, 10")
            e("s_cmp_eq_u32 s2, %d" % o["diagwg"])
            e("s_cselect_b32 s61, s61, 0")
            e("s_cmp_eq_u32 s%d, %d" % (sW, o["diagwave"]))
            e("s_cselect_b32 s61, s61, 0")
            e("s_add_u32 s61, s61, 5000")
            g.lab("L_spin")
            e("s_sleep 8")
            e("s_memrealtime s[52:53]")
            e("s_waitcnt lgkmcnt(0)")
            e("s_sub_u32 s52, s52, s60")
            e("s_cmp_lt_u32 s52, s61")
            e("s_cbranch_scc1 L_spin")
    g.lab("L_end")
    e("s_endpgm")
    g.lab("L_slow")
    g.c("================= fallback: true running max, this wave alone, private LDS area =================")
    srd(sQ, 4); srd(sK, 6); srd(sV, 8)
    dma_lane_offset(vDMA, vT, vT + 1)
    e("s_mul_i32 s%d, s%d, %d" % (sG, sW, GRP))
    e("s_lshr_b32 s%d, s%d, 1" % (sT0, sW))
    e("s_mul_i32 s%d, s%d, s%d" % (sT0, sT0, sD))
    e("s_mul_i32 s%d, s%d, %d" % (sT1, sT0, 2 * GRP))
    e("s_sub_i32 s%d, s%d, s%d" % (sT0, sG, sT1))
    e("v_add_u32 v%d, s%d, v%d" % (vKA, sT0, vKB))
    e("v_add_u32 v%d, s%d, v%d" % (vVA, sT0, vVB))
    e("s_mov_b32 s%d, s%d" % (sR0, sRS0))
    e("s_bitcmp1_b32 s%d, 0" % sBAD)
    e("s_cbranch_scc1 L_sround")
    g.lab("L_snext")
    e("s_bitcmp1_b32 s%d, 1" % sBAD)
    e("s_cbranch_scc0 L_fin")
    e("s_mov_b32 s%d, 0" % sBAD)
    e("s_mov_b32 s%d, s%d" % (sR0, sRS1))
    g.lab("L_sround")
    decode_round()
    for x in (sQ, sK, sV): e("s_mov_b32 s%d, s%d" % (x + 2, sEND))
    round_setup()
    for x in setup_valu(): e(x)
    def sload(srd_, soff, blkno):
        for p in range(8):
            e("s_add_u32 s%d, s%d, %d" % (sT0, sG, blkno * BLK + p * PIECE))
            e("s_mov_b32 m0, s%d" % sT0)
            e("s_add_u32 s%d, s%d, %d" % (sT1, soff, p * 16384))
            e("buffer_load_dwordx4 v%d, %s, s%d offen lds" % (vDMA, sr(srd_, 4), sT1))
    sload(sQ, sO0, 0)
    e("s_waitcnt vmcnt(0)")
    for s_ in range(8): e(kread(Q, s_, 0))
    e("s_waitcnt lgkmcnt(0)")
    for s_ in range(8): qscale(s_)
    e("v_mov_b32 v%d, 0xf149f2ca" % vM)
    for i in range(0, 16, 2): e("v_mov_b64 %s, 0" % vr(S[1] + i, 2))
    e("s_lshl_b32 s%d, s%d, 12" % (sGOFF, sK0))
    e("s_mov_b32 s%d, s%d" % (sCNT, sN))
    g.lab("L_stile")
    sload(sK, sGOFF, 0); sload(sV, sGOFF, 1)
    e("s_cmp_lg_u32 s%d, 1" % sCNT)
    e("s_cbranch_scc1 L_snomask")
    for rr in range(16): e("v_cndmask_b32 v%d, v%d, 0, %s" % (S[1] + rr, vNINF, sr(sMASK + 2 * rr, 2)))
    g.lab("L_snomask")
    e("s_waitcnt vmcnt(0)")
    for s_ in range(8): e(kread(KF, s_, 0))
    for n in range(8): e(vread(n, BLK))
    e("s_waitcnt lgkmcnt(0)")
    for n in range(8, 16): e(vread(n, BLK))
    for s_ in range(8): e(qk(s_, 0, vr(S[1], 16)))
    e("s_nop 15")
    s0 = S[0]
    e("v_max_f32 v%d, v%d, v%d" % (vTMP, vM, s0))
    for i in range(1, 15, 2): e("v_max3_f32 v%d, v%d, v%d, v%d" % (vTMP, vTMP, s0 + i, s0 + i + 1))
    e("v_max_f32 v%d, v%d, v%d" % (vTMP, vTMP, s0 + 15))
    e("v_mov_b32 v%d, v%d" % (vTMP2, vTMP))
    e("s_nop 1")
    e("v_permlane32_swap_b32 v%d, v%d" % (vTMP, vTMP2))
    e("v_max_f32 v%d, v%d, v%d" % (vTMP, vTMP, vTMP2))
    e("v_sub_f32 v%d, v%d, v%d" % (vRI, vM, vTMP))
    e("v_exp_f32 v%d, v%d" % (vRI, vRI))
    e("v_mov_b32 v%d, v%d" % (vM, vTMP))
    for i in range(16): e("v_sub_f32 v%d, v%d, v%d" % (s0 + i, s0 + i, vM))
    for i in range(16): e("v_exp_f32 v%d, v%d" % (s0 + i, s0 + i))
    for i in range(0, 64, 2): e("v_pk_mul_f32 %s, %s, %s op_sel_hi:[1,0]" % (vr(O + i, 2), vr(O + i, 2), vr(vRI, 2)))
    e("v_pk_mul_f32 %s, %s, %s op_sel_hi:[1,0]" % (vr(vL, 2), vr(vL, 2), vr(vRI, 2)))
    for i in range(16): e(op("Ac%d" % i, 0)[0])
    for i in range(8): e(op("Cc%d" % i, 0)[0])
    e("s_waitcnt lgkmcnt(0)")
    e("s_nop 0")
    for n in range(8): e(pv(n))
    e("s_add_u32 s%d, s%d, %d" % (sGOFF, sGOFF, 32 * 4096))
    e("s_sub_u32 s%d, s%d, 1" % (sCNT, sCNT))
    e("s_cmp_lg_u32 s%d, 0" % sCNT)
    e("s_nop 15")
    e("s_cbranch_scc1 L_stile")
    epilogue(False)
    e("s_branch L_snext")
    g.L.append(".p2align 6")
    g.lab("L_table")
    HO = {0: (0, 1, 2, 4, 6), 1: (0, 7, 1, 2, 3), 2: (0, 0, 0, 0, 0)}[o["hmap"]]
    for wg in range(256):
        x, j = wg & 7, wg >> 3; slot, hb = j >> 1, j & 1; dual = 0; r1 = 0
        if slot < 4: seg, c, off = 7, slot, HO[0]
        elif slot == 4: seg, c, off, r1 = 4, 0, HO[1], pk(6, 0)
        elif slot == 5: seg, c, off, r1 = 2, 0, HO[1], pk(1, 0)
        elif j == 12: seg, c, off, r1, dual, hb = 4, 1, HO[1], pk(2, 1), 1, 0
        elif j == 13: seg, c, off, dual, hb = 5, 3, HO[2], 1, 0
        elif slot < 10: seg, c, off = 5, slot - 7, HO[2]
        elif slot < 13: seg, c, off = 0, slot - 10, HO[3]
        else: seg, c, off = 3, slot - 13, HO[4]
        k0, L_ = SEGS[seg]; q0 = k0 + 128 * c; head = ((2 * x + 2 * off) & 15) + hb
        keep = 1 if (o["ntlo"] <= j < o["nthi"] and not dual) else 0
        assert keep or dual or not r1
        g.L.append("    .long %d, %d, %d, %d, %d, %d, 0x%x, 0x%x" % (q0 * 4096, q0 * 4096 + (256 if dual else 64 * 4096), k0 * 4096, (k0 + L_) * 4096 - 3584, head * 256,
                                                               ((L_ + 31) >> 5) | dual << 8 | keep << 9, pk(seg, c), r1))
    g.L.append(KD)
    return "\n".join(g.L) + "\n"

if __name__ == "__main__":
    out = sys.argv[1]
    opts = {}
    for a in sys.argv[2:]:
        k, v = a.split("="); opts[k] = v if "," in v else int(v)
    open(out, "w").write(gen(**opts))
```

```python
import sys, struct

KN = "standalone__ragged_sequences_packed_sequences__ragged_kernel"
PIECE, BLK, PAIR, GRP = 1056, 8448, 16896, 33792
RING = 8 * PAIR
STG = RING
SP = 272
LDS = RING + 4 * 16 * SP
CSCALE = (128 ** -0.5) * 1.4426950408889634

SEGS = [(0, 370), (370, 108), (478, 143), (621, 363), (984, 165), (1149, 432), (1581, 100), (1681, 465)]
def pk(seg, c):
    k0, L = SEGS[seg]
    return k0 | (L << 12) | (c << 21)
def f2u(x): return struct.unpack("<I", struct.pack("<f", x))[0]

DEF = dict(ts=0, prio=1, diag=-1, diagwg=0, diagwave=0, stf=",sc0,sc1", lead=4, leadk=4, keepf="", ntf=",nt", dualf=",nt",
           forcebad=0, ramp=2, ev=4, gentle=3, hyb=1, g432=2, cpf=2, cpfn=10, leadg=4, gseg=9, nox=1, qsplit=0, q2dma=0, win=13, stf1=None, dsord=1, swapk=1, qearly=2, qpre=2, qmid=2, qprio=0, fuse=1, diagc=-1, xmap=0, shortx="0,", idlex=1, nt2=1, pairbar=0, swap=1, rot4=0, keepslow=0, pv_=3, cprio=1, tlb=0, late=0, latemask=0xffff, sched=6, t1pos=9, hmap=0, t0pos=2, ahead=6, tail=0)

class G:
    def __init__(s, **o):
        s.o = dict(DEF); s.o.update(o); s.L = []
    def e(s, x): s.L.append("    " + x)
    def c(s, x): s.L.append("    ; " + x)
    def lab(s, x): s.L.append(x + ":")
    def stamp_issue(s):
        if s.o["ts"]: s.e("s_memtime s[52:53]"); s.e("s_memrealtime s[54:55]")
    def stamp_write(s):
        if s.o["ts"]:
            s.e("s_mov_b32 m0, s56"); s.e("s_add_u32 s56, s56, 1"); s.e("v_writelane_b32 v30, s52, m0"); s.e("v_writelane_b32 v31, s54, m0")
    def stamp(s):
        if s.o["ts"]: s.stamp_issue(); s.e("s_waitcnt lgkmcnt(0)"); s.stamp_write()

class DSQ:
    def __init__(s, q=()): s.q = list(q)
    def add(s, tag): s.q.append(tag)
    def need(s, tag):
        if tag not in s.q: return []
        i = s.q.index(tag); n = len(s.q) - 1 - i
        del s.q[:i + 1]
        assert n <= 15
        return ["s_waitcnt lgkmcnt(%d)" % n]

O = 192; S = [160, 176]; vLS = 144; vONE = 152; vW = 156; Q = 112; KF = 80; VF = 48; P = 40
vKA, vVA, vKB, vVB, vQA, vTH, vOOF, vOOF1, vSW, vSW2, vSR, vTMP, vTMP2, vM, vRI, vDMA, vBASE, vNINF = 1, 2, 3, 4, 5, 6, 7, 8, 9, 10, 11, 12, 13, 14, 16, 18, 19, 20
vG0, vG1 = 28, 29
vT = 32
sQ, sK, sV, sO = 20, 24, 28, 32
sW, sH = 18, 19
sR0, sR1, sD = 36, 37, 38
sK0, sL, sQ0, sN, sEND = 39, 40, 41, 42, 43
sG, sGOFF, sCNT, sT0, sT1, sC, sGM = 44, 45, 46, 48, 49, 50, 51
sQB, sBAD, sBIT, sO0, sRS0, sRS1, sHI, sLO = 57, 58, 59, 60, 96, 97, 98, 99
sLDS, sWRAP, sSA, sSB, sWB, sSA2, sSB2, sPC, sQL = 44, 45, 46, 47, 50, 51, 57, 59, 68
sIX, sSWP, sM, sKB = 70, 71, 72, 73
sMASK = 64
sDM = 100
sTB = 84
sTK, sTE, sTH, sTN, sTR0, sTR1 = 86, 87, 88, 89, 90, 91

def vr(b, n=1): return "v%d" % b if n == 1 else "v[%d:%d]" % (b, b + n - 1)
def sr(b, n=1): return "s%d" % b if n == 1 else "s[%d:%d]" % (b, b + n - 1)
KD = """.section .rodata,"a"
.p2align 6
.amdhsa_kernel %s
  .amdhsa_next_free_vgpr 256
  .amdhsa_next_free_sgpr 102
  .amdhsa_accum_offset 256
  .amdhsa_group_segment_fixed_size 0
  .amdhsa_kernarg_size 56
  .amdhsa_user_sgpr_count 2
  .amdhsa_user_sgpr_kernarg_segment_ptr 1
  .amdhsa_system_sgpr_workgroup_id_x 1
.end_amdhsa_kernel""" % KN

def mf(d, a, b, c): return "v_mfma_f32_16x16x32_bf16 %s, %s, %s, %s" % (vr(d, 4), vr(a, 4), vr(b, 4), c if isinstance(c, str) else vr(c, 4))
def kread(n, off, a=vKA): return "ds_read_b128 %s, v%d offset:%d" % (vr(KF + 4 * n, 4), a, off + 512 * (n & 1) + 64 * (n >> 1))
def qread(qb, t, a): return "ds_read_b128 %s, v%d offset:%d" % (vr(Q + 16 * qb + 4 * t, 4), a, 512 * qb + 64 * t)
def vread(m, off): return "ds_read_b64_tr_b16 %s, v%d offset:%d" % (vr(VF + 2 * m, 2), vVA, off + 512 * (m & 1) + 32 * (m >> 1))
def qk(n, qb, buf, c0=None):
    t, kb = n >> 1, n & 1; d = S[buf] + 8 * qb + 4 * kb
    return mf(d, KF + 4 * n, Q + 16 * qb + 4 * t, d if t else ("0" if c0 is None else c0 + 4 * kb))
def pv(qb, db): return mf(O + 32 * qb + 4 * db, VF + 4 * db, P + 4 * qb, O + 32 * qb + 4 * db)
def rs(qb, a=vONE): return mf(vLS + 4 * qb, a, P + 4 * qb, vLS + 4 * qb)
VAR = [""]
def op(x, h):
    cur, nxt = h, 1 - h
    off = h * PAIR
    if x == "B": return [] if (VAR[0] == "p" and h == 1) else ["s_barrier"]
    if x == "_": return ["s_nop 0"]
    if x == "SUB": return ["s_sub_u32 s%d, s%d, 1" % (sCNT, sCNT)]
    if x == "BR": return ["s_cbranch_scc1 L_tail1"] if h == 0 else ["s_cbranch_scc0 L_h0" + VAR[0]]
    if x == "H1x": return ["s_addk_i32 s%d, 0" % sG]
    if x == "H2x": return ["s_nop 0"]
    if x == "H1": return ["s_add_u32 s%d, s%d, 1" % (sG, sG)] if not h else []
    if x == "H2": return ["s_and_b32 s%d, s%d, s%d" % (sG, sG, sGM)] if not h else []
    if x == "H3": return ["s_mul_i32 s%d, s%d, %d" % (sGOFF, sG, GRP)] if not h else []
    if x == "UV": return ["v_add_u32 v%d, s%d, v%d" % (vVA, sGOFF, vVB)] if h else []
    if x == "UK": return ["v_add_u32 v%d, s%d, v%d" % (vKA, sGOFF, vKB)] if h else []
    if x[0] == "M": return [pv(int(x[1]), int(x[2]))]
    if x[0] == "Y": return [rs(int(x[1]), vW)]
    if x[0] == "V": return [vread(int(x[1:]), off)]
    if x[0] == "K": return [kread(int(x[1:]), off + BLK)]
    b = S[cur] if x[1] == "c" else S[nxt]
    i = int(x[2:])
    if x[0] == "X": return ["v_exp_f32 v%d, v%d" % (b + i, b + i)]
    if x[0] == "C": return ["v_cvt_pk_bf16_f32 v%d, v%d, v%d" % (P + i, b + 2 * i, b + 2 * i + 1)]
    raise ValueError(x)
def parse(s): return [g.split() for g in s.strip().split("|")]
SCHED = {}
SCHED[1] = parse("""V0 V1 | Xc8 | V2 V3 | Xc9 | V4 V5 | Xc10 | V6 V7 | NK7 Xc11 | V8 V9 | K0 Cc4 | V10 V11 | K1 Cc5 | V12 V13 | Xc12 | V14 V15 | NV7 Xc13 |
 K2 UV | Xc14 | K3 Cc6 | NV15 Xc15 | K4 Cc7 | Xn0 | K5 | Xn1 | K6 Cn0 | Xn2 | K7 UK | B Xn3 | H1 Xn4 | H2 Xn5 | H3 Xn6 | SUB Xn7 | Cn1 Cn2 | NK3 Cn3 BR""")
SCHED[2] = parse("""V0 V1 | Xc8 | V2 V3 | Xc9 | V4 V5 | Xc10 | V6 V7 | NK7 Xc11 | V8 V9 | K0 Cc4 | V10 V11 | K1 Cc5 | V12 V13 | Xc12 | V14 V15 | NV7 Xc13 |
 K2 UV | Xc14 | K3 Cc6 | NV15 Xc15 | K4 Cc7 | Xn0 | K5 K6 | Xn1 | K7 Cn0 | Xn2 | B UK | H1 Xn3 | H2 Xn4 | H3 Xn5 | SUB Xn6 | NK3 Xn7 | Cn1 Cn2 | Cn3 BR""")
SCHED[3] = parse("""V0 V1 | Xc8 | V2 V3 | Xc9 | V4 V5 | Xc10 | V6 V7 | NK7 Xc11 | V8 V9 | Cc4 Cc5 | V10 V11 | Xc12 | V12 V13 | Xc13 | V14 V15 | NV7 Xc14 |
 K0 K1 | Xc15 | K2 Cc6 | NV15 Xn0 | K3 Cc7 | Xn1 | K4 UV | Xn2 | K5 Cn0 | Xn3 | K6 K7 | B Xn4 | H1 Xn5 | H2 Xn6 | H3 Xn7 | SUB Cn1 Cn2 | NK3 Cn3 UK | BR""")
SCHED[4] = parse("""V0 V1 | Xc8 | V2 V3 | Xc9 | V4 V5 | Xc10 | V6 V7 | NK7 Xc11 | V8 V9 | K0 Cc4 | V10 V11 | K1 Cc5 | V12 V13 | Xc12 | V14 V15 | NV7 Xc13 |
 K2 UV | Xc14 | K3 Cc6 | NV15 Xc15 | K4 Cc7 | Xn0 | K5 K6 | Xn1 | K7 Cn0 | H1 Xn2 | H2 Xn3 | H3 Xn4 | SUB Xn5 | NK3 Xn6 | Xn7 | Cn1 Cn2 | Cn3 UK | B BR""")
SCHED[5] = parse("""V0 V1 | Xc8 | V2 V3 | Xc9 | V4 V5 | Xc10 | V6 V7 | NK7 Xc11 | V8 V9 | Cc4 Cc5 | V10 V11 | Xc12 | V12 V13 | Xc13 | V14 V15 | NV7 Xc14 |
 K0 K1 | Xc15 | K2 Cc6 | NV15 Xn0 | K3 Cc7 | Xn1 | K4 K5 | Xn2 | K6 K7 | H1 Xn3 | H2 Xn4 | H3 Xn5 | SUB Xn6 | Xn7 | Cn0 Cn1 | Cn2 Cn3 | B | NK3 UV UK BR""")
SCHED[6] = parse("""V0 V1 | Xc8 | V2 V3 | Xc9 | V4 V5 | Xc10 | V6 V7 | NK7 Xc11 | V8 V9 | Cc4 Cc5 | V10 V11 | Xc12 | V12 V13 | Xc13 | V14 V15 | NV7 Xc14 |
 K0 K1 | Xc15 | K2 Cc6 | NV15 Xn0 | K3 Cc7 | Xn1 | K4 K5 | Xn2 | K6 K7 | B | H1 Xn3 | H2 Xn4 | H3 Xn5 | SUB Xn6 | Xn7 | Cn0 Cn1 | NK3 Cn2 Cn3 | UV UK BR""")
SCHED[7] = parse("""V0 V1 | NK7 Xc8 | V2 V3 | Xc9 | V4 V5 | Xc10 | V6 V7 | Xc11 | V8 V9 | Cc4 Cc5 | V10 V11 | Xc12 | V12 V13 | Xc13 | V14 V15 | NV15 Xc14 |
 K0 K1 | Xc15 | K2 Cc6 | Xn0 | K3 Cc7 | Xn1 | K4 UV | Xn2 | K5 Cn0 | Xn3 | K6 K7 | B Xn4 | H1 Xn5 | H2 Xn6 | H3 Xn7 | SUB Cn1 Cn2 | NK3 Cn3 UK | BR""")
SCHED[8] = parse("""V0 V1 | Xc8 | V2 V3 | Xc9 | V4 V5 | Xc10 | V6 V7 | NK7 Xc11 | V8 V9 | Cc4 Cc5 | V10 V11 | Xc12 | V12 V13 | Xc13 | V14 V15 | NV7 Xc14 |
 K0 UV | Xc15 | K1 Cc6 | NV15 Xn0 | K2 Cc7 | Xn1 | K3 K4 | Xn2 | K5 Cn0 | Xn3 | K6 K7 | SUB Xn4 | H1x Xn5 | H2x Xn6 | H3 Xn7 | Cn1 Cn2 | NK3 Cn3 UK | B BR""")
EARLY = "Xn0 Xn1 Xn2 Xn3 Cn0 Xn4 Xn5 Cn1 Xn6 Xn7 Cn2 _ Cn3".split()
LOOPQ = ["K4", "K5", "K6", "K7"]
ORD = [2]
def qk_order():
    if ORD[0] == 0: return [(n, qb) for n in range(8) for qb in range(2)]
    if ORD[0] == 1: return [(n, qb ^ (n & 1)) for n in range(8) for qb in range(2)]
    if ORD[0] == 2: return [(2 * t + kb, qb) for t in range(4) for qb in range(2) for kb in range(2)]
def loop_mfmas(h):
    ms = [qk(n, qb, 1 - h) for n, qb in qk_order()]
    for qb in range(2): ms += [pv(qb, db) for db in range(8)] + [rs(qb)]
    return ms
def loop_body(h, sched, hook=None):
    dq = DSQ(LOOPQ); out = []
    for n, (m, gl) in enumerate(zip(loop_mfmas(h), SCHED[sched])):
        out.append(m)
        if hook: out += hook(n)
        for x in gl:
            if x[0] == "N": out += dq.need(x[1:]); continue
            if x[0] in "VK": dq.add(x)
            out += op(x, h)
    assert dq.q == LOOPQ, dq.q
    return out
TAILS = {}
TAILS[0] = """V0 V1 V2 V3 V4 V5 Xc8 Xc9 Y0 V6 V7 NV1 M00 Xc10 NV3 M01 V8 V9 NV5 M02 Xc11 NV7 M03 V10 V11 NV9 M04 V12 V13 V14 V15 Xc12 Xc13 NV11 M05 Xc14 NV13 M06 Xc15 NV15 M07 Cc4 Cc5 Cc6 Cc7""".split()
TAILS[1] = """V0 V1 V2 V3 V4 V5 V6 V7 Xc8 Xc9 Xc10 Xc11 Y0 V8 V9 NV1 M00 V10 V11 NV3 M01 V12 V13 NV5 M02 V14 V15 NV7 M03 Xc12 NV9 M04 Xc13 NV11 M05 Xc14 NV13 M06 Xc15 NV15 M07 Cc4 Cc5 Cc6 Cc7""".split()
TAILS[3] = """V0 V1 V2 V3 Xc8 Xc9 Y0 V4 V5 NV1 M00 V6 V7 NV3 M01 Xc10 NV5 M02 V8 V9 NV7 M03 V10 V11 NV9 M04 V12 V13 NV11 M05 V14 V15 NV13 M06 Xc11 NV15 M07 Xc12 Xc13 Xc14 Xc15 Cc4 Cc5 Cc6 Cc7""".split()
TAILS[4] = """V0 V1 V2 V3 V4 V5 V6 V7 Xc8 Xc9 Xc10 Y0 V8 V9 NV3 M00 V10 V11 M01 V12 V13 NV7 M02 V14 V15 M03 Xc11 NV11 M04 Xc12 M05 Xc13 NV15 M06 Xc14 M07 Xc15 Cc4 Cc5 Cc6 Cc7""".split()
TAILS[5] = """V0 V1 V2 V3 V4 V5 V6 V7 V8 V9 V10 V11 Y0 Xc8 NV3 M00 V12 V13 M01 V14 V15 NV7 M02 Xc9 M03 Xc10 NV11 M04 Xc11 M05 Xc12 NV15 M06 Xc13 M07 Xc14 Xc15 Cc4 Cc5 Cc6 Cc7""".split()
TAILS[2] = """V0 V1 V2 V3 V4 V5 V6 V7 V8 V9 V10 V11 V12 V13 V14 Xc8 Y0 V15 Cc99 NV1 M00 Xc9 M01n3 Xc10 M02n5 Xc11 M03n7 Xc12 M04n9 Xc13 M05n11 Xc14 M06n13 Xc15 M07n15 Cc4 Cc5 Cc6 Cc7""".split()

def gen(**opts):
    g = G(**opts); o = g.o; e = g.e
    ts = o["ts"]
    stf = o["stf"].replace(",", " ")
    g.L.append("""; Ragged (block-diagonal) attention, T=2146 H=16 D=128, bf16 in/out.
; kernarg: q,k,v,seg_ids,out,debug,ws.  The segment boundaries (0,370,478,621,984,1149,1581,1681,2146) are constants of the
; problem; the per-workgroup jobs derived from them sit in L_table.
; One workgroup per CU, one or two jobs each (a job = up to 128 query rows of one segment and head, or 64 rows of two heads).
;   waves 0-3 compute 32 query rows each on MFMA 16x16x32: S^T = K Q^T, O^T += V^T P^T, row sums += 1^T P^T,
;             software-pipelined over 32-key tiles (one barrier per tile);
;   waves 4-7 stream K/V tiles HBM -> LDS ring (8 slots of V_i | K_i+2) with LDS-DMA and stage Q * log2(e)/sqrt(D).
; Rows past a segment end read as zero through the buffer bounds; their keys get weight 0 in the last tile's row sum.
; softmax: p = exp2(s - ref) with ref = 0.  Every row sum is range-checked (2^-60 .. 2^60); a wave that finds one outside
; recomputes its rows with the true running max (L_slow).
; @launch grid=(256,1,1) block=(512,1,1) lds=%d
.amdgcn_target "amdgcn-amd-amdhsa--gfx950"
.text
.globl %s
.p2align 8
.type %s,@function
%s:""" % (LDS, KN, KN, KN))
    if ts:
        e("s_mov_b32 s56, 0"); e("v_mov_b32 v30, 0"); e("v_mov_b32 v31, 0"); g.stamp()
    e("s_load_dwordx8 s[4:11], s[0:1], 0")
    if o["cpf"] == 2:
        e("s_getpc_b64 s[14:15]")
        g.lab("L_pc")
        g.c("pull this kernel's code into the XCD's L2 at once (2 KB per workgroup, result unused): later instruction misses stay on chip")
        e("s_lshr_b32 s3, s2, 3")
        e("s_min_u32 s3, s3, %d" % o["cpfn"])
        e("s_lshl_b32 s3, s3, 11")
        e("v_lshl_add_u32 v22, v0, 2, s3")
        e("global_load_dword v21, v22, s[14:15]")
        e("s_lshr_b32 s3, s2, 8")
        e("s_cbranch_scc1 L_end")
    else:
        e("s_lshr_b32 s3, s2, 8")
        e("s_cbranch_scc1 L_end")
        e("s_getpc_b64 s[14:15]")
        g.lab("L_pc")
    e("s_lshl_b32 s3, s2, 5")
    e("s_add_u32 s3, s3, L_table-L_pc")
    e("s_load_dwordx8 %s, s[14:15], s3" % sr(sTB, 8))
    e("s_load_dwordx2 s[12:13], s[0:1], 32")
    if ts: e("s_load_dwordx2 s[16:17], s[0:1], 48")
    e("v_lshrrev_b32 v1, 6, v0")
    e("v_and_b32 v0, 63, v0")
    e("v_readfirstlane_b32 s%d, v1" % sW)
    g.c("tile pieces: lane i -> row i>>4 (pitch 4096), 16-byte chunk (i&15) ^ ((i>>4)&1); wave w owns pieces 2(w&3), 2(w&3)+1 of a 32-row block")
    e("v_lshrrev_b32 v2, 4, v0")
    e("v_and_b32 v3, 1, v2")
    e("v_and_b32 v4, 15, v0")
    e("v_xor_b32 v4, v4, v3")
    e("v_lshlrev_b32 v4, 4, v4")
    e("v_and_b32 v1, 3, v1")
    e("v_lshl_add_u32 v2, v1, 3, v2")
    e("v_lshl_add_u32 v%d, v2, 12, v4" % vG0)
    e("v_add_u32 v%d, 16384, v%d" % (vG1, vG0))
    e("s_mov_b32 s%d, 0x20000" % (sQ + 3))
    e("s_cmp_lt_u32 s%d, 4" % sW)
    e("s_waitcnt lgkmcnt(0)")
    e("s_cselect_b32 s%d, s%d, s%d" % (sT0, sTB + 1, sTB))
    e("s_add_u32 s%d, s4, s%d" % (sQ, sTH))
    e("s_addc_u32 s%d, s5, 0" % (sQ + 1))
    e("s_mov_b32 s%d, s%d" % (sQ + 2, sTE))
    e("s_add_u32 s%d, s%d, %d" % (sT1, sT0, 32 * 4096))
    if o["late"]:
        e("s_bitcmp1_b32 s%d, 10" % sTN)
        e("s_cbranch_scc1 L_lateq")
    g.c("first round: every wave fetches four pieces of Q (loaders: blocks 0,1; compute waves: blocks 2,3 / second head)")
    for n in range(4):
        e("buffer_load_dwordx4 %s, v%d, %s, s%d offen nt" % (vr(Q + 4 * n, 4), vG1 if n & 1 else vG0, sr(sQ, 4), sT1 if n >> 1 else sT0))
    if o["late"]: g.lab("L_lateq")
    e("s_cmp_lt_u32 s%d, 4" % sW)
    e("s_cbranch_scc1 L_cons")

    def decode_round():
        e("s_and_b32 s%d, s%d, 0xfff" % (sK0, sR0))
        e("s_bfe_u32 s%d, s%d, 0x9000c" % (sL, sR0))
        e("s_bfe_u32 s%d, s%d, 0x20015" % (sQ0, sR0))
        e("s_lshl_b32 s%d, s%d, 7" % (sQ0, sQ0))
        e("s_add_u32 s%d, s%d, s%d" % (sQ0, sQ0, sK0))
        e("s_add_u32 s%d, s%d, 31" % (sN, sL))
        e("s_lshr_b32 s%d, s%d, 5" % (sN, sN))
        e("s_add_u32 s%d, s%d, s%d" % (sEND, sK0, sL))
        e("s_lshl_b32 s%d, s%d, 12" % (sEND, sEND))
        e("s_sub_u32 s%d, s%d, 3584" % (sEND, sEND))
    def next_round():
        e("s_mov_b32 s%d, s%d" % (sR0, sR1))
        e("s_mov_b32 s%d, 0" % sR1)
        decode_round()
    def srd(d, p):
        e("s_add_u32 s%d, s%d, s%d" % (d, p, sH))
        e("s_addc_u32 s%d, s%d, 0" % (d + 1, p + 1))
        e("s_mov_b32 s%d, 0x20000" % (d + 3))
    def scale4(r0, t0, pkc=None, sc=None):
        for i in range(4):
            r = r0 + i; tt = t0 + 2 * i
            e("v_lshlrev_b32 v%d, 16, v%d" % (tt, r))
            e("v_and_b32 v%d, 0xffff0000, v%d" % (tt + 1, r))
            if pkc: e("v_pk_mul_f32 %s, %s, %s" % (vr(tt, 2), vr(tt, 2), pkc))
            else: e("v_mul_f32 v%d, s%d, v%d" % (tt, sc, tt)); e("v_mul_f32 v%d, s%d, v%d" % (tt + 1, sc, tt + 1))
            e("v_cvt_pk_bf16_f32 v%d, v%d, v%d" % (r, tt, tt + 1))

    g.c("================= loader waves =================")
    if o["prio"]: e("s_setprio 3")
    e("s_add_u32 s%d, s6, s%d" % (sK, sTH))
    e("s_addc_u32 s%d, s7, 0" % (sK + 1))
    e("s_mov_b32 s%d, s%d" % (sK + 2, sTE))
    e("s_mov_b32 s%d, 0x20000" % (sK + 3))
    e("s_sub_u32 s%d, s%d, 4" % (sT0, sW))
    e("s_mul_i32 s%d, s%d, %d" % (sWB, sT0, 2 * PIECE))
    e("v_add_u32 v2, %d, v%d" % (16384 - PIECE, vG0))
    if o["swap"]:
        e("s_bfe_u32 s%d, s%d, 0x2000b" % (sSWP, sTN))
        e("s_lshl_b32 s%d, s%d, 17" % (sSA, sSWP))
        e("s_xor_b32 s%d, s%d, %d" % (sSB, sSA, 1 << 17))
        e("s_add_u32 s%d, s%d, s%d" % (sSA, sSA, sTK))
        e("s_add_u32 s%d, s%d, s%d" % (sSB, sSB, sTK))
    else:
        e("s_add_u32 s%d, s%d, %d" % (sSB, sTK, 32 * 4096))
        e("s_mov_b32 s%d, s%d" % (sSA, sTK))
    e("s_bitcmp1_b32 s%d, 8" % sTN)
    e("s_cbranch_scc1 L_pdual")
    e("s_bitcmp1_b32 s%d, 9" % sTN)
    e("s_cbranch_scc1 L_pkeep")
    if o["gentle"]:
        e("s_bitcmp1_b32 s%d, 15" % sTN)
        e("s_cbranch_scc1 L_pgen")
    if o["hyb"]:
        e("s_bitcmp1_b32 s%d, 16" % sTN)
        e("s_cbranch_scc1 L_ptwo")
    if o["late"]:
        e("s_bitcmp1_b32 s%d, 10" % sTN)
        e("s_cbranch_scc1 L_plate")

    def producer(dual, ntkv, sfx, multi, pairs=False):
        lead = 2 if dual else (o["leadk"] if sfx == "k" else (o["leadg"] if sfx == "g" else (2 if sfx == "h" else o["lead"])))
        if multi and not dual: assert lead == 4
        npos = 4 if dual else 8
        q = []; cnt = [0]
        pol = [ntkv]
        def mkroom():
            if o["win"] and len(q) >= o["win"]:
                e("s_waitcnt vmcnt(%d)" % (o["win"] - 1))
                gone.extend(q[:len(q) - o["win"] + 1]); del q[:len(q) - o["win"] + 1]
        gone = []
        def dma(srd_, soff, second):
            mkroom()
            e("buffer_load_dwordx4 v%d, %s, s%d offen%s%s lds" % (2 if second else vG0, sr(srd_, 4), soff, " offset:%d" % PIECE if second else "", pol[0].replace(",", " ")))
            q.append(cnt[0])
        def advance():
            e("s_cmp_eq_u32 s%d, s%d" % (sLDS, sWRAP))
            e("s_cselect_b32 s%d, s%d, s%d" % (sLDS, sWB, sLDS))
            cnt[0] += 1
            return cnt[0] - 1
        def issue(a, b):
            e("s_mov_b32 m0, s%d" % sLDS)
            e("s_add_u32 s%d, s%d, %d" % (sT0, sLDS, BLK))
            dma(a, sSA, 0); dma(a, sSA, 1)
            e("s_mov_b32 m0, s%d" % sT0)
            if dual:
                e("s_add_u32 s%d, s%d, %d" % (sT0, sLDS, 2 * GRP))
                dma(b, sSB, 0); dma(b, sSB, 1)
                e("s_mov_b32 m0, s%d" % sT0)
                e("s_add_u32 s%d, s%d, 256" % (sSA2, sSA))
                e("s_add_u32 s%d, s%d, %d" % (sT0, sLDS, 2 * GRP + BLK))
                dma(a, sSA2, 0); dma(a, sSA2, 1)
                e("s_mov_b32 m0, s%d" % sT0)
                e("s_add_u32 s%d, s%d, 256" % (sSB2, sSB))
                e("s_add_u32 s%d, s%d, %d" % (sLDS, sLDS, PAIR))
                dma(b, sSB2, 0); dma(b, sSB2, 1)
            else:
                e("s_add_u32 s%d, s%d, %d" % (sLDS, sLDS, PAIR))
                dma(b, sSB, 0); dma(b, sSB, 1)
            return advance()
        def issue_q(r0):
            e("s_mov_b32 s%d, s%d" % (sQL + (r0 == 80), sLDS))
            so = [sSA, sSB]
            if dual:
                e("s_add_u32 s%d, s%d, 256" % (sSA2, sSA)); e("s_add_u32 s%d, s%d, 256" % (sSB2, sSB)); so += [sSA2, sSB2]
            for n in range(2 * len(so)):
                e("buffer_load_dwordx4 %s, v%d, %s, s%d offen nt" % (vr(r0 + 4 * n, 4), vG1 if n & 1 else vG0, sr(sQ, 4), so[n >> 1])); q.append(cnt[0])
            e("s_add_u32 s%d, s%d, %d" % (sLDS, sLDS, PAIR))
            return advance()
        def finish_q(tag, r0, first=False, hook=None, pkok=False):
            e("v_add_u32 v41, s%d, v40" % (sQL + (r0 == 80)))
            if dual and not first: e("v_add_u32 v42, %d, v41" % (2 * GRP))
            for n in range(8 if dual and not first else 4):
                if hook:
                    for _ in range(hook.count(n)): elem("T")
                if tag in q:
                    i0 = q.index(tag)
                    e("s_waitcnt vmcnt(%d)" % (len(q) - 1 - i0))
                    del q[:i0 + 1]
                scale4(r0 + 4 * n, 44, vr(52, 2) if (first or pkok) else None, sPC)
                e("ds_write_b128 v%d, %s offset:%d" % (42 if n >= 4 else 41, vr(r0 + 4 * n, 4), (n & 1) * PIECE + ((n >> 1) & 1) * BLK))
        def elem(k):
            if k == "K":
                for x in (sQ, sK, sV): e("s_mov_b32 s%d, s%d" % (x + 2, sEND))
                e("s_lshl_b32 s%d, s%d, 12" % (sSA, sK0))
                e("s_add_u32 s%d, s%d, %d" % (sSB, sSA, 32 * 4096))
                return issue(sK, sK)
            elif k == "Q0":
                e("s_lshl_b32 s%d, s%d, 12" % (sSA, sQ0))
                e("s_add_u32 s%d, s%d, %d" % (sSB, sSA, 32 * 4096))
                return issue_q(64)
            elif k == "Q1":
                e("s_add_u32 s%d, s%d, %d" % (sSA, sSA, 64 * 4096))
                e("s_add_u32 s%d, s%d, %d" % (sSB, sSB, 64 * 4096))
                return issue_q(80)
            elif k == "T0" and o["swap"] and not dual:
                e("s_lshl_b32 s%d, s%d, 12" % (sKB, sK0)); e("s_mov_b32 s%d, 0" % sIX)
            elif k == "T0":
                e("s_lshl_b32 s%d, s%d, 12" % (sSA, sK0))
                e("s_add_u32 s%d, s%d, %d" % (sSB, sSA, 64 * 4096))
            elif o["swap"] and not dual:
                for dst, d in ((sSA, 0), (sSB, 2)):
                    e("s_add_u32 s%d, s%d, %d" % (dst, sIX, d))
                    e("s_cmp_lt_u32 s%d, s%d" % (dst, sM))
                    e("s_cselect_b32 s%d, s%d, 0" % (sT0, sSWP))
                    e("s_xor_b32 s%d, s%d, s%d" % (dst, dst, sT0))
                    e("s_lshl_b32 s%d, s%d, 17" % (dst, dst))
                    e("s_add_u32 s%d, s%d, s%d" % (dst, dst, sKB))
                e("s_add_u32 s%d, s%d, 1" % (sIX, sIX))
                return issue(sV, sK)
            else:
                r = issue(sV, sK)
                e("s_add_u32 s%d, s%d, %d" % (sSA, sSA, 32 * 4096))
                e("s_add_u32 s%d, s%d, %d" % (sSB, sSB, 32 * 4096))
                return r
        def wait(tag, bar):
            if tag in q:
                last = max(i for i, x in enumerate(q) if x == tag)
                e("s_waitcnt vmcnt(%d)" % (len(q) - 1 - last))
                del q[:last + 1]
            g.stamp()
            if bar: e("s_barrier")
        pro = ["K", "Q0"] if dual else ["K", "Q0", "Q1"]
        late = sfx == "b"
        if not late: tq = cnt[0]; q.extend([tq] * 4); cnt[0] += 1
        if dual: e("s_mov_b32 s%d, s%d" % (sLDS, sWB))
        else: e("s_add_u32 s%d, s%d, %d" % (sLDS, sWB, PAIR))
        e("s_add_u32 s%d, s%d, %d" % (sWRAP, sWB, npos * PAIR))
        tk = issue(sK, sK)
        if not late:
            e("s_mov_b32 s%d, s%d" % (sQL, sLDS))
            e("s_add_u32 s%d, s%d, %d" % (sLDS, sLDS, PAIR if dual else 2 * PAIR))
        e("s_mov_b32 s%d, s%d" % (sH, sTH))
        srd(sV, 8)
        e("s_mov_b32 s%d, s%d" % (sV + 2, sTE))
        e("s_add_u32 s%d, s%d, %d" % (sSB, sSA, 64 * 4096))
        e("s_and_b32 s%d, s%d, 255" % (sN, sTN))
        e("s_mov_b32 s%d, s%d" % (sR1, sTR1))
        if o["swap"] and not dual:
            e("s_mov_b32 s%d, s%d" % (sKB, sTK)); e("s_mov_b32 s%d, 0" % sIX)
            e("s_sub_u32 s%d, s%d, 1" % (sM, sN)); e("s_bitcmp1_b32 s%d, 13" % sTN); e("s_cselect_b32 s%d, -4, -2" % sT0); e("s_and_b32 s%d, s%d, s%d" % (sM, sM, sT0))
        e("v_lshlrev_b32 v40, 4, v0")
        e("s_mov_b32 s%d, 0x%08x" % (sPC, f2u(CSCALE)))
        e("v_mov_b32 v52, s%d" % sPC); e("v_mov_b32 v53, s%d" % sPC)
        if late:
            g.c("short jobs yield the start-up bandwidth: K first, Q once K has landed")
            e("s_mov_b32 s%d, s%d" % (sSA, sTB)); e("s_add_u32 s%d, s%d, %d" % (sSB, sSA, 32 * 4096))
            wait(tk, False)
            tq = issue_q(64)
            tq1 = elem("Q1")
            e("s_mov_b32 s%d, s%d" % (sSA, sTK)); e("s_add_u32 s%d, s%d, %d" % (sSB, sSA, 64 * 4096))
            finish_q(tq, 64, True, [2]); finish_q(tq1, 80, True)
            pos = [0]
        else:
          pos = [o["t0pos"]] + ([o["t1pos"]] if o["t1pos"] <= 4 and not dual else [])
          finish_q(tq, Q, True, pos)
          for _ in range(pos.count(4)): elem("T")
          wait(tk, False)
        e("s_waitcnt lgkmcnt(0)")
        e("s_barrier")
        issued = len(pos); b = 0
        if o["ramp"]:
            g.c("ramp: never keep the compute waves waiting behind a long run of loads")
            for _ in range(min(1 if (sfx in "gh" or (sfx == "p" and o["g432"])) else o["ramp"], lead - issued)): elem("T"); issued += 1
            while issued - b < lead:
                wait(cnt[0] - (issued - b), True); b += 1
                for _ in range(min(1 if ((sfx == "g" and b <= o["gentle"]) or (sfx == "p" and b <= o["g432"])) else 2, lead - (issued - b))): elem("T"); issued += 1
        else:
            for _ in range(lead - issued): elem("T")
            issued = lead
        assert issued <= (5 if multi else 11), issued
        if o["prio"]: e("s_setprio 0")
        e("s_sub_u32 s%d, s%d, %d" % (sT1, sN, issued))
        if pairs:
            assert issued == 5 and b == 1 and lead == 4
            g.c("two tiles per barrier: ceil((N-1)/2) barriers, the first four tiles after tile 0 are under way")
            e("s_lshr_b32 s%d, s%d, 1" % (sT1, sN))
            e("s_sub_u32 s%d, s%d, 2" % (sT1, sT1))
            g.lab("L_pt" + sfx)
            before = [x - cnt[0] for x in q]
            wait(cnt[0] - 3, True)
            elem("T"); elem("T")
            assert [x - cnt[0] for x in q] == before
            e("s_sub_u32 s%d, s%d, 1" % (sT1, sT1))
            e("s_cmp_lg_u32 s%d, 0" % sT1)
            e("s_cbranch_scc1 L_pt" + sfx)
            wait(cnt[0] - 3, True); wait(cnt[0] - 1, True)
            g.stamp()
            e("s_branch L_tsout" if ts else "s_endpgm")
            return
        def steady(lab, check0):
            g.lab("L_pt" + lab)
            if check0:
                e("s_cmp_eq_u32 s%d, 0" % sT1)
                e("s_cbranch_scc1 L_pe" + lab)
            before = [x - cnt[0] for x in q]
            wait(cnt[0] - lead, True)
            elem("T")
            e("s_sub_u32 s%d, s%d, 1" % (sT1, sT1))
            assert [x - cnt[0] for x in q] == before
            if check0: e("s_branch L_pt" + lab); g.lab("L_pe" + lab)
            else:
                e("s_cmp_lg_u32 s%d, 0" % sT1)
                e("s_cbranch_scc1 L_pt" + lab)
        steady(sfx, multi)
        if multi:
            e("s_cmp_eq_u32 s%d, 0" % sR1)
            e("s_cbranch_scc1 L_pd" + sfx)
            st0 = (list(q), cnt[0])
            sep = o["nt2"] and sfx == "k"
            if sep: pol[0] = o["ntf"]
            def change(skip):
                q[:] = st0[0]; cnt[0] = st0[1]
                seq = (["X"] if skip else []) + pro + ["T"] * lead
                proc = [True] * lead + ([False] if skip else []) + [False] * (len(pro) - 1) + [True]
                assert len(seq) == len(proc) or dual
                if o["q2dma"]:
                    acts = (["X"] if skip and not dual else []) + pro
                    nreal = lead
                    tags = [cnt[0] - lead + i for i in range(lead)]
                    room_t = 0 if dual and skip else lead - 1
                    acts += ["T"] * room_t
                    last_pro = None; started = False
                    for n, k in enumerate(acts):
                        wait(tags[n], n < nreal)
                        if k != "X" and not started: next_round(); started = True
                        if k == "X": tags.append(elem("T") if o["swap"] else issue(sV, sK))
                        elif k == "K":
                            if o["swap"] and not dual: e("s_mov_b32 s%d, 0" % sSWP)
                            tags.append(elem("K"))
                        elif k == "T": tags.append(elem("T"))
                        else:
                            if k == "Q0":
                                e("s_lshl_b32 s%d, s%d, 12" % (sSA, sQ0)); e("s_add_u32 s%d, s%d, %d" % (sSB, sSA, 32 * 4096))
                            else:
                                e("s_add_u32 s%d, s%d, %d" % (sSA, sSA, 64 * 4096)); e("s_add_u32 s%d, s%d, %d" % (sSB, sSB, 64 * 4096))
                            keep_ = pol[0]; pol[0] = ",nt"; last_pro = issue(sQ, sQ); pol[0] = keep_; tags.append(last_pro)
                            if k == pro[-1]:
                                elem("T0")
                                if dual and skip:
                                    e("s_add_u32 s%d, s%d, %d" % (sLDS, sLDS, PAIR))
                                    e("s_cmp_eq_u32 s%d, s%d" % (sLDS, sWRAP))
                                    e("s_cselect_b32 s%d, s%d, s%d" % (sLDS, sWB, sLDS))
                    for n in range(len(acts), nreal): wait(tags[n], True)
                    wait(last_pro, True)
                    for _ in range(lead - room_t): elem("T")
                elif o["qearly"]:
                    acts = (["Q0"] if dual else ["Q0", "Q1"]) + (["X"] if skip and not dual and not o["nox"] else []) + ["K"]
                    acts += ["T"] * (lead - len(acts))
                    old = [cnt[0] - lead + i for i in range(lead)]
                    qt = []; nt_ = 0
                    for n, k in enumerate(acts):
                        wait(old[n], True)
                        if n == 0:
                            next_round()
                            e("s_mov_b32 s%d, s%d" % (sQ + 2, sEND))
                            e("s_lshl_b32 s74, s%d, 12" % sQ0)
                            for i in range(1, 4): e("s_add_u32 s%d, s74, %d" % (74 + i, ((0, 131072, 256, 131328) if dual else (0, 131072, 262144, 393216))[i]))
                        if o["qsplit"] and not dual and n == 0:
                            for i in range(2):
                                e("s_add_u32 s%d, s%d, %d" % (sQL + i, sLDS, ((2 if skip else 1) + i) * PAIR))
                                e("s_sub_u32 s%d, s%d, %d" % (sT0, sQL + i, npos * PAIR))
                                e("s_cmp_ge_u32 s%d, s%d" % (sQL + i, sWRAP))
                                e("s_cselect_b32 s%d, s%d, s%d" % (sQL + i, sT0, sQL + i))
                        if o["qsplit"] and not dual and n == lead - 1: finish_q(qt[1], 80, pkok=False)
                        if k[0] == "Q":
                            qt.append(1000 + n)
                            for i in (range(8) if dual else range(4 * n, 4 * n + 4)):
                                mkroom()
                                e("buffer_load_dwordx4 %s, v%d, %s, s%d offen nt" % (vr(64 + 4 * i, 4), vG1 if i & 1 else vG0, sr(sQ, 4), 74 + (i >> 1))); q.append(qt[-1])
                        elif k == "X": elem("T") if o["swap"] and not dual else issue(sV, sK)
                        elif k == "K":
                            for x in (sK, sV): e("s_mov_b32 s%d, s%d" % (x + 2, sEND))
                            e("s_lshl_b32 s%d, s%d, 12" % (sSA, sK0))
                            e("s_add_u32 s%d, s%d, %d" % (sSB, sSA, 32 * 4096))
                            if skip and (dual or o["nox"]):
                                e("s_add_u32 s%d, s%d, %d" % (sLDS, sLDS, PAIR))
                                e("s_cmp_eq_u32 s%d, s%d" % (sLDS, sWRAP))
                                e("s_cselect_b32 s%d, s%d, s%d" % (sLDS, sWB, sLDS))
                            if o["swap"] and not dual: e("s_mov_b32 s%d, 0" % sSWP)
                            tk2 = issue(sK, sK); elem("T0")
                            for i in range(len(qt)):
                                if not (o["qsplit"] and not dual): e("s_mov_b32 s%d, s%d" % (sQL + i, sLDS))
                                e("s_add_u32 s%d, s%d, %d" % (sLDS, sLDS, PAIR))
                                e("s_cmp_eq_u32 s%d, s%d" % (sLDS, sWRAP))
                                e("s_cselect_b32 s%d, s%d, s%d" % (sLDS, sWB, sLDS))
                        else: elem("T"); nt_ += 1
                        if o["qsplit"] and not dual and n == lead - 2: finish_q(qt[0], 64, pkok=False)
                    room = 0 if dual and skip else lead - 1
                    pre = min(o["qpre"], room)
                    while nt_ < pre: elem("T"); nt_ += 1
                    if o["qprio"]: e("s_setprio %d" % o["qprio"])
                    if dual or not o["qsplit"]:
                        for i, tg in enumerate(qt): finish_q(tg, 64 + 16 * i, pkok=o["qearly"] == 2)
                    if o["qprio"]: e("s_setprio 0")
                    while nt_ < min(o["qmid"], room): elem("T"); nt_ += 1
                    wait(tk2, False)
                    e("s_waitcnt lgkmcnt(0)"); e("s_barrier")
                    while nt_ < lead: elem("T"); nt_ += 1
                else:
                    first_t = True
                    for n, (k, bar) in enumerate(zip(seq, proc)):
                        done = seq[n - lead] if n >= lead else "T"
                        if done in ("Q0", "Q1"):
                            finish_q(cnt[0] - lead, 64 if done == "Q0" else 80)
                            if bar: e("s_waitcnt lgkmcnt(0)"); g.stamp(); e("s_barrier")
                        else: wait(cnt[0] - lead, bar)
                        if k == "X" and o["swap"] and not dual: elem("T")
                        elif k == "X": issue(sV, sK)
                        elif k == "T":
                            if first_t: elem("T0"); first_t = False
                            elem("T")
                        else:
                            if k == "K": next_round()
                            elem(k)
                assert [x - cnt[0] for x in q] == [x - st0[1] for x in st0[0]]
                if sep: e("s_branch L_pd" + sfx)
                else:
                    e("s_sub_u32 s%d, s%d, %d" % (sT1, sN, lead))
                    e("s_branch L_pt" + sfx)
            if dual: assert o["qearly"] or not o["dsord"]; change(bool(o["dsord"]))
            else:
                e("s_bitcmp1_b32 s%d, 0" % sN)
                e("s_cbranch_scc1 L_pc1" + sfx)
                change(True)
                g.lab("L_pc1" + sfx)
                change(False)
        g.lab("L_pd" + sfx)
        for n in range(lead, 0, -1): wait(cnt[0] - n, True)
        g.stamp()
        e("s_branch L_tsout" if ts else "s_endpgm")
    producer(False, o["ntf"], "s", False, o["pairbar"])
    if o["gentle"]:
        g.lab("L_pgen")
        g.c("12-tile jobs have slack: keep only two tiles in flight at first and leave the bandwidth to the longer jobs")
        producer(False, o["ntf"], "g", False)
    if o["hyb"]:
        g.lab("L_ptwo")
        g.c("12-tile jobs on the faster memory channels: two tiles in flight throughout")
        producer(False, o["ntf"], "h", False)
    g.lab("L_pkp")
    producer(False, o["keepf"], "p", False, o["pairbar"])
    if o["late"]:
        g.lab("L_plate")
        producer(False, o["ntf"], "b", False)
    g.lab("L_pkeep")
    e("s_bitcmp1_b32 s%d, 14" % sTN)
    e("s_cbranch_scc1 L_pkp")
    producer(False, o["keepf"], "k", True)
    g.lab("L_pdual")
    producer(True, o["dualf"], "d", True)

    g.L.append(".p2align 6")
    g.lab("L_cons")
    g.c("================= compute waves =================")
    if o["cpf"] == 1:
        g.c("pull this kernel's code into the XCD's L2 early (1 KB per workgroup, result unused): later instruction misses stay on chip")
        e("s_lshr_b32 s%d, s2, 3" % sT0)
        e("s_sub_u32 s%d, s%d, 18" % (sT1, sT0))
        e("s_cselect_b32 s%d, s%d, s%d" % (sT0, sT0, sT1))
        e("s_lshl_b32 s%d, s%d, 2" % (sT0, sT0))
        e("s_add_u32 s%d, s%d, s%d" % (sT0, sT0, sW))
        e("s_lshl_b32 s%d, s%d, 8" % (sT0, sT0))
        e("v_lshl_add_u32 v22, v0, 2, s%d" % sT0)
        e("global_load_dword v21, v22, s[14:15]")
    if o["prio"]: e("s_setprio %d" % o["cprio"])
    e("s_mov_b32 s%d, s%d" % (sR0, sTR0)); e("s_mov_b32 s%d, s%d" % (sR1, sTR1)); e("s_mov_b32 s%d, s%d" % (sH, sTH))
    e("s_bfe_u32 s%d, s%d, 0x10008" % (sD, sTN))
    e("s_mov_b32 s%d, s%d" % (sDM, sD))
    decode_round()
    if o["tlb"]:
        g.c("first touch of the V / K / output pages this workgroup will use (one line each, result unused)")
        e("s_cmp_eq_u32 s%d, 0" % sW); e("s_cselect_b64 s[24:25], s[8:9], s[12:13]")
        e("s_cmp_eq_u32 s%d, 2" % sW); e("s_cselect_b64 s[24:25], s[6:7], s[24:25]")
        e("s_add_u32 s24, s24, s%d" % sH); e("s_addc_u32 s25, s25, 0"); e("s_mov_b32 s26, s%d" % sEND); e("s_mov_b32 s27, 0x20000")
        e("s_sub_u32 s%d, s%d, 512" % (sT0, sEND))
        e("v_mov_b32 v21, s%d" % sTK); e("v_mov_b32 v22, s%d" % sT0)
        e("s_mov_b64 exec, 1")
        e("buffer_load_dword v23, v21, s[24:27], 0 offen nt")
        e("buffer_load_dword v24, v22, s[24:27], 0 offen nt")
        e("s_mov_b64 exec, -1")
    t = vT
    g.c("K/Q fragment address: x = lane&15, g = lane>>4, s = x>>3, piece (x+4s)&7, row s, chunk g^s")
    e("v_lshrrev_b32 v%d, 4, v0" % t)
    e("v_bfe_u32 v%d, v0, 3, 1" % (t + 1))
    e("v_lshl_add_u32 v%d, v%d, 2, v0" % (t + 2, t + 1))
    e("v_and_b32 v%d, 7, v%d" % (t + 2, t + 2))
    e("v_mul_u32_u24 v%d, %d, v%d" % (t + 2, PIECE, t + 2))
    e("v_lshl_add_u32 v%d, v%d, 8, v%d" % (t + 2, t + 1, t + 2))
    e("v_xor_b32 v%d, v%d, v%d" % (t + 1, t + 1, t))
    e("v_lshl_add_u32 v%d, v%d, 4, v%d" % (vKB, t + 1, t + 2))
    g.c("V fragment address (transposing read): key x = lane>>2, s = lane>>5, 8-byte column lane&3")
    e("v_lshrrev_b32 v%d, 5, v0" % (t + 1))
    e("v_lshrrev_b32 v%d, 2, v0" % (t + 2))
    e("v_lshl_add_u32 v%d, v%d, 2, v%d" % (t + 2, t + 1, t + 2))
    e("v_and_b32 v%d, 7, v%d" % (t + 2, t + 2))
    e("v_mul_u32_u24 v%d, %d, v%d" % (t + 2, PIECE, t + 2))
    e("v_lshl_add_u32 v%d, v%d, 8, v%d" % (t + 2, t + 1, t + 2))
    e("v_and_b32 v%d, 3, v0" % (t + 3))
    e("v_lshlrev_b32 v%d, 3, v%d" % (t + 3, t + 3))
    e("v_lshlrev_b32 v%d, 4, v%d" % (t + 4, t + 1))
    e("v_xor_b32 v%d, v%d, v%d" % (t + 3, t + 3, t + 4))
    e("v_add_u32 v%d, v%d, v%d" % (vVB, t + 2, t + 3))
    g.c("first key of this lane's score registers: 16*((g^s)&1) + s")
    e("v_xor_b32 v%d, v%d, v%d" % (t + 2, t, t + 1))
    e("v_and_b32 v%d, 1, v%d" % (t + 2, t + 2))
    e("v_lshl_add_u32 v%d, v%d, 4, v%d" % (vBASE, t + 2, t + 1))
    e("s_lshr_b32 s%d, s%d, 1" % (sT0, sW))
    e("s_mul_i32 s%d, s%d, s%d" % (sT0, sT0, sD))
    e("s_mul_i32 s%d, s%d, %d" % (sT1, sT0, 2 * GRP))
    e("s_lshl_b32 s%d, s%d, 8" % (sT0, sT0))
    e("s_add_u32 s%d, s%d, s%d" % (sH, sH, sT0))
    e("s_cmp_eq_u32 s%d, 0" % sD)
    e("s_cselect_b32 s%d, 3, 1" % sGM)
    e("s_and_b32 s%d, s%d, s%d" % (sQB, sW, sGM))
    e("v_add_u32 v%d, s%d, v%d" % (vKB, sT1, vKB))
    e("v_add_u32 v%d, s%d, v%d" % (vVB, sT1, vVB))
    g.c("output staging (16 rows at a time): row x at pitch %d, byte 8g; read back row lane>>4, chunk lane&15" % SP)
    e("s_mul_i32 s%d, s%d, %d" % (sT0, sW, 16 * SP))
    e("s_add_u32 s%d, s%d, %d" % (sT0, sT0, STG))
    e("v_and_b32 v%d, 15, v0" % (t + 2))
    e("v_mul_u32_u24 v%d, %d, v%d" % (t + 3, SP, t + 2))
    e("v_lshl_add_u32 v%d, v%d, 3, v%d" % (t + 3, t, t + 3))
    e("v_add_u32 v%d, s%d, v%d" % (vSW, sT0, t + 3))
    e("v_lshlrev_b32 v%d, 4, v%d" % (t + 2, t + 2))
    e("v_mul_u32_u24 v%d, %d, v%d" % (t + 4, SP, t))
    e("v_add3_u32 v%d, v%d, v%d, s%d" % (vSR, t + 4, t + 2, sT0))
    e("v_lshl_add_u32 v%d, v%d, 14, v%d" % (vOOF, t, t + 2))
    e("v_add_u32 v%d, 8192, v%d" % (vOOF1, vOOF))
    g.c("row-sum operand: ones in rows 0,4,8,12 only (each lane needs the sum in its first result register)")
    e("v_and_b32 v%d, 3, v0" % (t + 2))
    e("v_cmp_eq_u32 vcc, 0, v%d" % (t + 2))
    e("v_mov_b32 v%d, 0x3f803f80" % (t + 3))
    e("s_nop 0")
    for i in range(4): e("v_cndmask_b32 v%d, 0, v%d, vcc" % (vONE + i, t + 3))
    e("s_mov_b32 s%d, 0" % sG)
    e("s_mov_b32 s%d, 0x%08x" % (sC, f2u(CSCALE)))
    e("s_mov_b32 s%d, 0" % sBAD)
    e("s_mov_b32 s%d, 1" % sBIT)
    e("s_mov_b32 s%d, s%d" % (sRS0, sR0))
    e("s_mov_b32 s%d, s%d" % (sRS1, sR1))
    e("s_mov_b32 s%d, 0x%08x" % (sHI, f2u(2.0 ** 60) if not o["forcebad"] else f2u(2.0 ** -70)))
    e("s_mov_b32 s%d, 0x%08x" % (sLO, f2u(2.0 ** -60)))
    e("s_cmp_eq_u32 s%d, 0" % sD)
    e("s_mov_b32 s%d, %d" % (sT1, 2 * GRP + PAIR))
    e("s_cselect_b32 s%d, %d, s%d" % (sT1, 3 * PAIR, sT1))
    e("s_mul_i32 s%d, s%d, %d" % (sT0, sW, 2 * PIECE))
    e("s_add_u32 s%d, s%d, s%d" % (sT1, sT1, sT0))
    e("v_lshlrev_b32 v%d, 4, v0" % KF)
    e("v_add_u32 v%d, s%d, v%d" % (KF, sT1, KF))
    srd(sO, 12)
    def round_setup():
        e("s_mov_b32 s%d, s%d" % (sO + 2, sEND))
        e("s_lshl_b32 s%d, s%d, 5" % (sT0, sQB))
        e("s_add_u32 s%d, s%d, s%d" % (sT0, sT0, sQ0))
        e("s_lshl_b32 s%d, s%d, 12" % (sO0, sT0))
        for j in range(1, 4): e("s_add_u32 s%d, s%d, %d" % (sO0 + j, sO0, (0, 16, 17, 1)[j] * 4096))
        e("s_sub_u32 s%d, s%d, 1" % (sT0, sN))
        e("s_lshl_b32 s%d, s%d, 5" % (sT0, sT0))
        e("s_sub_u32 s%d, s%d, s%d" % (sT0, sL, sT0))
        e("v_sub_u32 v%d, s%d, v%d" % (vTH, sT0, vBASE))
        g.c("keys of the last tile inside the segment: score register (kb, r) holds key base + 4r + 2kb")
        for kb in range(2):
            for r in range(4): e("v_cmp_lt_i32 %s, %d, v%d" % (sr(sMASK + 8 * kb + 2 * r, 2), 4 * r + 2 * kb, vTH))
        e("v_and_b32 v%d, 0xffff, v%d" % (vTMP, vONE))
        for i in range(0, 8, 2): e("v_mov_b64 %s, 0" % vr(vLS + i, 2))
        for i in range(4): e("v_cndmask_b32 v%d, 0, v%d, %s" % (vW + i, vTMP, sr(sMASK + 4 * i, 2)))
        for i in range(4): e("v_cndmask_b32 v%d, v%d, v%d, %s" % (vW + i, vW + i, vONE, sr(sMASK + 4 * i + 2, 2)))
        for i in range(0, 64, 2): e("v_mov_b64 %s, 0" % vr(O + i, 2))
    def ring_setup():
        e("s_mul_i32 s%d, s%d, %d" % (sGOFF, sG, GRP))
        e("s_add_u32 s%d, s%d, %d" % (sT0, sGOFF, PAIR))
        e("s_add_u32 s%d, s%d, 1" % (sG, sG))
        e("s_and_b32 s%d, s%d, s%d" % (sG, sG, sGM))
        e("s_mul_i32 s%d, s%d, %d" % (sT1, sG, GRP))
        e("s_cmp_eq_u32 s%d, 0" % sDM)
        e("s_cselect_b32 s%d, s%d, s%d" % (sGOFF, sT0, sGOFF))
        e("s_cselect_b32 s%d, s%d, s%d" % (sT0, sT1, sT0))
        e("s_addc_u32 s%d, s%d, 0" % (sG, sG))
        e("s_and_b32 s%d, s%d, s%d" % (sG, sG, sGM))
        e("s_mul_i32 s%d, s%d, %d" % (sT1, sQB, BLK))
        e("s_add_u32 s%d, s%d, s%d" % (sT0, sT0, sT1))
        e("v_add_u32 v%d, s%d, v%d" % (vQA, sT0, vKB))
        e("v_add_u32 v%d, s%d, v%d" % (vKA, sGOFF, vKB))
        e("s_mul_i32 s%d, s%d, %d" % (sGOFF, sG, GRP))
        e("v_add_u32 v%d, s%d, v%d" % (vVA, sGOFF, vVB))
        e("s_sub_u32 s%d, s%d, 2" % (sCNT, sN))
    if o["late"]: e("s_bfe_u32 s%d, s%d, 0x1000a" % (sRS1 + 4, sTN))
    round_setup(); ring_setup()
    if o["late"]:
        e("s_cmp_lg_u32 s%d, 0" % (sRS1 + 4))
        e("s_cbranch_scc1 L_cround")
    for n in range(4):
        e("s_waitcnt vmcnt(%d)" % (3 - n + (2 if o["tlb"] else 0) + (1 if o["cpf"] == 1 else 0)))
        scale4(Q + 4 * n, vT, sr(sC, 2) + " op_sel_hi:[1,0]")
        e("ds_write_b128 v%d, %s offset:%d" % (KF, vr(Q + 4 * n, 4), (n & 1) * PIECE + (n >> 1) * BLK))
    e("s_waitcnt lgkmcnt(0)")
    g.lab("L_cround")
    if o["idlex"] and o["dsord"]: e("s_cmp_ge_u32 s%d, s%d" % (sO0, sEND))
    elif o["idlex"]:
        g.c("a wave whose 32 rows all lie past the segment end has nothing left to do (only ever in a workgroup's last job)")
        e("s_or_b32 s%d, s%d, s%d" % (sT0, sR1, sBAD))
        e("s_cmp_lt_u32 s%d, s%d" % (sO0, sEND))
        e("s_cselect_b32 s%d, 1, s%d" % (sT0, sT0))
        e("s_cmp_eq_u32 s%d, 0" % sT0)
    g.stamp()
    e("s_barrier")
    if o["idlex"] and o["dsord"]:
        if ts: e("s_cmp_ge_u32 s%d, s%d" % (sO0, sEND))
        e("s_cbranch_scc1 L_idle")
        g.lab("L_busy")
    elif o["idlex"]:
        if ts: e("s_cmp_eq_u32 s%d, 0" % sT0)
        e("s_cbranch_scc1 L_fin")
    g.stamp()
    dq = DSQ()
    rd = []
    for t_ in range(4): rd += [("Q0%d" % t_, qread(0, t_, vQA)), ("K%d" % (2 * t_), kread(2 * t_, 0)), ("K%d" % (2 * t_ + 1), kread(2 * t_ + 1, 0)), ("Q1%d" % t_, qread(1, t_, vQA))]
    def rnext(k):
        for _ in range(k):
            if rd: tag, x = rd.pop(0); dq.add(tag); e(x)
    rnext(o["ahead"])
    for n, qb in qk_order():
        for x in dq.need("K%d" % n) + dq.need("Q%d%d" % (qb, n >> 1)): e(x)
        e(qk(n, qb, 0))
        rnext(1)
    if o["q2dma"]: g.lab("L_pro2")
    ua = "v_add_u32 v%d, s%d, v%d" % (vKA, sGOFF, vKB)
    ea = [op(x, 1)[0] for x in EARLY]
    kr = [kread(n, BLK) for n in range(8)]
    if o["pv_"] == 0: seq = kr + [ua, "s_barrier"] + ea
    elif o["pv_"] == 1: seq = kr + [ua] + ea + ["s_barrier"]
    elif o["pv_"] == 2: seq = ["s_barrier"] + kr + [ua] + ea
    elif o["pv_"] == 3: seq = kr[:6] + ["s_nop 1"] + ea[:5] + kr[6:] + [ua] + ea[5:] + ["s_barrier"]
    for x in seq: e(x)
    if ts == 2: g.stamp_issue()
    elif ts: g.stamp()
    if o["pairbar"]:
        e("s_bitcmp1_b32 s%d, 14" % sTN)
        e("s_waitcnt lgkmcnt(%d)" % len(LOOPQ))
        e("s_cbranch_scc0 L_h0")
    else: e("s_waitcnt lgkmcnt(%d)" % len(LOOPQ))
    def hook(n):
        k = len(g.L)
        if ts == 2 and n == 8: g.stamp_write()
        if ts == 2 and n == 33: g.stamp_issue()
        r = [x.strip() for x in g.L[k:]]; del g.L[k:]
        return r
    for var in (("p", "") if o["pairbar"] else ("",)):
        VAR[0] = var
        g.L.append(".p2align 6")
        if var == "p": g.c("single-job workgroups: the loaders publish two tiles per barrier")
        for h in range(2):
            g.lab("L_h%d%s" % (h, var))
            for x in loop_body(h, o["sched"], hook): e(x)
        if var == "p": e("s_branch L_tail0")
    VAR[0] = ""
    for h in range(2):
        g.lab("L_tail%d" % h)
        dq = DSQ(LOOPQ)
        for x in TAILS[o["tail"]]:
            if x == "Cc99": continue
            if x[0] == "M" and "n" in x:
                for y in dq.need("V" + x.split("n")[1]): e(y)
                x = x[:3]
            if x[0] == "N":
                for y in dq.need(x[1:]): e(y)
                continue
            if x[0] == "V": dq.add(x)
            for y in op(x, h): e(y)
        if o["stf1"] is not None:
            g.L.insert(len(g.L) - 2, "    s_cmp_lg_u32 s%d, 0" % sR1)
            e("s_cbranch_scc1 L_epim")
        if h == 0: e("s_branch L_epi")
    W = Q; R = KF
    stfl = [stf]
    def va(qb, db, pk_=True):
        ob = O + 32 * qb + 4 * db; w = W + 16 * qb + 2 * db
        if pk_: m = ["v_pk_mul_f32 %s, %s, %s %s" % (vr(ob + k, 2), vr(ob + k, 2), vr(vRI, 2), "op_sel:[0,1]" if qb else "op_sel_hi:[1,0]") for k in (0, 2)]
        else: m = ["v_mul_f32 v%d, v%d, v%d" % (ob + k, vRI + qb, ob + k) for k in range(4)]
        return m + ["v_cvt_pk_bf16_f32 v%d, v%d, v%d" % (w, ob, ob + 1), "v_cvt_pk_bf16_f32 v%d, v%d, v%d" % (w + 1, ob + 2, ob + 3)]
    def wr(qb, p):
        w = W + 16 * qb + 4 * p
        dq.add("w")
        return ["ds_write2_b64 v%d, %s, %s offset0:%d offset1:%d" % (vSW, vr(w, 2), vr(w + 2, 2), 8 * p, 8 * p + 4)]
    def rdb(qb):
        for j in range(4): dq.add("r%d%d" % (qb, j))
        return ["ds_read_b128 %s, v%d offset:%d" % (vr(R + 16 * qb + 4 * j, 4), vSR, j * 4 * SP) for j in range(4)]
    def st(qb, j):
        return dq.need("r%d%d" % (qb, j)) + ["buffer_store_dwordx4 %s, v%d, %s, s%d offen%s" % (vr(R + 16 * qb + 4 * j, 4), vOOF1 if qb else vOOF, sr(sO, 4), sO0 + j, stfl[0])]
    def epilogue(fast):
        seq = []
        v2 = lambda qb, p, pk_=True: va(qb, 2 * p, pk_) + va(qb, 2 * p + 1, pk_)
        if fast:
            a = v2(0, 0, False) + va(0, 2, False)
            def take(n):
                r = a[:n]; del a[:n]; return r
            seq += ["v_rcp_f32 v%d, v%d" % (vRI, vLS), rs(1, vW), "v_cmp_gt_f32 vcc, s%d, v%d" % (sHI, vLS), "v_cmp_lt_f32 %s, s%d, v%d" % (sr(sMASK, 2), sLO, vLS)]
            seq += [pv(1, 0)] + take(2) + [pv(1, 1), "s_and_b64 vcc, vcc, %s" % sr(sMASK, 2)] + take(2) + [pv(1, 2)] + take(2)
            seq += [pv(1, 3)] + take(2) + [pv(1, 4), "v_rcp_f32 v%d, v%d" % (vRI + 1, vLS + 4), pv(1, 5)] + take(2) + [pv(1, 6)] + take(2)
            seq += [pv(1, 7)] + wr(0, 0) + ["v_cmp_gt_f32 %s, s%d, v%d" % (sr(sMASK, 2), sHI, vLS + 4), "v_cmp_lt_f32 %s, s%d, v%d" % (sr(sMASK + 2, 2), sLO, vLS + 4)]
            seq += take(99) + ["s_and_b64 vcc, vcc, %s" % sr(sMASK, 2), "s_and_b64 vcc, vcc, %s" % sr(sMASK + 2, 2)] + va(0, 3) + wr(0, 1)
            seq += ["s_cmp_eq_u64 vcc, -1", "s_cselect_b32 s%d, 0, s%d" % (sT0, sBIT), "s_or_b32 s%d, s%d, s%d" % (sBAD, sBAD, sT0)]
        else:
            seq += ["v_rcp_f32 v%d, v%d" % (vRI, vLS), "v_rcp_f32 v%d, v%d" % (vRI + 1, vLS + 4), "s_nop 0"] + v2(0, 0) + wr(0, 0) + v2(0, 1) + wr(0, 1)
        seq += v2(0, 2) + wr(0, 2) + v2(0, 3) + wr(0, 3) + rdb(0)
        if o["ev"] == 0:
            seq += v2(1, 0) + wr(1, 0) + st(0, 0) + va(1, 2) + st(0, 1) + va(1, 3) + wr(1, 1) + st(0, 2) + v2(1, 2) + wr(1, 2) + st(0, 3) + v2(1, 3) + wr(1, 3)
        elif o["ev"] == 1:
            seq += v2(1, 0) + st(0, 0) + v2(1, 1) + st(0, 1) + v2(1, 2) + st(0, 2) + v2(1, 3) + st(0, 3) + wr(1, 0) + wr(1, 1) + wr(1, 2) + wr(1, 3)
        elif o["ev"] == 3:
            seq += v2(1, 0) + st(0, 0) + wr(1, 0) + v2(1, 1) + st(0, 1) + wr(1, 1) + v2(1, 2) + st(0, 2) + wr(1, 2) + v2(1, 3) + st(0, 3) + wr(1, 3)
        elif o["ev"] == 4:
            seq += va(1, 0) + st(0, 0) + va(1, 1) + wr(1, 0) + st(0, 1) + v2(1, 1) + wr(1, 1) + st(0, 2) + v2(1, 2) + wr(1, 2) + st(0, 3) + v2(1, 3) + wr(1, 3)
        elif o["ev"] == 2:
            seq += v2(1, 0) + wr(1, 0) + st(0, 0) + v2(1, 1) + wr(1, 1) + st(0, 1) + v2(1, 2) + wr(1, 2) + st(0, 2) + v2(1, 3) + wr(1, 3)
        seq += rdb(1)
        if o["ev"] == 2: seq += st(0, 3)
        for j in range(4): seq += st(1, j)
        for x in seq: e(x)
    g.lab("L_epi")
    if not o["fuse"]:
        epilogue(True)
        e("s_cmp_eq_u32 s%d, 0" % sR1)
        e("s_cbranch_scc1 L_cdone")
        next_round()
        e("s_mov_b32 s%d, 2" % sBIT)
        round_setup(); ring_setup()
        e("s_branch L_cround")
    else:
        def grab(f):
            k = len(g.L); f(); r = g.L[k:]; del g.L[k:]; return r
        if o["stf1"] is not None:
            q0_ = list(dq.q)
            epilogue(True)
            e("s_branch L_cdone")
            g.lab("L_epim")
            g.c("first of two jobs: leave these rows to the write-back cache, the loaders are still streaming")
            dq.q = q0_; stfl[0] = o["stf1"].replace(",", " ")
            ep = grab(lambda: epilogue(True)); stfl[0] = stf
            fin = ep[-8:]; assert all("waitcnt" in x or "store" in x for x in fin)
            g.L += ep[:-8]
        else:
            ep = grab(lambda: epilogue(True))
            fin = ep[-8:]; assert all("waitcnt" in x or "store" in x for x in fin)
            g.L += ep[:-8]
            e("s_cmp_lg_u32 s%d, 0" % sR1)
            e("s_cbranch_scc1 L_more")
            g.L += fin
            e("s_branch L_cdone")
            g.lab("L_more")
        g.c("another job follows: set it up underneath the last stores")
        def nx():
            if o["q2dma"]: e("s_andn2_b32 s%d, s%d, s%d" % (sDM, sD, sN))
            elif o["dsord"]:
                e("s_and_b32 s%d, s%d, s%d" % (sT0, sN, sD)); e("s_add_u32 s%d, s%d, s%d" % (sG, sG, sT0)); e("s_and_b32 s%d, s%d, s%d" % (sG, sG, sGM))
            next_round(); e("s_mov_b32 s%d, 2" % sBIT); round_setup(); ring_setup()
        su = [x for x in grab(nx) if not x.strip().startswith(";")]
        uses = lambda x: any(("s%d," % r) in x.split(None, 1)[1][:5] for r in (sO + 2, sO0, sO0 + 1, sO0 + 2, sO0 + 3))
        i0 = [i for i, x in enumerate(su) if uses(x)]
        late_ = su[i0[0]:i0[-1] + 1]; early = su[:i0[0]] + su[i0[-1] + 1:]
        n4 = len(early) // 4
        for j in range(4): g.L += early[j * n4:(j + 1) * n4 if j < 3 else len(early)] + fin[2 * j:2 * j + 2]
        g.L += late_
        e("s_branch L_cround2" if o["q2dma"] else "s_branch L_cround")
        if o["dsord"]:
            g.lab("L_idle")
            g.c("no rows of this wave in this job: leave if it is the last one, else only keep the barriers company")
            e("s_or_b32 s%d, s%d, s%d" % (sT0, sR1, sBAD))
            e("s_cbranch_scc0 L_fin")
            e("s_cmp_eq_u32 s%d, 0" % sR1)
            e("s_cbranch_scc1 L_busy")
            e("s_mov_b32 s%d, s%d" % (sCNT, sN))
            g.lab("L_idle1")
            e("s_barrier")
            e("s_sub_u32 s%d, s%d, 1" % (sCNT, sCNT))
            e("s_cmp_lg_u32 s%d, 0" % sCNT)
            e("s_cbranch_scc1 L_idle1")
            e("s_lshr_b32 s%d, s%d, 1" % (sT0, sN))
            e("s_add_u32 s%d, s%d, s%d" % (sG, sG, sT0))
            e("s_and_b32 s%d, s%d, s%d" % (sG, sG, sGM))
            nx()
            e("s_branch L_cround2" if o["q2dma"] else "s_branch L_cround")
    if o["q2dma"]:
        g.lab("L_cround2")
        e("s_cmp_ge_u32 s%d, s%d" % (sO0, sEND))
        g.stamp()
        e("s_barrier")
        if ts: e("s_cmp_ge_u32 s%d, s%d" % (sO0, sEND))
        e("s_cbranch_scc1 L_idle2")
        g.lab("L_busy2")
        g.stamp()
        for t_ in range(4):
            for qb in range(2): e(qread(qb, t_, vQA))
        for n in range(7): e(kread(n, 0))
        for i in range(8):
            e("s_waitcnt lgkmcnt(%d)" % (14 - i if i < 1 else 15 - i))
            if i == 0: e(kread(7, 0))
            scale4(Q + 16 * (i & 1) + 4 * (i >> 1), vT, sr(sC, 2) + " op_sel_hi:[1,0]")
        e("s_waitcnt lgkmcnt(0)")
        e("s_nop 0")
        for n, qb in qk_order(): e(qk(n, qb, 0))
        e("s_branch L_pro2")
        g.lab("L_idle2")
        e("s_cmp_eq_u32 s%d, 0" % sBAD)
        e("s_cbranch_scc1 L_fin")
        e("s_branch L_busy2")
    g.lab("L_cdone")
    g.stamp()
    e("s_barrier")
    e("s_cmp_lg_u32 s%d, 0" % sBAD)
    e("s_cbranch_scc1 L_slow")
    g.lab("L_fin")
    if ts:
        e("s_waitcnt vmcnt(0)")
        g.stamp()
        g.lab("L_tsout")
        e("s_lshl_b32 s%d, s2, 3" % sT0)
        e("s_add_u32 s%d, s%d, s%d" % (sT0, sT0, sW))
        e("s_lshl_b32 s%d, s%d, 9" % (sT0, sT0))
        e("s_add_u32 s16, s16, s%d" % sT0)
        e("s_addc_u32 s17, s17, 0")
        e("v_lshlrev_b32 v1, 3, v0")
        e("global_store_dwordx2 v1, v[30:31], s[16:17]")
        if o["diag"] >= 0:
            e("s_cmp_lg_u32 s%d, 0" % sW); e("s_cbranch_scc1 L_end")
            e("s_cmp_lg_u32 s2, %d" % o["diagwg"]); e("s_cbranch_scc1 L_end")
            e("v_readlane_b32 s60, v31, 0")
            e("v_readlane_b32 s61, v31, %d" % o["diag"])
            e("s_nop 4")
            e("s_sub_u32 s61, s61, s60")
            e("s_mul_i32 s61, s61, 10")
            if o["diagc"] >= 0:
                e("v_readlane_b32 s62, v30, %d" % o["diagc"]); e("v_readlane_b32 s61, v30, %d" % o["diag"]); e("s_nop 4"); e("s_sub_u32 s61, s61, s62")
            e("s_min_u32 s61, s61, 30000")
            e("s_add_u32 s61, s61, 5000")
            g.lab("L_spin")
            e("s_sleep 8")
            e("s_memrealtime s[52:53]")
            e("s_waitcnt lgkmcnt(0)")
            e("s_sub_u32 s52, s52, s60")
            e("s_cmp_lt_u32 s52, s61")
            e("s_cbranch_scc1 L_spin")
    g.lab("L_end")
    e("s_endpgm")
    g.lab("L_slow")
    g.c("================= fallback: online softmax with the true running max, this wave alone, private LDS area =================")
    srd(sQ, 4); srd(sK, 6); srd(sV, 8)
    e("s_lshl_b32 s%d, s%d, 15" % (sT0, sW))
    e("v_subrev_u32 v%d, s%d, v%d" % (vDMA, sT0, vG0))
    e("v_mov_b32 v%d, 0xff800000" % vNINF)
    e("s_mul_i32 s%d, s%d, %d" % (sG, sW, GRP))
    e("s_lshr_b32 s%d, s%d, 1" % (sT0, sW))
    e("s_mul_i32 s%d, s%d, s%d" % (sT0, sT0, sD))
    e("s_mul_i32 s%d, s%d, %d" % (sT1, sT0, 2 * GRP))
    e("s_sub_i32 s%d, s%d, s%d" % (sT0, sG, sT1))
    e("v_add_u32 v%d, s%d, v%d" % (vKA, sT0, vKB))
    e("v_add_u32 v%d, s%d, v%d" % (vVA, sT0, vVB))
    e("s_mov_b32 s%d, s%d" % (sR0, sRS0))
    e("s_bitcmp1_b32 s%d, 0" % sBAD)
    e("s_cbranch_scc1 L_sround")
    g.lab("L_snext")
    e("s_bitcmp1_b32 s%d, 1" % sBAD)
    e("s_cbranch_scc0 L_fin")
    e("s_mov_b32 s%d, 0" % sBAD)
    e("s_mov_b32 s%d, s%d" % (sR0, sRS1))
    g.lab("L_sround")
    decode_round()
    for x in (sQ, sK, sV): e("s_mov_b32 s%d, s%d" % (x + 2, sEND))
    round_setup()
    def sload(srd_, soff, blkno):
        for p in range(8):
            e("s_add_u32 s%d, s%d, %d" % (sT0, sG, blkno * BLK + p * PIECE))
            e("s_mov_b32 m0, s%d" % sT0)
            e("s_add_u32 s%d, s%d, %d" % (sT1, soff, p * 16384))
            e("buffer_load_dwordx4 v%d, %s, s%d offen lds" % (vDMA, sr(srd_, 4), sT1))
    sload(sQ, sO0, 0)
    e("s_waitcnt vmcnt(0)")
    for qb in range(2):
        for t_ in range(4): e(qread(qb, t_, vKA))
    e("s_waitcnt lgkmcnt(0)")
    for n in range(8): scale4(Q + 4 * n, vT, None, sC)
    e("v_mov_b32 v%d, 0xf149f2ca" % vM); e("v_mov_b32 v%d, 0xf149f2ca" % (vM + 1))
    CI = S[1]
    for i in range(0, 8, 2): e("v_mov_b64 %s, 0" % vr(CI + i, 2))
    e("s_lshl_b32 s%d, s%d, 12" % (sGOFF, sK0))
    e("s_mov_b32 s%d, s%d" % (sCNT, sN))
    g.lab("L_stile")
    sload(sK, sGOFF, 0); sload(sV, sGOFF, 1)
    e("s_cmp_lg_u32 s%d, 1" % sCNT)
    e("s_cbranch_scc1 L_snomask")
    for i in range(8): e("v_cndmask_b32 v%d, v%d, 0, %s" % (CI + i, vNINF, sr(sMASK + 2 * i, 2)))
    g.lab("L_snomask")
    e("s_waitcnt vmcnt(0)")
    for n in range(8): e(kread(n, 0))
    e("s_waitcnt lgkmcnt(0)")
    for m in range(8): e(vread(m, BLK))
    for n in range(8):
        for qb in range(2): e(qk(n, qb, 0, CI))
    for m in range(8, 16): e(vread(m, BLK))
    e("s_nop 7")
    for qb in range(2):
        s0 = S[0] + 8 * qb
        e("v_max3_f32 v%d, v%d, v%d, v%d" % (vTMP, vM + qb, s0, s0 + 1))
        for i in range(2, 8, 2): e("v_max3_f32 v%d, v%d, v%d, v%d" % (vTMP, vTMP, s0 + i, s0 + i + 1))
        for sw in ("v_permlane16_swap_b32", "v_permlane32_swap_b32"):
            e("v_mov_b32 v%d, v%d" % (vTMP2, vTMP))
            e("s_nop 1")
            e("%s v%d, v%d" % (sw, vTMP, vTMP2))
            e("v_max_f32 v%d, v%d, v%d" % (vTMP, vTMP, vTMP2))
        e("v_sub_f32 v%d, v%d, v%d" % (vRI, vM + qb, vTMP))
        e("v_exp_f32 v%d, v%d" % (vRI, vRI))
        e("v_mov_b32 v%d, v%d" % (vM + qb, vTMP))
        for i in range(8): e("v_sub_f32 v%d, v%d, v%d" % (s0 + i, s0 + i, vTMP))
        for i in range(8): e("v_exp_f32 v%d, v%d" % (s0 + i, s0 + i))
        for r in list(range(O + 32 * qb, O + 32 * qb + 32, 2)) + [vLS + 4 * qb, vLS + 4 * qb + 2]:
            e("v_pk_mul_f32 %s, %s, %s op_sel_hi:[1,0]" % (vr(r, 2), vr(r, 2), vr(vRI, 2)))
    for i in range(8): e(op("Cc%d" % i, 0)[0])
    e("s_waitcnt lgkmcnt(0)")
    e("s_nop 0")
    for qb in range(2):
        e(rs(qb))
        for db in range(8): e(pv(qb, db))
    e("s_add_u32 s%d, s%d, %d" % (sGOFF, sGOFF, 32 * 4096))
    e("s_sub_u32 s%d, s%d, 1" % (sCNT, sCNT))
    e("s_cmp_lg_u32 s%d, 0" % sCNT)
    e("s_nop 7")
    e("s_cbranch_scc1 L_stile")
    dq = DSQ()
    epilogue(False)
    e("s_branch L_snext")
    g.L.append(".p2align 6")
    g.lab("L_table")
    g.c("per workgroup: Q row offset (loaders, compute waves), K row offset, buffer bound, head byte offset, tiles | dual<<8 | keep<<9, round 1, round 2")
    HO = {0: (0, 1, 2, 4, 6), 1: (0, 7, 1, 2, 3), 2: (0, 0, 0, 0, 0), 3: (0, 3, 2, 4, 6), 4: (0, 5, 4, 2, 6), 5: (0, 1, 4, 2, 6)}[o["hmap"]]
    g465 = lambda h: [(7, c, h, 0, 0) for c in range(4)]
    u432 = lambda p: [(5, 3, 2 * p, 1, 0)] + [(5, c, 2 * p + hb, 0, 0) for c in range(3) for hb in range(2)]
    usml = lambda p: [(4, 0, 2 * p, 0, pk(6, 0)), (4, 0, 2 * p + 1, 0, pk(6, 0)), (2, 0, 2 * p, 0, pk(1, 0)), (2, 0, 2 * p + 1, 0, pk(1, 0)), (2, 1, 2 * p, 1, pk(4, 1)) if o["dsord"] else (4, 1, 2 * p, 1, pk(2, 1))]
    gsh = lambda seg, h: [(seg, c, h, 0, 0) for c in range(3)]
    jobs = [None] * 8
    if o["xmap"] == 0:
        for x in range(8):
            P_ = lambda k: (x + HO[k]) & 7
            il = lambda A, B: [v for pr in zip(A, B) for v in pr]
            jobs[x] = il(g465(2 * P_(0)), g465(2 * P_(0) + 1)) + usml(P_(1)) + u432(P_(2)) + il(gsh(0, 2 * P_(3)), gsh(0, 2 * P_(3) + 1)) + il(gsh(3, 2 * P_(4)), gsh(3, 2 * P_(4) + 1))
    else:
        sx = [int(v) for v in o["shortx"].split(",") if v]
        rest = [x for x in range(8) if x not in sx]
        shorts = [gsh(seg, h) for h in (0, 5, 10, 15, 4, 9, 14, 3, 8, 13, 2, 7, 12, 1, 6, 11) for seg in (0, 3)]
        A = [g465(h) for h in (0, 9, 2, 11, 4, 13, 6, 15, 8, 1, 10, 3, 12, 5, 14, 7)]
        B = [u432(p) for p in (2, 3, 4, 5, 6, 7, 0, 1)]
        C = [usml(p) for p in (1, 2, 3, 4, 5, 6, 7, 0)]
        flat = [j for gp in shorts for j in gp]
        if len(sx) == 1: plan = [(1, 1, 2)] * 5 + [(2, 1, 3), (1, 2, 3)]
        elif len(sx) == 3: plan = [(2, 2, 2)] * 4 + [(0, 0, 8)]
        elif len(sx) == 2: plan = [(1, 1, 3), (1, 1, 3), (1, 1, 3), (1, 1, 3), (2, 2, 2), (2, 2, 2)]
        for x in sx: jobs[x] = flat[:32]; del flat[:32]
        order = sorted(range(len(plan)), key=lambda i: (32 - 7 * plan[i][0] - 5 * plan[i][1] - 4 * plan[i][2]) % 3 != len(flat) % 3)
        for x, i in zip(rest, order):
            a_, b_, c_ = plan[i]
            L0 = sum((A.pop(0) for _ in range(c_)), []) + sum((C.pop(0) for _ in range(b_)), []) + sum((B.pop(0) for _ in range(a_)), [])
            n_ = 32 - len(L0); L0 += flat[:n_]; del flat[:n_]
            jobs[x] = L0
        assert not (A or B or C or flat)
    assert sorted(j for J in jobs for j in J) == sorted(set(j for J in jobs for j in J)) and all(len(J) == 32 for J in jobs)
    for wg in range(256):
        x, j = wg & 7, wg >> 3
        seg, c, head, dual, r1 = jobs[x][j]
        k0, L_ = SEGS[seg]; q0 = k0 + 128 * c
        keep = 1 if (seg in (5, 4, 2) and not dual) else 0
        sel = o["swap"] and not dual and not r1 and (o["swap"] == 1 or (head & 3) == 1)
        segbit = {7: 1, 5: 2, 0: 4, 3: 4}.get(seg, 0)
        swp = 0
        if sel: swp = (c | 4) if (o["rot4"] & segbit) else (c & 1)
        if o["swap"] and o["swapk"] and r1 and not dual and seg == (2 if o["dsord"] else 4): swp = 1
        if (o["keepslow"] & segbit) and (head & 3) == 1 and not dual: keep = 1
        pb = 1 if (not dual and not r1) else 0
        assert not (o["late"] and o["pairbar"])
        lt = 1 if (o["late"] and seg in (0, 3) and (o["latemask"] >> head) & 1) else 0
        g.L.append("    .long %d, %d, %d, %d, %d, %d, 0x%x, 0x%x" % (q0 * 4096, q0 * 4096 + (256 if dual else 64 * 4096), k0 * 4096, (k0 + L_) * 4096 - 3584, head * 256,
                                                               ((L_ + 31) >> 5) | dual << 8 | keep << 9 | lt << 10 | swp << 11 | pb << 14 | (1 if (seg in (0, 3) and (o['gseg'] >> seg) & 1) else 0) << (16 if (o['hyb'] and (head & 3) != 1 and head != 15) else 15), pk(seg, c), r1))
    g.L.append(KD)
    return "\n".join(g.L) + "\n"

if __name__ == "__main__":
    out = sys.argv[1]
    opts = {}
    for a in sys.argv[2:]:
        k, v = a.split("="); opts[k] = None if v == "None" else (v if "," in v else int(v))
    open(out, "w").write(gen(**opts))
```

```python
import sys
from gen11 import *
import gen11 as gen6
def gen_loop(nit=100, dma=1, nwg=256, sched=6, drop='', order=2, one=1, fl=''):
    gen6.ORD[0] = order
    L = []; e = lambda x: L.append("    " + x)
    L.append("""; @launch grid=(%d,1,1) block=(512,1,1) lds=%d
.amdgcn_target "amdgcn-amd-amdhsa--gfx950"
.text
.globl %s
.p2align 8
.type %s,@function
%s:""" % (nwg, LDS, KN, KN, KN))
    def stamp():
        e("s_memtime s[52:53]"); e("s_memrealtime s[54:55]"); e("s_waitcnt lgkmcnt(0)")
        e("s_mov_b32 m0, s56"); e("s_add_u32 s56, s56, 1"); e("v_writelane_b32 v30, s52, m0"); e("v_writelane_b32 v31, s54, m0")
    e("s_mov_b32 s56, 0"); e("v_mov_b32 v30, 0"); e("v_mov_b32 v31, 0")
    e("s_load_dwordx8 s[4:11], s[0:1], 0"); e("s_load_dwordx2 s[16:17], s[0:1], 48")
    e("s_cmp_ge_u32 s2, %d" % nwg); e("s_cbranch_scc1 L_end")
    e("v_lshrrev_b32 v1, 6, v0"); e("v_and_b32 v0, 63, v0"); e("v_readfirstlane_b32 s18, v1")
    e("s_waitcnt lgkmcnt(0)")
    e("s_cmp_lt_u32 s18, 4"); e("s_cbranch_scc1 L_cons")
    e("v_lshrrev_b32 v2, 4, v0"); e("v_and_b32 v4, 15, v0"); e("v_lshlrev_b32 v4, 4, v4"); e("v_lshl_add_u32 v1, v2, 12, v4")
    e("s_sub_u32 s48, s18, 4"); e("s_lshl_b32 s49, s48, 15"); e("v_add_u32 v1, s49, v1"); e("v_add_u32 v2, %d, v1" % (16384 - PIECE))
    e("s_mul_i32 s50, s48, %d" % (2 * PIECE))
    e("s_and_b32 s19, s2, 15"); e("s_lshl_b32 s19, s19, 8")
    e("s_add_u32 s24, s6, s19"); e("s_addc_u32 s25, s7, 0"); e("s_mov_b32 s26, %d" % (2146 * 4096 - 3840)); e("s_mov_b32 s27, 0x20000")
    e("s_mov_b32 s44, s50")
    for p in range(16):
        e("s_add_u32 s48, s50, %d" % (p * BLK)); e("s_mov_b32 m0, s48"); e("s_mov_b32 s46, %d" % (p * 131072))
        e("buffer_load_dwordx4 v1, s[24:27], s46 offen lds"); e("buffer_load_dwordx4 v2, s[24:27], s46 offen offset:%d lds" % PIECE)
    e("s_waitcnt vmcnt(0)"); e("s_barrier")
    e("s_mov_b32 s47, %d" % nit); e("s_mov_b32 s46, 0")
    L.append("L_pl:")
    if dma: e("s_waitcnt vmcnt(12)")
    e("s_barrier")
    if dma:
        e("s_mov_b32 m0, s44"); e("s_add_u32 s48, s44, %d" % BLK)
        e("buffer_load_dwordx4 v1, s[24:27], s46 offen%s lds" % fl); e("buffer_load_dwordx4 v2, s[24:27], s46 offen offset:%d%s lds" % (PIECE, fl))
        e("s_mov_b32 m0, s48"); e("s_add_u32 s44, s44, %d" % PAIR)
        e("buffer_load_dwordx4 v1, s[24:27], s46 offen%s lds" % fl); e("buffer_load_dwordx4 v2, s[24:27], s46 offen offset:%d%s lds" % (PIECE, fl))
        e("s_add_u32 s48, s50, %d" % RING); e("s_cmp_eq_u32 s44, s48"); e("s_cselect_b32 s44, s50, s44")
        e("s_add_u32 s46, s46, 131072"); e("s_and_b32 s46, s46, 0xfffff")
    e("s_sub_u32 s47, s47, 1"); e("s_cmp_lg_u32 s47, 0"); e("s_cbranch_scc1 L_pl")
    e("s_endpgm")
    L.append("L_cons:")
    e("s_setprio 1")
    txt = gen6.gen().split("\n")
    i0 = [n for n, x in enumerate(txt) if "K/Q fragment address" in x][0]; i1 = [n for n, x in enumerate(txt) if "first key of this lane" in x][0]
    L.extend(txt[i0:i1])
    e("v_mov_b32 v%d, v%d" % (vKA, vKB)); e("v_mov_b32 v%d, v%d" % (vVA, vVB))
    for i in range(40, 256): e("v_mov_b32 v%d, 0" % i)
    for i in range(4): e("v_mov_b32 v%d, 0x3f803f80" % (vONE + i))
    if one:
        e("v_and_b32 v33, %d, v0" % (3 if one == 1 else 15)); e("v_cmp_eq_u32 vcc, 0, v33"); e("s_nop 1")
        for i in range(4): e("v_cndmask_b32 v%d, 0, v%d, vcc" % (vONE + i, vONE + i))
    e("s_mov_b32 s%d, 0" % sG); e("s_mov_b32 s%d, 3" % sGM); e("s_mov_b32 s%d, 0" % sGOFF)
    e("s_mov_b32 s%d, %d" % (sCNT, nit - 1))
    e("s_barrier")
    for s_ in range(8): e("ds_read_b128 %s, v%d offset:%d" % (vr(Q + 4 * s_, 4), vKA, 3 * BLK + s_ * 32))
    e("s_waitcnt lgkmcnt(0)")
    for i in range(32):
        e("v_subrev_u32 v%d, 0x01800180, v%d" % (Q + i, Q + i))
    stamp()
    L.append(".p2align 6")
    for h in range(2):
        L.append("L_h%d:" % h)
        for x in loop_body(h, sched):
            if any(x.startswith(d) for d in drop.split(",") if d): continue
            e(x.replace("L_tail1", "L_tail0"))
    L.append("L_tail0:")
    stamp()
    e("s_lshl_b32 s48, s2, 3"); e("s_add_u32 s48, s48, s18"); e("s_lshl_b32 s48, s48, 9")
    e("s_add_u32 s16, s16, s48"); e("s_addc_u32 s17, s17, 0"); e("v_lshlrev_b32 v1, 3, v0"); e("global_store_dwordx2 v1, v[30:31], s[16:17]")
    L.append("L_end:"); e("s_endpgm"); L.append(KD)
    return "\n".join(L) + "\n"
if __name__ == "__main__":
    o = {}
    for a in sys.argv[2:]:
        k, v = a.split("="); o[k] = v.replace("_", " ") if k in ("drop", "fl") else int(v)
    open(sys.argv[1], "w").write(gen_loop(**o))
```
